```python
import torch

def _softmax(x, axis=-1):
    return torch.softmax(x, dim=axis)

def _gelu(x):
    return torch.nn.functional.gelu(x, approximate='tanh')

def _silu(x):
    return torch.nn.functional.silu(x)

def _sigmoid(x):
    return torch.sigmoid(x)

def _layernorm(x, axis=-1, eps=1e-05):
    m = x.mean(dim=axis, keepdim=True)
    v = x.var(dim=axis, keepdim=True, unbiased=False)
    return (x - m) / torch.sqrt(v + eps)

def _scatter_add(tgt, idx, src, axis=0):
    return tgt.clone().index_add_(axis, idx, src)

def _segment_sum(src, seg, n):
    out = torch.zeros((n,) + src.shape[1:], dtype=src.dtype)
    return out.index_add_(0, seg, src)

def _pad(x, pw):
    flat = tuple((v for pair in reversed(pw) for v in pair))
    return torch.nn.functional.pad(x, flat)
kernel_name = 'parallel_sum__memory_aug_recurrent_mem_tr__mixer_token_mlp__prompt'

def setup_inputs():

    _w = lambda a: (lambda t: t.to(torch.bfloat16) if t.is_floating_point() else t)(torch.as_tensor(a))

    def _A_setup():
        B, S, Dm = (1, 2048, 576)
        H, Dh = (32, 128)
        M, seg = (8, 32)
        seg = min(seg, S)
        S = S // seg * seg
        return {'x': _w((lambda *s: torch.randn(*s, dtype=torch.bfloat16) * 0.05)(B, S, Dm)), 'mem0': _w((lambda *s: torch.randn(*s, dtype=torch.bfloat16) * 0.2)(B, M, Dm)), 'Wq': _w((lambda *s: torch.randn(*s, dtype=torch.bfloat16) * 1.6)(Dm, H, Dh) * Dm ** (-0.5)), 'Wk': _w((lambda *s: torch.randn(*s, dtype=torch.bfloat16) * 1.6)(Dm, H, Dh) * Dm ** (-0.5)), 'Wv': _w((lambda *s: torch.randn(*s, dtype=torch.bfloat16) * 0.2)(Dm, H, Dh) * Dm ** (-0.5)), 'Wo': _w((lambda *s: torch.randn(*s, dtype=torch.bfloat16) * 0.2)(H, Dh, Dm) * (H * Dh) ** (-0.5)), 'seg_len': seg}
    _A_in = _A_setup()

    def _B_setup():
        B, S, D, F = (1, 2048, 576, 4608)
        return {'x': _w((lambda *s: torch.randn(*s, dtype=torch.bfloat16) * 0.05)(B, S, D)), 'w1': _w((lambda *s: torch.randn(*s, dtype=torch.bfloat16) * 0.4)(S, F) * S ** (-0.5)), 'b1': _w((lambda *s: torch.randn(*s, dtype=torch.bfloat16) * 3.2)(F) * 0.02), 'w2': _w((lambda *s: torch.randn(*s, dtype=torch.bfloat16) * 0.2)(F, S) * F ** (-0.5)), 'b2': _w((lambda *s: torch.randn(*s, dtype=torch.bfloat16) * 0.4)(S) * 0.02)}
    _B_in = _B_setup()
    return {'A_x': _A_in['x'], 'A_mem0': _A_in['mem0'], 'A_Wq': _A_in['Wq'], 'A_Wk': _A_in['Wk'], 'A_Wv': _A_in['Wv'], 'A_Wo': _A_in['Wo'], 'A_seg_len': _A_in['seg_len'], 'B_x': _B_in['x'], 'B_w1': _B_in['w1'], 'B_b1': _B_in['b1'], 'B_w2': _B_in['w2'], 'B_b2': _B_in['b2']}

def reference(A_x, A_mem0, A_Wq, A_Wk, A_Wv, A_Wo, A_seg_len, B_x, B_w1, B_b1, B_w2, B_b2):

    def _A_ref(x, mem0, Wq, Wk, Wv, Wo, seg_len):
        B, S, Dm = x.shape
        H, Dh = (Wq.shape[1], Wq.shape[2])
        M = mem0.shape[1]
        scale = Dh ** (-0.5)
        n_seg = S // seg_len
        L = M + seg_len
        idx = torch.arange(L)
        mask = (idx[:, None] < M) | (idx[:, None] >= idx[None, :])
        mem = mem0
        outs = []
        for s in range(n_seg):
            xs = x[:, s * seg_len:(s + 1) * seg_len, :].clone()
            h = torch.concatenate([mem, xs], axis=1)
            q = torch.einsum('btd,dhe->bhte', h, Wq)
            k = torch.einsum('btd,dhe->bhte', h, Wk)
            v = torch.einsum('btd,dhe->bhte', h, Wv)
            scores = torch.einsum('bhqe,bhke->bhqk', q, k) * scale
            scores = torch.where(mask[None, None], scores, -1000000000.0)
            p = _softmax(scores, axis=-1)
            o = torch.einsum('bhqk,bhke->bhqe', p, v)
            o = torch.einsum('bhte,hed->btd', o, Wo)
            mem = o[:, :M, :].clone()
            outs.append(o[:, M:, :])
        return torch.concatenate(outs, axis=1)

    def _B_ref(x, w1, b1, w2, b2):
        B, S, D = x.shape
        h = _layernorm(x, axis=-1)
        u = torch.einsum('bsd,sf->bdf', h, w1) + b1
        u = _gelu(u)
        y = torch.einsum('bdf,fs->bds', u, w2) + b2
        return (lambda x, *d: x.permute(*d))(y, 0, 2, 1)
    x = A_x
    xn = _layernorm(x, axis=-1)
    return x + _A_ref(xn, A_mem0, A_Wq, A_Wk, A_Wv, A_Wo, A_seg_len) + _B_ref(xn, B_w1, B_b1, B_w2, B_b2)
```

```python
import re

TRANS = ("v_exp_f32", "v_log_f32", "v_rcp_f32", "v_rsq_f32", "v_sqrt_f32", "v_sin_f32", "v_cos_f32")

def _regs(tok):
    tok = tok.strip()
    neg = tok.startswith("-")
    if neg: tok = tok[1:]
    if tok.startswith("abs(") and tok.endswith(")"): tok = tok[4:-1]
    if tok.startswith("|") and tok.endswith("|"): tok = tok[1:-1]
    m = re.fullmatch(r"([vas])(\d+)", tok)
    if m: return [(m.group(1), int(m.group(2)))]
    m = re.fullmatch(r"([vas])\[(\d+):(\d+)\]", tok)
    if m: return [(m.group(1), i) for i in range(int(m.group(2)), int(m.group(3)) + 1)]
    if tok == "vcc": return [("s", "vcc_lo"), ("s", "vcc_hi")]
    if tok in ("vcc_lo", "vcc_hi"): return [("s", tok)]
    if tok == "exec": return [("s", "exec_lo"), ("s", "exec_hi")]
    if tok in ("exec_lo", "exec_hi"): return [("s", tok)]
    if tok == "m0": return [("s", "m0")]
    return []

def split_ops(rest):
    ops = []; depth = 0; cur = ""
    for ch in rest:
        if ch in "[(": depth += 1
        if ch in "])": depth -= 1
        if ch == "," and depth == 0:
            ops.append(cur.strip()); cur = ""
        else:
            cur += ch
    if cur.strip(): ops.append(cur.strip())
    mods = ""
    if ops:
        last = ops[-1]
        parts = last.split()
        if len(parts) > 1:
            ops[-1] = parts[0]; mods = " ".join(parts[1:])
    return ops, mods

class Ins:
    __slots__ = ("text", "op", "ops", "mods", "kind", "wr", "rd", "passes", "isdpp", "srcC", "srcAB", "nopn", "store_data", "sgpr_rd")
    def __init__(self, text):
        self.text = text
        t = text.split(";")[0].strip()
        sp = t.split(None, 1)
        self.op = sp[0]
        rest = sp[1] if len(sp) > 1 else ""
        self.ops, self.mods = split_ops(rest)
        self.wr = []; self.rd = []; self.passes = 0; self.srcC = []; self.srcAB = []
        self.isdpp = False; self.nopn = 1; self.store_data = []
        op = self.op; ops = self.ops
        R = lambda i: _regs(ops[i]) if i < len(ops) else []
        if op.startswith("v_mfma") or op.startswith("v_smfmac"):
            self.kind = "mfma"
            if "32x32" in op: self.passes = 8
            else: self.passes = 4
            self.wr = R(0)
            self.srcAB = R(1) + R(2)
            if op.startswith("v_smfmac"):
                self.srcC = R(0); self.srcAB += R(3)
            else:
                self.srcC = R(3)
            self.rd = self.srcAB + self.srcC
        elif op.startswith("v_"):
            self.kind = "valu"
            self.isdpp = any(k in self.mods for k in ("quad_perm", "row_", "wave_", "row_bcast")) or op.endswith("_dpp")
            if op.startswith("v_cmp"):
                self.wr = R(0)
                self.rd = sum((R(i) for i in range(1, len(ops))), [])
                if op.startswith("v_cmpx"): self.wr = self.wr + _regs("exec")
            elif op.startswith("v_permlane32_swap") or op.startswith("v_permlane16_swap"):
                self.wr = R(0) + R(1); self.rd = R(0) + R(1)
            elif op.startswith("v_readfirstlane") or op.startswith("v_readlane"):
                self.wr = R(0); self.rd = sum((R(i) for i in range(1, len(ops))), [])
            elif "_co_" in op and not op.startswith("v_addc") and not op.startswith("v_subb"):
                self.wr = R(0) + R(1); self.rd = sum((R(i) for i in range(2, len(ops))), [])
            elif op.startswith("v_addc") or op.startswith("v_subb"):
                self.wr = R(0) + R(1); self.rd = sum((R(i) for i in range(2, len(ops))), [])
            else:
                self.wr = R(0)
                self.rd = sum((R(i) for i in range(1, len(ops))), [])
                if op.startswith("v_fmac") or op.startswith("v_dot2c") or op.startswith("v_pk_fmac") or op.startswith("v_writelane") or self.isdpp:
                    self.rd = self.rd + R(0)
                if op.startswith("v_cndmask") and len(ops) == 3:
                    self.rd = self.rd + _regs("vcc")
        elif op.startswith("buffer_") or op.startswith("global_"):
            self.kind = "vmem"
            isl = "_load" in op; iss = "_store" in op; isa = "atomic" in op
            lds = " lds" in (" " + self.mods) or "load_lds" in op
            if op.startswith("buffer_"):
                if op in ("buffer_inv", "buffer_wbl2"):
                    pass
                elif isl and lds:
                    self.rd = sum((R(i) for i in range(0, len(ops))), []) + _regs("m0")
                elif isl:
                    self.wr = R(0); self.rd = sum((R(i) for i in range(1, len(ops))), [])
                else:
                    self.rd = sum((R(i) for i in range(0, len(ops))), [])
                    self.store_data = R(0)
                    if isa and "sc0" in self.mods: self.wr = R(0)
            else:
                if isl and lds:
                    self.rd = sum((R(i) for i in range(0, len(ops))), []) + _regs("m0")
                elif isl:
                    self.wr = R(0); self.rd = sum((R(i) for i in range(1, len(ops))), [])
                elif isa and "sc0" in self.mods:
                    self.wr = R(0); self.rd = sum((R(i) for i in range(1, len(ops))), [])
                else:
                    self.rd = sum((R(i) for i in range(0, len(ops))), [])
                    self.store_data = R(1)
        elif op.startswith("ds_"):
            self.kind = "ds"
            if op.startswith("ds_read") or op.startswith("ds_bpermute") or op.startswith("ds_swizzle") or op.startswith("ds_permute"):
                self.wr = R(0); self.rd = sum((R(i) for i in range(1, len(ops))), [])
            else:
                self.rd = sum((R(i) for i in range(0, len(ops))), [])
        elif op.startswith("s_"):
            self.kind = "salu"
            if op == "s_nop":
                self.nopn = int(ops[0], 0) + 1
            elif op in ("s_waitcnt", "s_barrier", "s_endpgm", "s_branch", "s_sleep", "s_setprio") or op.startswith("s_cbranch"):
                pass
            elif op.startswith("s_cmp") or op.startswith("s_bitcmp"):
                self.rd = sum((R(i) for i in range(0, len(ops))), [])
            else:
                self.wr = R(0); self.rd = sum((R(i) for i in range(1, len(ops))), [])
                if "saveexec" in op: self.wr = self.wr + _regs("exec"); self.rd += _regs("exec")
        else:
            raise ValueError("unknown instr: " + text)

def _ov(a, b):
    if not a or not b: return False
    sb = set(b)
    return any(x in sb for x in a)

def _vonly(l): return [x for x in l if x[0] in "va"]
def _sonly(l): return [x for x in l if x[0] == "s"]

def need_states(prod, cons):
    n = 0
    pk, ck = prod.kind, cons.kind
    if pk == "valu":
        pw_v = _vonly(prod.wr); pw_s = _sonly(prod.wr)
        if ck == "mfma" and _ov(pw_v, cons.rd): n = max(n, 2)
        if ck == "valu":
            if cons.isdpp and _ov(pw_v, cons.rd): n = max(n, 2)
            if cons.op.startswith("v_permlane") and _ov(pw_v, cons.rd): n = max(n, 2)
            if (cons.op.startswith("v_readlane") or cons.op.startswith("v_readfirstlane")) and _ov(pw_v, cons.rd): n = max(n, 1)
            if prod.op.startswith(TRANS) and not cons.op.startswith(TRANS) and _ov(pw_v, cons.rd): n = max(n, 1)
            if _ov(pw_s, _sonly(cons.rd)): n = max(n, 2)
            if (cons.op.startswith("v_readlane") or cons.op.startswith("v_writelane")) and _ov(pw_s, _sonly(cons.rd)): n = max(n, 4)
            if _ov(pw_s, _regs("exec")):
                if cons.isdpp: n = max(n, 5)
                if cons.op.startswith("v_permlane") or cons.op.startswith("v_read"): n = max(n, 4)
            if ("sdwa" in prod.op or "op_sel" in prod.mods) and (_ov(pw_v, cons.rd) or _ov(pw_v, cons.wr)): n = max(n, 1)
        if prod.op.startswith("v_dot"):
            if ck == "valu" and cons.op == prod.op:
                srcs = cons.rd[:-len(pw_v)] if False else None
                ab = []
                for o in cons.ops[1:3]: ab += _regs(o)
                if _ov(pw_v, ab): n = max(n, 3)
            elif ck in ("valu", "mfma", "vmem", "ds") and (_ov(pw_v, cons.rd) or _ov(pw_v, cons.wr)): n = max(n, 3)
        if ck == "mfma" and _ov(pw_s, _regs("exec")): n = max(n, 4)
        if ck == "vmem" and _ov(pw_s, _sonly(cons.rd)): n = max(n, 5)
        if ck == "salu" and _ov(pw_s, cons.rd): n = max(n, 4)
        if ck == "salu" and cons.op.startswith("s_cbranch_vcc") and _ov(pw_s, _regs("vcc")): n = max(n, 5)
        if ck == "salu" and cons.op.startswith("s_cbranch_exec") and _ov(pw_s, _regs("exec")): n = max(n, 5)
    if pk == "mfma":
        P = prod.passes
        D = prod.wr
        if ck == "mfma":
            if _ov(D, cons.srcC):
                same = (cons.srcC == D and cons.op == prod.op)
                if not same: n = max(n, {4: 6, 8: 10}[P])
            if _ov(D, cons.srcAB): n = max(n, {4: 8, 8: 12}[P])
            if _ov(D, cons.wr) and not _ov(D, cons.srcC): n = max(n, {4: 6, 8: 10}[P])
        elif ck == "valu":
            if _ov(D, cons.rd) or _ov(D, cons.wr): n = max(n, {4: 8, 8: 12}[P])
            if _ov(prod.srcC, cons.wr): n = max(n, {4: 3, 8: 7}[P])
        elif ck in ("vmem", "ds"):
            if _ov(D, cons.rd) or _ov(D, cons.wr): n = max(n, {4: 8, 8: 12}[P])
            if _ov(prod.srcC, cons.wr): n = max(n, {4: 3, 8: 7}[P])
    if pk == "vmem" and prod.store_data and len(prod.store_data) >= 3:
        if _ov(prod.store_data, cons.wr): n = max(n, 2)
    if pk == "salu":
        if _ov(prod.wr, [("s", "m0")]) and ck == "vmem" and _ov([("s", "m0")], cons.rd): n = max(n, 1)
    return n

WINDOW = 14

class Asm:
    def __init__(self):
        self.items = []
        self._uid = 0
    def __call__(self, s):
        for line in s.split("\n"):
            line = line.strip()
            if line: self.items.append(line)
    def label(self, base="L"):
        self._uid += 1
        return f"{base}_{self._uid}"
    def raw(self, s): self.items.append("\x00" + s)

    @staticmethod
    def _is_label(l): return re.fullmatch(r"[\w.$]+:", l) is not None
    @staticmethod
    def _is_ins(l):
        if l.startswith("\x00") or l.startswith(";") or l.startswith("."): return False
        if re.fullmatch(r"[\w.$]+:", l): return False
        return True

    def resolve(self):
        items = list(self.items)
        for _ in range(6):
            parsed = [Ins(l) if self._is_ins(l) else None for l in items]
            labels = {l[:-1]: i for i, l in enumerate(items) if self._is_label(l)}
            inserts = {}
            def window_before(i):
                out = []; d = 0; j = i - 1
                while j >= 0 and d < WINDOW:
                    p = parsed[j]
                    if p is not None:
                        if p.op in ("s_branch", "s_endpgm", "s_setpc_b64"): break
                        out.append((p, d)); d += p.nopn
                    j -= 1
                return out
            def check(win, start, extra_at, linear):
                d0 = 0; j = start
                while j < len(items) and d0 < WINDOW:
                    c = parsed[j]
                    if c is not None:
                        need = 0
                        for p, d in win:
                            k = need_states(p, c) - (d + d0)
                            need = max(need, k)
                        if need > 0:
                            at = extra_at if extra_at is not None else j
                            inserts[at] = max(inserts.get(at, 0), need)
                            return
                        if linear: return
                        if c.op in ("s_branch", "s_endpgm"): return
                        d0 += c.nopn
                    j += 1
            for i, c in enumerate(parsed):
                if c is None: continue
                check(window_before(i), i, None, True)
                if c.op == "s_branch" or c.op.startswith("s_cbranch"):
                    tgt = labels.get(c.ops[0])
                    if tgt is not None:
                        win = [(p, d + 1) for p, d in window_before(i)]
                        check(win, tgt, i, False)
            if not inserts: break
            new = []
            for i, l in enumerate(items):
                if i in inserts:
                    n = inserts[i]
                    while n > 0:
                        k = min(n, 16); new.append(f"s_nop {k-1}"); n -= k
                new.append(l)
            items = new
        else:
            raise RuntimeError("hazard resolution did not converge")
        return items

    def text(self):
        out = []
        for l in self.resolve():
            if l.startswith("\x00"): out.append(l[1:])
            elif self._is_label(l) or l.startswith("."): out.append(l)
            else: out.append("  " + l)
        return "\n".join(out) + "\n"

class Cnt:
    def __init__(self, a, name, maxn):
        self.a = a; self.name = name; self.maxn = maxn; self.q = []
    def issue(self, tag, text):
        self.a(text); self.q.append(tag)
        assert len(self.q) <= self.maxn, f"{self.name} counter overflow: {self.q}"
    def wait(self, *tags):
        idx = [i for i, t in enumerate(self.q) if t in tags]
        if not idx: return
        last = max(idx)
        n = len(self.q) - 1 - last
        self.a(f"s_waitcnt {self.name}({n})")
        self.q = self.q[last + 1:]
    def wait_all(self):
        self.a(f"s_waitcnt {self.name}(0)"); self.q = []
    def assume_empty(self): self.q = []
```

```python
from layout import *
from common import *
from asmlib import Cnt
import struct

SRD_H1, SRD_H2, SRD_KV, SRD_KM, SRD_FL = 8, 12, 16, 20, 24
SRD_W = {'q': 36, 'k': 40, 'v': 44, 'o': 48}
SRD_T = 52
sH, sSTEP, sT = 32, 33, 35
sKX, sKMO, sH1B, sRH1, sRH2, sRED, sH1S, sWB = 56, 57, 58, 59, 60, 61, 62, 63
sT2, sT3, sSLOW = 98, 99, 97
sR = [36, 37, 38, 39]
sH1P = [40, 41, 42, 43]
sOW = 44
sCS = 46
sG = [48, 49, 50]
sFLN = 51
sWARM = 45
sSTAMP = 4

vT0, vIDX, vF, vL16, vSW, vSWm, vL4b, vW, vRD, vH2, vT1 = 0, 1, 2, 4, 5, 6, 7, 8, 9, 10, 11
A_BUF = [12, 16, 20]
ACCQ, ACCK, ACCV = 24, 32, 40
STG = [48, 56]
KX, VX = 64, 72
WV0 = 80

def tile_reg(i):
    if i < 32: return f"a[{8*i}:{8*i+7}]", ('a', 8 * i)
    b = WV0 + 8 * (i - 32)
    return f"v[{b}:{b+7}]", ('v', b)

REG_TILE = {}
for ci, c in enumerate(REG_CHUNKS):
    for tt in range(2):
        REG_TILE[(c, tt)] = 2 * ci + tt
LDS_SLOT = {c: i for i, c in enumerate(LDS_CHUNKS)}

def stamp_txt(cfg, name):
    st = cfg.get('stamps')
    if st and name in st:
        i = st.index(name)
        if name.startswith("cnt_"): return f"s_mov_b32 s{STAMP_REGS[i]}, s{S_TO}"
        return f"s_memtime s[{STAMP_REGS[i]}:{STAMP_REGS[i]+1}]"
    return ""
STAMP_REGS = [4, 6, 52, 54, 76, 78, 80, 82, 84, 86]

def stamp(a, cfg, name):
    t = stamp_txt(cfg, name)
    if t: a(t)

def dump_stamps(a, cfg):
    if not cfg.get('stamps'): return ""
    L = a.label("CH_DS")
    if cfg.get('stamp_all'):
        t = [f"s_cmp_eq_u32 s{sSTEP}, {cfg.get('stamp_step', 32)}", f"s_cbranch_scc0 {L}",
             f"s_cmp_lt_u32 s{S_WAVE}, 2", f"s_cbranch_scc0 {L}",
             "s_waitcnt lgkmcnt(0)", f"s_mul_i32 s{sT}, s{S_WAVE}, 40", f"s_mul_i32 s{sT2}, s{sH}, 80", f"s_add_u32 s{sT}, s{sT}, s{sT2}",
             f"s_add_u32 s{sT}, s{sT}, {FL_G3}", "s_mov_b64 exec, 1"]
        for i in range(len(cfg['stamps'])):
            t += [f"v_mov_b32 v12, s{STAMP_REGS[i]}", f"v_mov_b32 v13, {4*i}",
                  f"buffer_store_dword v12, v13, s[{SRD_FL}:{SRD_FL+3}], s{sT} offen"]
        t += ["s_mov_b64 exec, -1", f"{L}:"]
        return "\n".join(t)
    t = [f"s_cmp_eq_u32 s{sSTEP}, {cfg.get('stamp_step', 32)}", f"s_cbranch_scc0 {L}",
         f"s_cmp_eq_u32 s{sH}, {cfg.get('stamp_h', 0)}", f"s_cbranch_scc0 {L}",
         "s_waitcnt lgkmcnt(0)", f"s_mul_i32 s{sT}, s{S_WAVE}, 40", f"s_add_u32 s{sT}, s{sT}, 96", "s_mov_b64 exec, 1"]
    for i in range(len(cfg['stamps'])):
        t += [f"s_sub_u32 s{sT2}, s{STAMP_REGS[i]}, s{STAMP_REGS[0]}", f"v_mov_b32 v12, s{sT2}", f"v_mov_b32 v13, {4*i}",
              f"buffer_store_dword v12, v13, s[{SRD_DBG}:{SRD_DBG+3}], s{sT} offen"]
    t += ["s_mov_b64 exec, -1", f"{L}:"]
    return "\n".join(t)

def emit_chain_setup(a, cfg):
    a(f"s_mov_b32 s{sH}, s{S_ROLE}")
    srd(a, SRD_H1, S_WS, WS_H1, H1_SIZE)
    srd(a, SRD_H2, S_WS, WS_H2, H2_SIZE)
    srd(a, SRD_KV, S_WS, WS_KX, 2 * QKV_SIZE)
    srd(a, SRD_KM, S_WS, WS_KM, KM_SIZE)
    srd(a, SRD_FL, S_WS, WS_FLAGS, FLAGS_SIZE)
    wsz = DM * H * DH * 2
    srd(a, SRD_W['q'], S_WQ, 0, wsz)
    srd(a, SRD_W['k'], S_WK, 0, wsz)
    srd(a, SRD_W['v'], S_WV, 0, wsz)
    srd(a, SRD_W['o'], S_WO, 0, wsz)
    srd(a, SRD_T, S_MEM0, 0, M * DM * 2)
    w = S_WAVE
    a(f"""
    v_lshlrev_b32 v{vL16}, 4, v0
    v_lshlrev_b32 v{vL4b}, 2, v0
    v_mov_b32 v12, 0
    v_mov_b32 v13, 0
    v_mov_b32 v14, 0
    v_mov_b32 v15, 0
    v_and_b32 v16, 31, v0
    v_lshlrev_b32 v16, 4, v16
    v_lshrrev_b32 v17, 5, v0
    v_lshlrev_b32 v17, 14, v17          ; (lane>>5)*16384
    v_add_u32 v16, v16, v17
    s_lshl_b32 s{sT}, s{sH}, 9
    s_lshl_b32 s{sT2}, s{w}, 15         ; w*2*16384
    s_add_u32 s{sT}, s{sT}, s{sT2}
    """)
    for i in range(3):
        if i == 2:
            a(f"s_cmp_eq_u32 s{w}, 0")
            a("s_cbranch_scc0 CH_INIT_H1_DONE")
        a(f"buffer_store_dwordx4 v[12:15], v16, s[{SRD_H1}:{SRD_H1+3}], s{sT} offen sc1")
        a(f"s_add_u32 s{sT}, s{sT}, {4*2*16384}")
    a("CH_INIT_H1_DONE:")
    a(f"""
    s_cmp_eq_u32 s{w}, 0
    s_cbranch_scc0 CH_INIT_W1
    s_mul_i32 s{sT}, s{sH}, 288
    s_mov_b32 exec_lo, 0x3ffff
    s_mov_b32 exec_hi, 0
    buffer_store_dwordx4 v[12:15], v{vL16}, s[{SRD_H2}:{SRD_H2+3}], s{sT} offen sc1
    s_mov_b64 exec, -1
    s_branch CH_INIT_DONE
    CH_INIT_W1:
    s_lshl_b32 s{sT}, s{sH}, 8
    s_cmp_eq_u32 s{w}, 3
    s_cbranch_scc1 CH_INIT_W3
    s_cmp_eq_u32 s{w}, 2
    s_cselect_b32 s{sT2}, {FL_KM}, {FL_KV}
    s_add_u32 s{sT}, s{sT}, s{sT2}
    buffer_store_dword v12, v{vL4b}, s[{SRD_FL}:{SRD_FL+3}], s{sT} offen sc1
    s_branch CH_INIT_DONE
    CH_INIT_W3:
    s_lshl_b32 s{sT}, s{sH}, 7
    s_add_u32 s{sT}, s{sT}, {FL_G3}
    s_mov_b32 exec_hi, 0
    buffer_store_dword v12, v{vL4b}, s[{SRD_FL}:{SRD_FL+3}], s{sT} offen sc1
    s_mov_b64 exec, -1
    CH_INIT_DONE:
    """)

def emit_dma_issue(a, c, slot, regs):
    m, i = c
    sB, sM0 = regs['sQB'] if m != 'o' else regs['sOB'], regs['sM0']
    for nl in range(4):
        if m != 'o':
            off = i * 524288 + nl * 32768
            vo = regs['vDQ'][nl >> 1]
        else:
            off = i * 128 + nl * 8 * 1152
            vo = regs['vDO'][nl >> 1]
        a(f"s_add_u32 m0, s{sM0}, {slot*16384 + nl*1024}")
        a(f"s_add_u32 s{sT}, s{sB}, {off}")
        a(f"buffer_load_dwordx4 v{vo}, s[{SRD_W[m]}:{SRD_W[m]+3}], s{sT} offen lds")

def emit_chain_weights(a, cfg):
    w = S_WAVE
    vDQ = [12, 13]; vDO = [14, 15]; vTQ = [16, 17]; vTO = 18; vX = 19; vY = 20; vC = 21; vG = 22; vR = 23
    regs = dict(sQB=sT2, sOB=sT3, sM0=100, vDQ=vDQ, vDO=vDO)
    a(f"""
    v_lshrrev_b32 v{vG}, 4, v0
    v_and_b32 v{vC}, 15, v0
    v_lshlrev_b32 v{vX}, 1, v{vG}
    v_xor_b32 v{vX}, v{vX}, v{vC}
    v_lshlrev_b32 v{vY}, 13, v{vG}
    v_lshl_add_u32 v{vDQ[0]}, v{vX}, 4, v{vY}
    v_xor_b32 v{vX}, 8, v{vX}
    v_lshl_add_u32 v{vDQ[1]}, v{vX}, 4, v{vY}
    v_lshrrev_b32 v{vX}, 3, v0
    v_mul_u32_u24 v{vY}, 1152, v{vX}
    v_and_b32 v{vX}, 7, v0
    s_lshl_b32 s{sT}, s{w}, 1
    s_and_b32 s{sT}, s{sT}, 3
    s_lshl_b32 s{sT}, s{sT}, 1
    v_xor_b32 v{vR}, s{sT}, v{vX}
    v_lshl_add_u32 v{vDO[0]}, v{vR}, 4, v{vY}
    s_lshl_b32 s{sT}, s{w}, 1
    s_add_u32 s{sT}, s{sT}, 1
    s_and_b32 s{sT}, s{sT}, 3
    s_lshl_b32 s{sT}, s{sT}, 1
    v_xor_b32 v{vR}, s{sT}, v{vX}
    v_lshl_add_u32 v{vDO[1]}, v{vR}, 4, v{vY}
    s_lshl_b32 s{sT2}, s{sH}, 8
    s_lshl_b32 s{sT}, s{w}, 17
    s_add_u32 s{sT2}, s{sT2}, s{sT}
    s_lshl_b32 s{sT3}, s{sH}, 7
    s_lshl_b32 s{sT}, s{w}, 5
    s_add_u32 s{sT3}, s{sT3}, s{sT}
    s_mul_i32 s{sT3}, s{sT3}, 1152
    s_lshl_b32 s100, s{w}, 12
    s_add_u32 s100, s100, {L_W}
    """)
    order = REG_CHUNKS + LDS_CHUNKS
    for c in range(9):
        emit_dma_issue(a, order[c], c, regs)
    a(f"""
    v_lshrrev_b32 v{vR}, 2, v{vC}
    v_and_b32 v{vX}, 1, v{vR}
    v_lshlrev_b32 v{vX}, 1, v{vX}
    v_and_b32 v{vY}, 1, v{vG}
    v_or_b32 v{vX}, v{vX}, v{vY}
    v_lshrrev_b32 v{vY}, 1, v{vR}
    v_lshl_or_b32 v24, v{vY}, 2, v{vX}
    v_lshl_or_b32 v25, v{vY}, 3, v{vX}
    v_lshrrev_b32 v26, 1, v{vG}
    v_lshl_or_b32 v25, v26, 4, v25
    v_lshlrev_b32 v25, 8, v25
    v_and_b32 v26, 3, v0
    v_lshlrev_b32 v26, 3, v26
    v_add_u32 v25, v25, v26
    s_lshl_b32 s{sT}, s{w}, 1
    v_xor_b32 v27, s{sT}, v24
    v_lshl_add_u32 v{vTQ[0]}, v27, 5, v25
    v_xor_b32 v27, 1, v27
    v_lshl_add_u32 v{vTQ[1]}, v27, 5, v25
    v_and_b32 v24, 1, v{vG}
    v_lshlrev_b32 v25, 5, v24
    v_lshl_or_b32 v25, v{vY}, 4, v25
    v_lshrrev_b32 v27, 1, v{vG}
    v_lshl_or_b32 v25, v27, 2, v25
    v_and_b32 v27, 1, v{vR}
    v_or_b32 v25, v25, v27
    v_lshlrev_b32 v25, 7, v25
    v_add_u32 v25, v25, v26
    v_lshl_or_b32 v24, v24, 1, v{vY}
    v_xor_b32 v24, s{w}, v24
    v_lshl_add_u32 v{vTO}, v24, 5, v25
    """)
    vA0, vA1 = 24, 25
    for ci, c in enumerate(order):
        m, i = c
        slot = ci % 9
        a(f"s_waitcnt vmcnt({4*min(8 if ci==0 else 7, len(order)-1-ci)})")
        a("s_barrier")
        if ci == 0:
            a(f"""
            s_cmp_eq_u32 s{w}, 0
            s_cbranch_scc0 CH_CINIT_SKIP
            s_mov_b64 exec, 1
            v_mov_b32 v26, 1
            v_mov_b32 v27, {DBG_CINIT}
            buffer_atomic_add v26, v27, s[{SRD_DBG}:{SRD_DBG+3}], 0 offen
            s_mov_b64 exec, -1
            CH_CINIT_SKIP:
            """)
        if ci >= 1 and ci + 8 < len(order):
            emit_dma_issue(a, order[ci + 8], (ci + 8) % 9, regs)
        base = L_W + slot * 16384
        a(f"s_mov_b32 s{sT}, {base}")
        if m != 'o':
            a(f"v_add_u32 v{vA0}, s{sT}, v{vTQ[0]}")
            a(f"v_add_u32 v{vA1}, s{sT}, v{vTQ[1]}")
        else:
            a(f"v_add_u32 v{vA0}, s{sT}, v{vTO}")
        for tt in range(2):
            if c in LDS_SLOT:
                kind, rb = 'v', STG[tt]
            else:
                kind, rb = tile_reg(REG_TILE[(c, tt)])[1]
            for p in range(4):
                if m != 'o':
                    off = (32 * (p >> 1) + 4 * (p & 1)) * 256; va = (vA0, vA1)[tt]
                else:
                    off = (8 * (p >> 1) + 2 * (p & 1) + 64 * tt) * 128; va = vA0
                a(f"ds_read_b64_tr_b16 {kind}[{rb+2*p}:{rb+2*p+1}], v{va} offset:{off}")
        a("s_waitcnt lgkmcnt(0)")
        if c in LDS_SLOT:
            assert LDS_SLOT[c] == slot
            a("s_barrier")
            a(f"s_lshl_b32 s{sT}, s{w}, 12")
            a(f"s_add_u32 s{sT}, s{sT}, {base}")
            a(f"v_add_u32 v{vA0}, s{sT}, v{vL16}")
            for tt in range(2):
                for hf in range(2):
                    rb = STG[tt] + 4 * hf
                    a(f"ds_write_b128 v{vA0}, v[{rb}:{rb+3}] offset:{tt*2048 + hf*1024}")
            a("s_waitcnt lgkmcnt(0)")

def emit_chain_consts(a, cfg):
    w = S_WAVE
    cs = 128 ** -0.5 * 1.4426950408889634
    csb = struct.unpack("<I", struct.pack("<f", cs))[0]
    a(f"""
    v_and_b32 v12, 2, v0
    v_mov_b32 v13, 0x4444
    v_mov_b32 v14, 0xeeee
    v_cmp_eq_u32 vcc, 2, v12
    v_cndmask_b32 v{vIDX}, v13, v14, vcc
    v_and_b32 v12, 15, v0
    v_lshrrev_b32 v13, 2, v12
    v_lshlrev_b32 v13, 1, v13
    v_and_b32 v12, 1, v12
    v_or_b32 v12, v12, v13               ; token(n)
    v_lshrrev_b32 v13, 4, v0
    v_lshlrev_b32 v13, 1, v13            ; 2G
    v_sub_u32 v12, v12, v13
    v_mov_b32 v13, 0
    v_mov_b32 v14, 0x3f80
    v_cmp_eq_u32 vcc, 0, v12
    v_cndmask_b32 v13, v13, v14, vcc
    v_mov_b32 v14, 0x3f800000
    v_cmp_eq_u32 vcc, 1, v12
    v_cndmask_b32 v{vF}, v13, v14, vcc
    v_mov_b32 v{vF+1}, v{vF}
    s_lshl_b32 s{sT}, s{w}, 12
    s_add_u32 s{sT}, s{sT}, {L_W}
    v_add_u32 v{vW}, s{sT}, v{vL16}
    v_and_b32 v12, 0xffffffdf, v{vL16}          ; lane*16 & ~32
    s_lshl_b32 s{sT}, s{w}, 10
    s_add_u32 s{sT}, s{sT}, {L_S}
    v_add_u32 v{vSW}, s{sT}, v12
    v_and_b32 v12, 0xfffffff7, v{vL4b}          ; lane*4 & ~8
    s_lshl_b32 s{sT}, s{w}, 8
    s_add_u32 s{sT}, s{sT}, {L_S + 4096}
    v_add_u32 v{vSWm}, s{sT}, v12
    v_add_u32 v{vL4b}, {L_S + 4096}, v{vL4b}
    v_lshrrev_b32 v12, 4, v0
    v_and_b32 v13, 15, v0
    v_lshlrev_b32 v13, 4, v13
    v_lshl_add_u32 v{vRD}, v12, 9, v13
    s_lshl_b32 s{sKX}, s{sH}, 13
    s_lshl_b32 s{sT}, s{w}, 11
    s_add_u32 s{sKX}, s{sKX}, s{sT}
    s_lshl_b32 s{sKMO}, s{sH}, 13
    s_lshl_b32 s{sT}, s{w}, 10
    s_add_u32 s{sKMO}, s{sKMO}, s{sT}
    s_lshl_b32 s{sH1B}, s{w}, 16
    s_lshl_b32 s{sT}, s{sH}, 9
    s_add_u32 s{sH1B}, s{sH1B}, s{sT}
    s_lshr_b32 s{sH1S}, s{w}, 1
    s_add_u32 s{sH1S}, s{sH1S}, 16
    s_lshl_b32 s{sH1S}, s{sH1S}, 14
    s_add_u32 s{sH1S}, s{sH1S}, s{sT}
    s_and_b32 s{sT}, s{w}, 1
    s_lshl_b32 s{sT}, s{sT}, 2
    s_add_u32 s{sH1S}, s{sH1S}, s{sT}
    s_mov_b32 s{sRED}, 0
    s_mov_b32 s{sRH1}, 0
    s_mov_b32 s{sRH2}, 0
    s_mov_b32 s{sWB}, 0
    s_mov_b32 s{sT}, s{sH}
    s_cmp_eq_u32 s{w}, 0
    s_cbranch_scc1 CH_RED_YES
    s_cmp_eq_u32 s{w}, 1
    s_cbranch_scc0 CH_RED_NO
    s_and_b32 s{sT2}, s{sH}, 7
    s_cmp_eq_u32 s{sT2}, 0
    s_cbranch_scc0 CH_RED_NO
    s_lshr_b32 s{sT}, s{sH}, 3
    s_add_u32 s{sT}, s{sT}, 32
    CH_RED_YES:
    s_mov_b32 s{sRED}, 1
    s_lshr_b32 s{sT2}, s{sT}, 1
    s_and_b32 s{sT}, s{sT}, 1
    s_lshl_b32 s{sRH1}, s{sT2}, 14
    s_lshl_b32 s{sT3}, s{sT}, 8
    s_add_u32 s{sRH1}, s{sRH1}, s{sT3}
    s_cmp_lt_u32 s{sT2}, 16
    s_cbranch_scc0 CH_RED_HI
    s_and_b32 s{sT3}, s{sT2}, 3
    s_lshl_b32 s{sT3}, s{sT3}, 3
    s_lshr_b32 s{sT2}, s{sT2}, 2
    s_add_u32 s{sT3}, s{sT3}, s{sT2}
    s_mov_b32 s{sWB}, 1024
    s_branch CH_RED_AB
    CH_RED_HI:
    s_sub_u32 s{sT3}, s{sT2}, 16
    s_lshl_b32 s{sT3}, s{sT3}, 1
    s_add_u32 s{sT3}, s{sT3}, 32
    s_mov_b32 s{sWB}, 256
    CH_RED_AB:
    s_lshl_b32 s{sRH2}, s{sT3}, 8
    s_lshl_b32 s{sT}, s{sT}, 7
    s_add_u32 s{sRH2}, s{sRH2}, s{sT}
    CH_RED_NO:
    v_and_b32 v12, 15, v0
    v_lshrrev_b32 v13, 4, v0
    v_lshlrev_b32 v13, 5, v13
    v_and_b32 v14, 1, v12
    v_lshl_or_b32 v13, v14, 4, v13
    v_bfe_u32 v14, v12, 2, 1
    v_lshl_or_b32 v13, v14, 3, v13
    v_bfe_u32 v14, v12, 1, 1
    v_mul_lo_u32 v14, v14, s{sWB}
    v_add_u32 v{vH2}, v13, v14
    """)
    a(f"""
    s_cmp_lt_u32 s{w}, 2
    s_cbranch_scc1 CH_W23_DONE
    v_lshlrev_b32 v{vH2}, 7, v0
    v_mov_b32 v{vRD}, 0
    s_cmp_eq_u32 s{w}, 2
    s_cbranch_scc1 CH_W23_DONE
    v_mov_b32 v{vH2}, 0
    CH_W23_DONE:
    """)
    for i in range(4):
        a(f"s_add_u32 s{sR[i]}, s{sRH1}, {i*4096}")
        a(f"s_add_u32 s{sH1P[i]}, s{sH1B}, {i*16384}")
    a(f"""
    s_lshr_b32 s{sOW}, s{w}, 1
    s_lshl_b32 s{sOW}, s{sOW}, 10
    s_and_b32 s{sT}, s{w}, 1
    s_lshl_b32 s{sT}, s{sT}, 3
    s_add_u32 s{sOW}, s{sOW}, s{sT}
    s_add_u32 s{sOW}, s{sOW}, {L_O}
    s_mov_b32 s{sCS}, {csb:#x}
    s_mov_b32 s{sCS+1}, {csb:#x}
    s_lshl_b32 s{sWARM}, s{sH}, 13
    s_add_u32 s{sWARM}, s{sWARM}, 262144
    s_lshl_b32 s{sG[0]}, s{w}, 10
    s_add_u32 s{sG[1]}, s{sG[0]}, 4096
    s_mov_b32 s{sG[2]}, 8192
    """)
    srdm = f"s[{SRD_T}:{SRD_T+3}]"
    a(f"""
    v_and_b32 v12, 15, v0
    v_lshrrev_b32 v13, 2, v12
    v_lshlrev_b32 v13, 1, v13
    v_and_b32 v14, 1, v12
    v_or_b32 v13, v13, v14
    v_mul_u32_u24 v13, 1152, v13
    v_bfe_u32 v12, v12, 1, 1
    v_lshl_add_u32 v13, v12, 4, v13
    v_lshrrev_b32 v12, 4, v0
    v_lshl_add_u32 v13, v12, 5, v13
    s_mov_b32 s4, 0x05040100
    s_mov_b32 s5, 0x07060302
    """)
    for i in range(3):
        if i == 2:
            a(f"s_cmp_eq_u32 s{w}, 0")
            a("s_cbranch_scc0 CH_M0_DONE")
        a(f"""
        s_add_u32 s{sT}, s{w}, {4*i}
        s_lshl_b32 s{sT2}, s{sT}, 7
        buffer_load_dwordx4 v[16:19], v13, {srdm}, s{sT2} offen
        s_lshl_b32 s{sT2}, s{sT}, 10
        v_add_u32 v14, s{sT2}, v{vL16}
        s_waitcnt vmcnt(0)
        v_perm_b32 v20, v17, v16, s4
        v_perm_b32 v21, v19, v18, s4
        v_perm_b32 v22, v17, v16, s5
        v_perm_b32 v23, v19, v18, s5
        ds_write_b128 v14, v[20:23] offset:{L_MEM}
        """)
    a("CH_M0_DONE:")
    a("s_waitcnt lgkmcnt(0)")

def lds_tile_ops(c, tt, dst, vtmp):
    off = LDS_SLOT[c] * 16384 + tt * 2048
    hi = off >> 15 << 15
    lo = off - hi
    pre = []
    va = vW
    if hi:
        pre = [f"v_add_u32 v{vtmp}, {hi}, v{vW}"]; va = vtmp
    return pre, [f"ds_read_b128 v[{dst}:{dst+3}], v{va} offset:{lo}", f"ds_read_b128 v[{dst+4}:{dst+7}], v{va} offset:{lo+1024}"]

def smf(acc, abuf, wt):
    return f"v_smfmac_f32_16x16x64_bf16 v[{acc}:{acc+3}], v[{abuf}:{abuf+3}], {wt}, v{vIDX}"

def rt(c, tt): return tile_reg(REG_TILE[(c, tt)])[0]
def vt(b): return f"v[{b}:{b+7}]"

def zero(a, regs):
    regs = list(regs)
    for i in range(0, len(regs), 2):
        assert regs[i] % 2 == 0 and regs[i + 1] == regs[i] + 1
        a(f"v_mov_b64 v[{regs[i]}:{regs[i]+1}], 0")

def preload_next(a, lg):
    for (c, tt, dst) in ((('k', 0), 0, STG[0]), (('k', 0), 1, STG[1]), (('k', 2), 0, VX)):
        pre, ops = lds_tile_ops(c, tt, dst, vT0)
        for p in pre: a(p)
        for i, o in enumerate(ops): lg.issue(('pre', dst, i), o)
    zero(a, range(ACCQ, ACCV + 8))

def emit_step(a, cfg, slow, par, sfx, nxt):
    w = S_WAVE
    st = "sc1" if slow else ""
    FAIL = "CH_FAIL"
    lg = Cnt(a, "lgkmcnt", 15); vm = Cnt(a, "vmcnt", 63)
    DPPX = "quad_perm:[2,3,0,1] row_mask:0xf bank_mask:0xf"
    a(f"CH_STEP{sfx}:")
    stamp(a, cfg, 'top')
    tagop = (lambda r: f"v_or_b32 v{r}, 1, v{r}") if par else (lambda r: f"v_and_b32 v{r}, -2, v{r}")
    if cfg.get('nocompute'):
        for _ in range(cfg.get('delay', 0)): a("s_nop 15")
        a(f"v_lshrrev_b32 v{vT1}, 1, v{vL16}")
        a(f"v_mov_b32 v24, {par}")
        a(f"v_mov_b32 v25, {par}")
        for pi in range(4):
            a(f"buffer_store_dwordx2 v[24:25], v{vT1}, s[{SRD_H1}:{SRD_H1+3}], s{sH1P[pi]} offen {st}")
        a(f"buffer_store_dword v24, v{vT1}, s[{SRD_H1}:{SRD_H1+3}], s{sH1S} offen {st}")
    else:
        def aread(kt, buf):
            lg.issue(('A', kt), f"ds_read_b128 v[{A_BUF[buf]}:{A_BUF[buf]+3}], v{vL16} offset:{L_MEM + kt*1024}")
        aread(0, 0); aread(1, 1); aread(2, 2)
        a(f"s_lshl_b32 s{sT}, s{sSTEP}, 18")
        a(f"s_add_u32 s{sT}, s{sT}, s{sKX}")
        vm.issue('KX', f"buffer_load_dwordx4 v[{KX}:{KX+3}], v{vL16}, s[{SRD_KV}:{SRD_KV+3}], s{sT} offen sc1")
        vm.issue('KX', f"buffer_load_dwordx4 v[{KX+4}:{KX+7}], v{vL16}, s[{SRD_KV}:{SRD_KV+3}], s{sT} offen offset:1024 sc1")
        a(f"s_add_u32 s{sT2}, s{sT}, {QKV_SIZE}")
        L = a.label("CH_FK")
        a(f"s_cmp_eq_u32 s{w}, 3")
        a(f"s_cbranch_scc0 {L}")
        a(f"s_cmp_ge_u32 s{sSTEP}, {cfg.get('nsteps', 64) - 1}")
        a(f"s_cbranch_scc1 {L}")
        a(f"v_readfirstlane_b32 s3, v{vRD}")
        a(f"s_cmp_eq_u32 s3, 1")
        a(f"s_cbranch_scc1 {L}")
        a(f"v_mov_b32 v{vT1}, s{sFLN}")
        poll_dword_eq(a, SRD_FL, vT1, vT0, 1, FAIL, "CH_FKV" + sfx, sleep=1)
        vm.assume_empty(); vm.q = ['KX', 'KX']
        a(f"{L}:")
        S0, S1, S2 = STG[0], STG[1], VX
        slot = {(0, 0): S0, (0, 1): S1, (2, 0): S2, (2, 1): S0, (4, 0): S1, (4, 1): S2, (6, 0): S0, (6, 1): S1, (8, 0): S0, (8, 1): S1}
        refill = {(0, 0): (2, 1), (0, 1): (4, 0), (2, 0): (4, 1), (2, 1): (6, 0), (4, 0): (6, 1), (6, 0): (8, 0), (6, 1): (8, 1)}
        pending = []
        def drain(n=1):
            for _ in range(n):
                if pending:
                    kind, tag, txt = pending.pop(0)
                    if kind == 'v': a(txt)
                    else: lg.issue(tag, txt)
        for kt in range(9):
            ab = A_BUF[kt % 3]
            lg.wait(('A', kt))
            kc = ('k', kt)
            a(smf(ACCQ, ab, rt(('q', kt), 0))); drain()
            a(smf(ACCQ + 4, ab, rt(('q', kt), 1))); drain()
            for tt in range(2):
                if (kt, tt) in slot:
                    while any(k == 'l' and t[:3] == ('K', kt, tt) for k, t, _ in pending): drain()
                    lg.wait(('K', kt, tt, 0), ('K', kt, tt, 1))
                    a(smf(ACCK + 4 * tt, ab, vt(slot[(kt, tt)])))
                    if (kt, tt) in refill:
                        nk, nt = refill[(kt, tt)]
                        pre, ops = lds_tile_ops(('k', nk), nt, slot[(nk, nt)], (vT0, vT1)[nt])
                        for p in pre: pending.append(('v', None, p))
                        for i, o in enumerate(ops): pending.append(('l', ('K', nk, nt, i), o))
                else:
                    a(smf(ACCK + 4 * tt, ab, rt(kc, tt)))
                drain()
            if kt + 3 < 9: aread(kt + 3, kt % 3)
            else: lg.issue(('AV', kt + 3 - 9), f"ds_read_b128 v[{ab}:{ab+3}], v{vL16} offset:{L_MEM + (kt+3-9)*1024}")
            if kt == 3: stamp(a, cfg, 'p1a')
            if kt == 4:
                vm.issue('VX', f"buffer_load_dwordx4 v[{VX}:{VX+3}], v{vL16}, s[{SRD_KV}:{SRD_KV+3}], s{sT2} offen sc1")
                vm.issue('VX', f"buffer_load_dwordx4 v[{VX+4}:{VX+7}], v{vL16}, s[{SRD_KV}:{SRD_KV+3}], s{sT2} offen offset:1024 sc1")
                FLL = a.label("CH_FLL")
                a(f"s_add_u32 s{sFLN}, s{sFLN}, 4")
                a(f"s_cmp_eq_u32 s{w}, 3")
                a(f"s_cbranch_scc0 {FLL}")
                a(f"buffer_load_dword v{vRD}, v{vH2}, s[{SRD_FL}:{SRD_FL+3}], s{sFLN} offen sc1")
                a(f"{FLL}:")
        assert not pending
        stamp(a, cfg, 'p1')
        vstate = {'kt': 0, 'tt': 0}
        def V(n):
            for _ in range(n):
                kt, tt = vstate['kt'], vstate['tt']
                if kt >= 9: return
                ab = A_BUF[kt % 3]
                if tt == 0: lg.wait(('AV', kt))
                a(smf(ACCV + 4 * tt, ab, rt(('v', kt), tt)))
                if tt == 1:
                    if kt + 3 < 9:
                        lg.issue(('AV', kt + 3), f"ds_read_b128 v[{ab}:{ab+3}], v{vL16} offset:{L_MEM + (kt+3)*1024}")
                    vstate['kt'] += 1; vstate['tt'] = 0
                else:
                    vstate['tt'] = 1
        V(2)
        a(f"""
        v_cvt_pk_bf16_f32 v24, v24, v25
        v_cvt_pk_bf16_f32 v25, v26, v27
        v_cvt_pk_bf16_f32 v26, v28, v29
        v_cvt_pk_bf16_f32 v27, v30, v31
        v_mfma_f32_16x16x16_bf16 v[28:31], v[24:25], v[{vF}:{vF+1}], 0
        v_cvt_pk_bf16_f32 v32, v32, v33
        v_cvt_pk_bf16_f32 v33, v34, v35
        v_cvt_pk_bf16_f32 v34, v36, v37
        v_cvt_pk_bf16_f32 v35, v38, v39
        v_mfma_f32_16x16x16_bf16 v[36:39], v[26:27], v[{vF}:{vF+1}], 0
        v_mfma_f32_16x16x16_bf16 v[48:51], v[32:33], v[{vF}:{vF+1}], 0
        v_mfma_f32_16x16x16_bf16 v[52:55], v[34:35], v[{vF}:{vF+1}], 0
        """)
        V(1)
        a(f"""
        v_cvt_pk_bf16_f32 v24, v28, v29
        v_cvt_pk_bf16_f32 v25, v30, v31
        v_cvt_pk_bf16_f32 v26, v36, v37
        v_cvt_pk_bf16_f32 v27, v38, v39
        """)
        vm.wait('KX')
        a(f"""
        v_mfma_f32_16x16x32_bf16 v[28:31], v[{KX}:{KX+3}], v[24:27], 0
        v_cvt_pk_bf16_f32 v32, v48, v49
        v_cvt_pk_bf16_f32 v33, v50, v51
        v_mfma_f32_16x16x32_bf16 v[36:39], v[{KX+4}:{KX+7}], v[24:27], 0
        v_cvt_pk_bf16_f32 v34, v52, v53
        v_cvt_pk_bf16_f32 v35, v54, v55
        s_lshl_b32 s{sT}, s{sSTEP}, 18
        s_add_u32 s{sT}, s{sT}, s{sKMO}
        v_mfma_f32_16x16x32_bf16 v[48:51], v[32:35], v[24:27], 0
        """)
        vm.issue('KM', f"buffer_store_dwordx4 v[32:35], v{vL16}, s[{SRD_KM}:{SRD_KM+3}], s{sT} offen {'' if cfg.get('plain_km') else 'sc1'}")
        V(1)
        stamp(a, cfg, 'a_s')
        lg.issue('SW', f"ds_write2_b64 v{vSW}, v[28:29], v[30:31] offset0:0 offset1:4")
        lg.issue('SW', f"ds_write2_b64 v{vSW}, v[36:37], v[38:39] offset0:1 offset1:5")
        lg.issue('SW', f"ds_write2_b32 v{vSWm}, v48, v49 offset0:0 offset1:2")
        V(3)
        lg.wait('SW')
        a("s_barrier")
        stamp(a, cfg, 'a_bar')
        for wp in range(4):
            dst = (28, 36, 48, 52)[wp]
            lg.issue('SR', f"ds_read_b128 v[{dst}:{dst+3}], v{vL16} offset:{L_S + wp*1024}")
        lg.issue('SR', f"ds_read2st64_b32 v[64:65], v{vL4b} offset0:0 offset1:1")
        lg.issue('SR', f"ds_read2st64_b32 v[66:67], v{vL4b} offset0:2 offset1:3")
        V(3)
        lg.wait('SR')
        stamp(a, cfg, 'a_sr')
        a(f"""
        v_pk_add_f32 v[28:29], v[28:29], v[36:37]
        v_pk_add_f32 v[30:31], v[30:31], v[38:39]
        v_pk_add_f32 v[48:49], v[48:49], v[52:53]
        v_pk_add_f32 v[50:51], v[50:51], v[54:55]
        v_pk_add_f32 v[64:65], v[64:65], v[66:67]
        v_pk_add_f32 v[28:29], v[28:29], v[48:49]
        v_pk_add_f32 v[30:31], v[30:31], v[50:51]
        v_add_f32 v64, v64, v65
        v_max3_f32 v36, v28, v29, v30
        v_max3_f32 v36, v36, v31, v64
        """)
        V(1)
        a(f"""
        v_max_f32_dpp v36, v36, v36 {DPPX}
        v_mov_b32 v37, v36
        """)
        V(1)
        a(f"""
        v_permlane16_swap_b32 v36, v37
        v_max_f32 v36, v36, v37
        v_mov_b32 v37, v36
        """)
        V(1)
        a(f"""
        v_permlane32_swap_b32 v36, v37
        v_max_f32 v36, v36, v37
        v_mul_f32 v36, s{sCS}, v36
        v_fma_f32 v28, v28, s{sCS}, -v36
        v_fma_f32 v29, v29, s{sCS}, -v36
        v_exp_f32 v28, v28
        v_fma_f32 v30, v30, s{sCS}, -v36
        v_exp_f32 v29, v29
        v_fma_f32 v31, v31, s{sCS}, -v36
        v_exp_f32 v30, v30
        v_fma_f32 v64, v64, s{sCS}, -v36
        v_exp_f32 v31, v31
        v_exp_f32 v64, v64
        v_cvt_pk_bf16_f32 v24, v28, v29
        v_cvt_pk_bf16_f32 v26, v30, v31
        """)
        V(1)
        a(f"""
        v_mov_b32_dpp v25, v24 {DPPX}
        v_mov_b32_dpp v27, v26 {DPPX}
        v_mov_b32_dpp v65, v64 {DPPX}
        """)
        vm.wait('VX')
        a(f"""
        v_mfma_f32_16x16x32_bf16 v[32:35], v[{VX}:{VX+3}], v[24:27], 0
        v_cvt_pk_bf16_f32 v28, v64, v65
        v_cvt_pk_bf16_f32 v29, v64, v65
        v_mfma_f32_16x16x32_bf16 v[36:39], v[{VX+4}:{VX+7}], v[24:27], 0
        """)
        V(18)
        stamp(a, cfg, 'a_sm')
        WL = a.label("CH_WARM")
        a(f"s_cmp_eq_u32 s{w}, 2")
        a(f"s_cbranch_scc0 {WL}")
        a(f"s_cmp_ge_u32 s{sSTEP}, {cfg.get('nsteps', 64) - 1}")
        a(f"s_cbranch_scc1 {WL}")
        a(f"s_lshl_b32 s{sT}, s{sSTEP}, 18")
        a(f"s_add_u32 s{sT3}, s{sWARM}, s{sT}")
        a(f"buffer_load_dword v{vRD}, v{vH2}, s[{SRD_KV}:{SRD_KV+3}], s{sT3} offen sc1")
        a(f"s_add_u32 s{sT3}, s{sT3}, {QKV_SIZE}")
        a(f"buffer_load_dword v{vRD}, v{vH2}, s[{SRD_KV}:{SRD_KV+3}], s{sT3} offen sc1")
        a(f"{WL}:")

        for (c, tt, dst) in ((('o', 1), 0, STG[0]), (('o', 1), 1, STG[1])):
            pre, ops = lds_tile_ops(c, tt, dst, vT0)
            for p in pre: a(p)
            for i, o in enumerate(ops): lg.issue(('O', c[1], tt, i), o)
        a(f"""
        s_mov_b32 s{sT3}, 0x3f803f80
        v_dot2_f32_bf16 v30, v24, s{sT3}, v64
        v_dot2_f32_bf16 v30, v26, s{sT3}, v30
        v_cvt_pk_bf16_f32 v40, v40, v41
        v_cvt_pk_bf16_f32 v41, v42, v43
        v_add_f32_dpp v30, v30, v30 {DPPX}
        v_cvt_pk_bf16_f32 v42, v44, v45
        v_cvt_pk_bf16_f32 v43, v46, v47
        v_mov_b32 v31, v30
        v_mfma_f32_16x16x16_bf16 v[32:35], v[40:41], v[28:29], v[32:35]
        v_mfma_f32_16x16x16_bf16 v[36:39], v[42:43], v[28:29], v[36:39]
        v_permlane16_swap_b32 v30, v31
        v_add_f32 v30, v30, v31
        s_lshl_b32 s{sT}, s{sSTEP}, 18
        s_add_u32 s{sT}, s{sT}, s{sKMO}
        v_mov_b32 v31, v30
        s_add_u32 s{sT}, s{sT}, 4096
        """)
        vm.issue('VM', f"buffer_store_dwordx4 v[40:43], v{vL16}, s[{SRD_KM}:{SRD_KM+3}], s{sT} offen {'' if cfg.get('plain_km') else 'sc1'}")
        a(f"""
        v_permlane32_swap_b32 v30, v31
        v_add_f32 v30, v30, v31
        v_rcp_f32 v30, v30
        v_add_u32 v{vT0}, s{sOW}, v{vL16}
        s_mov_b32 vcc_lo, 0x33333333
        s_mov_b32 vcc_hi, 0x33333333
        v_pk_mul_f32 v[32:33], v[32:33], v[30:31] op_sel_hi:[1,0]
        v_pk_mul_f32 v[34:35], v[34:35], v[30:31] op_sel_hi:[1,0]
        v_pk_mul_f32 v[36:37], v[36:37], v[30:31] op_sel_hi:[1,0]
        v_pk_mul_f32 v[38:39], v[38:39], v[30:31] op_sel_hi:[1,0]
        v_cvt_pk_bf16_f32 v32, v32, v33
        v_cvt_pk_bf16_f32 v33, v34, v35
        v_cvt_pk_bf16_f32 v34, v36, v37
        v_cvt_pk_bf16_f32 v35, v38, v39
        v_cndmask_b32_dpp v32, v34, v32, vcc quad_perm:[0,1,0,1] row_mask:0xf bank_mask:0xf
        v_cndmask_b32_dpp v33, v35, v33, vcc quad_perm:[0,1,0,1] row_mask:0xf bank_mask:0xf
        """)
        stamp(a, cfg, 'a_pv')
        lg.issue('OW', f"ds_write_b64 v{vT0}, v[32:33]")
        pre, ops = lds_tile_ops(('o', 3), 0, KX, vT1)
        for p in pre: a(p)
        for i, o in enumerate(ops): lg.issue(('O', 3, 0, i), o)
        accs = [20, 24, 28, 40, 44, 72, 76]
        zero(a, range(20, 32))
        lg.wait('OW')
        a("s_barrier")
        lg.issue('OA', f"ds_read_b128 v[12:15], v{vL16} offset:{L_O}")
        lg.issue('OA', f"ds_read_b128 v[16:19], v{vL16} offset:{L_O + 1024}")
        pre, ops = lds_tile_ops(('o', 3), 1, 32, vT1)
        for p in pre: a(p)
        for i, o in enumerate(ops): lg.issue(('O', 3, 1, i), o)
        zero(a, list(range(40, 48)) + list(range(72, 80)))
        a(f"v_lshrrev_b32 v{vT1}, 1, v{vL16}")
        lg.wait('OA')
        stamp(a, cfg, 'wo')
        slots = {1: (STG[0], STG[1]), 3: (KX, 32), 5: (STG[0], STG[1]), 7: (KX, 32)}
        order = [1, 0, 3, 2, 4, 5, 6, 7, 8]
        acc_of = {}
        free = list(accs)
        packed = {}
        tagop = (lambda r: f"v_or_b32 v{r}, 1, v{r}") if par else (lambda r: f"v_and_b32 v{r}, -2, v{r}")
        def post(cb, dst):
            acc = acc_of[cb]
            return [f"v_add_f32 v{acc}, v{acc}, v{acc+2}", f"v_add_f32 v{acc+1}, v{acc+1}, v{acc+3}",
                    f"v_cvt_pk_bf16_f32 v{dst}, v{acc}, v{acc+1}", tagop(dst)]
        work = []
        def drainw(n=1):
            for _ in range(n):
                if work:
                    kind, x = work.pop(0)
                    if kind == 'v': a(x)
                    elif kind == 'vm': vm.issue('H1', x)
                    elif kind == 'l': lg.issue(x[0], x[1])
                    elif kind == 'free': free.append(x); drain_free()
        def drain_free(): pass
        def q_pair(pi, ca, cb_):
            d = acc_of[ca]
            for t in post(ca, d): work.append(('v', t))
            for t in post(cb_, d + 1): work.append(('v', t))
            work.append(('vm', f"buffer_store_dwordx2 v[{d}:{d+1}], v{vT1}, s[{SRD_H1}:{SRD_H1+3}], s{sH1P[pi]} offen {st}"))
        for idx, cb in enumerate(order):
            if not free:
                while not free: drainw()
            acc = free.pop(0)
            acc_of[cb] = acc
            oc = ('o', cb)
            if cb in slots:
                while any(k == 'l' and x[0][:2] == ('O', cb) for k, x in work): drainw()
                lg.wait(*[('O', cb, tt, i) for tt in range(2) for i in range(2)])
                a(smf(acc, 12, vt(slots[cb][0]))); drainw()
                a(smf(acc, 16, vt(slots[cb][1])))
                nb = cb + 4
                if nb in slots:
                    ins = []
                    for tt in range(2):
                        pre, ops = lds_tile_ops(('o', nb), tt, slots[nb][tt], vT0)
                        for p in pre: ins.append(('v', p))
                        for i, o in enumerate(ops): ins.append(('l', (('O', nb, tt, i), o)))
                    for kind, x in ins:
                        if kind == 'v': a(x)
                        else: lg.issue(x[0], x[1])
                else:
                    drainw()
            else:
                a(smf(acc, 12, rt(oc, 0))); drainw()
                a(smf(acc, 16, rt(oc, 1))); drainw()
            if idx == 2:
                q_pair(0, 0, 1)
                work.append(('v', f"v_mov_b64 v[{acc_of[1]}:{acc_of[1]+1}], 0")); work.append(('v', f"v_mov_b64 v[{acc_of[1]+2}:{acc_of[1]+3}], 0"))
                work.append(('free', acc_of[1]))
            if idx == 4:
                q_pair(1, 2, 3)
                work.append(('v', f"v_mov_b64 v[{acc_of[3]}:{acc_of[3]+1}], 0")); work.append(('v', f"v_mov_b64 v[{acc_of[3]+2}:{acc_of[3]+3}], 0"))
                work.append(('free', acc_of[3]))
            if idx == 6:
                q_pair(2, 4, 5)
        q_pair(3, 6, 7)
        for t in post(8, acc_of[8]): work.append(('v', t))
        work.append(('vm', f"buffer_store_dword v{acc_of[8]}, v{vT1}, s[{SRD_H1}:{SRD_H1+3}], s{sH1S} offen {st}"))
        while work: drainw()
    stamp(a, cfg, 'post')
    RL = a.label("CH_RED")
    chk = 0x7f if par else 0xfe
    chk = (0xF0 | (~0xCC & 0xFF) | (~0xAA & 0xFF)) if par else (0xF0 | 0xCC | 0xAA)
    a(f"s_cmp_eq_u32 s{sRED}, 0")
    a(f"s_cbranch_scc1 {RL}_skip")
    a(f"""
    v_bfe_u32 v56, v{vL16}, 4, 4
    v_and_b32 v57, 1, v56
    v_mov_b32 v58, 0x3f80
    v_mov_b32 v59, 0x3f800000
    v_cmp_eq_u32 vcc, 1, v57
    v_cndmask_b32 v58, v58, v59, vcc
    v_lshrrev_b32 v57, 1, v56
    v_mov_b32 v59, 0
    """)
    for jj in range(4):
        a(f"v_cmp_eq_u32 vcc, {jj}, v57")
        a(f"v_cndmask_b32 v{60+jj}, v59, v58, vcc")
    for _ in range(cfg.get('rdelay', 0)): a("s_nop 15")
    stamp(a, cfg, 'r_go')
    a(f"s_mov_b32 s{S_TO}, 0")
    a(f"{RL}:")
    LB = 24
    for cc in range(8):
        a(f"buffer_load_dwordx4 v[{LB+4*cc}:{LB+3+4*cc}], v{vRD}, s[{SRD_H1}:{SRD_H1+3}], s{sR[cc>>1]} offen offset:{(cc&1)*2048} sc1")
    a("v_mov_b32 v12, 0")
    for cc in range(8):
        b = LB + 4 * cc
        a(f"s_waitcnt vmcnt({7-cc})")
        c_in = "0" if cc == 0 else "v[56:59]"
        a(f"v_mfma_f32_16x16x32_bf16 v[56:59], v[{b}:{b+3}], v[60:63], {c_in}")
        a(f"v_bitop3_b32 v12, v12, v{b}, v{b+1} bitop3:{chk:#x}")
        a(f"v_bitop3_b32 v12, v12, v{b+2}, v{b+3} bitop3:{chk:#x}")
    a(f"""
    v_and_b32 v12, 1, v12
    v_cmp_ne_u32 vcc, 0, v12
    s_cbranch_vccz {RL}_ok
    s_add_u32 s{S_TO}, s{S_TO}, 1
    s_cmp_lt_u32 s{S_TO}, {TIMEOUT}
    s_cbranch_scc1 {RL}
    s_branch {FAIL}
    {RL}_ok:
    {stamp_txt(cfg, 'r_ok')}
    {stamp_txt(cfg, 'cnt_r')}
    v_cvt_pk_bf16_f32 v60, v56, v57
    v_cvt_pk_bf16_f32 v61, v58, v59
    {tagop(60)}
    s_mov_b32 exec_lo, 0x00ff00ff
    s_mov_b32 exec_hi, 0x00ff00ff
    buffer_store_dwordx2 v[60:61], v{vH2}, s[{SRD_H2}:{SRD_H2+3}], s{sRH2} offen {st}
    s_mov_b64 exec, -1
    {RL}_skip:
    {stamp_txt(cfg, 'r_st')}
    """)
    vm.assume_empty()
    lg.assume_empty()
    a("s_barrier")
    preload_next(a, lg)
    for _ in range(cfg.get('gdelay', 0)): a("s_nop 15")
    stamp(a, cfg, 'gat')
    GL = a.label("CH_GAT")
    chk2 = chk
    a(f"s_mov_b32 s{S_TO}, 0")
    a(f"{GL}:")
    a(f"""
    buffer_load_dwordx4 v[12:15], v{vL16}, s[{SRD_H2}:{SRD_H2+3}], s{sG[0]} offen sc1
    buffer_load_dwordx4 v[16:19], v{vL16}, s[{SRD_H2}:{SRD_H2+3}], s{sG[1]} offen sc1
    v_mov_b32 v{vT0}, 0
    s_cmp_eq_u32 s{w}, 0
    s_cbranch_scc0 {GL}_two
    buffer_load_dwordx4 v[20:23], v{vL16}, s[{SRD_H2}:{SRD_H2+3}], s{sG[2]} offen sc1
    s_waitcnt vmcnt(0)
    v_bitop3_b32 v{vT0}, v{vT0}, v20, v22 bitop3:{chk2:#x}
    {GL}_two:
    s_waitcnt vmcnt(1)
    v_bitop3_b32 v{vT0}, v{vT0}, v12, v14 bitop3:{chk2:#x}
    s_waitcnt vmcnt(0)
    v_bitop3_b32 v{vT0}, v{vT0}, v16, v18 bitop3:{chk2:#x}
    """)
    a(f"""
    v_and_b32 v{vT0}, 1, v{vT0}
    v_cmp_ne_u32 vcc, 0, v{vT0}
    s_cbranch_vccz {GL}_ok
    s_add_u32 s{S_TO}, s{S_TO}, 1
    s_cmp_lt_u32 s{S_TO}, {TIMEOUT}
    s_cbranch_scc1 {GL}
    s_branch {FAIL}
    {GL}_ok:
    {stamp_txt(cfg, 'gatok')}
    {stamp_txt(cfg, 'cnt_g')}
    v_add_u32 v{vT0}, s{sG[0]}, v{vL16}
    ds_write_b128 v{vT0}, v[12:15] offset:{L_MEM}
    ds_write_b128 v{vT0}, v[16:19] offset:{L_MEM + 4096}
    s_cmp_eq_u32 s{w}, 0
    s_cbranch_scc0 {GL}_w2
    ds_write_b128 v{vL16}, v[20:23] offset:{L_MEM + 8192}
    {GL}_w2:
    s_waitcnt lgkmcnt(0)
    s_barrier
    s_cmp_eq_u32 s{w}, 3
    s_cbranch_scc0 {GL}_nf
    s_lshl_b32 s{sT}, s{sH}, 8
    s_lshl_b32 s{sT2}, s{sSTEP}, 2
    s_add_u32 s{sT}, s{sT}, s{sT2}
    s_add_u32 s{sT}, s{sT}, {FL_KM}
    s_mov_b64 exec, 1
    v_mov_b32 v{vT0}, 1
    v_mov_b32 v12, 0
    buffer_store_dword v{vT0}, v12, s[{SRD_FL}:{SRD_FL+3}], s{sT} offen sc1
    s_mov_b64 exec, -1
    {GL}_nf:
    {stamp_txt(cfg, 'end')}
    {dump_stamps(a, cfg)}
    s_add_u32 s{sSTEP}, s{sSTEP}, 1
    s_cmp_lt_u32 s{sSTEP}, {cfg.get('nsteps', 64)}
    s_cbranch_scc0 CH_DONE
    """)
    if nxt: a(f"s_branch CH_STEP{nxt}")

def emit_chain(a, cfg):
    a("ROLE_CHAIN:")
    emit_chain_setup(a, cfg)
    emit_chain_weights(a, cfg)
    emit_chain_consts(a, cfg)
    a(f"v_mov_b32 v{vT1}, {DBG_CINIT}")
    poll_dword_eq(a, SRD_DBG, vT1, vT0, 32, "CH_FAIL", "CH_CI")
    a(f"""
    v_mov_b32 v{vT1}, {DBG_SLOW}
    buffer_load_dword v{vT0}, v{vT1}, s[{SRD_DBG}:{SRD_DBG+3}], 0 offen sc1
    s_waitcnt vmcnt(0)
    v_readfirstlane_b32 s{sSLOW}, v{vT0}
    s_mov_b32 s{sSTEP}, 0
    s_lshl_b32 s{sFLN}, s{sH}, 8
    s_add_u32 s{sFLN}, s{sFLN}, {FL_KV}
    v_mov_b32 v{vT1}, s{sFLN}
    """)
    poll_dword_eq(a, SRD_FL, vT1, vT0, 1, "CH_FAIL", "CH_F0", sleep=1)
    a(f"""
    s_add_u32 s{sFLN}, s{sFLN}, 4
    """)
    lg = Cnt(a, "lgkmcnt", 15)
    preload_next(a, lg)
    a("s_waitcnt lgkmcnt(0)")
    a("s_barrier")
    if cfg.get('timing'):
        a("s_memtime s[4:5]\ns_waitcnt lgkmcnt(0)")
        a("s_mov_b32 s101, s4")
    if cfg.get('force_slow'):
        a(f"s_mov_b32 s{sSLOW}, 1")
    a(f"s_cmp_eq_u32 s{sSLOW}, 0")
    a("s_cbranch_scc0 CH_STEP_S1")
    emit_step(a, cfg, False, 1, "_F1", None)
    emit_step(a, cfg, False, 0, "_F0", "_F1")
    emit_step(a, cfg, True, 1, "_S1", None)
    emit_step(a, cfg, True, 0, "_S0", "_S1")
    a("CH_FAIL:")
    a(f"""
    s_mov_b64 exec, 1
    v_mov_b32 v1, 0xdead
    v_mov_b32 v2, {DBG_FAIL}
    buffer_store_dword v1, v2, s[{SRD_DBG}:{SRD_DBG+3}], 0 offen
    s_waitcnt vmcnt(0)
    s_branch END
    """)
    a("CH_DONE:")
    if cfg.get('timing'):
        a(f"""
        s_memtime s[36:37]
        s_waitcnt lgkmcnt(0)
        s_sub_u32 s36, s36, s101
        s_cmp_eq_u32 s{sH}, {cfg.get('stamp_h', 0)}
        s_cbranch_scc0 END
        s_mov_b64 exec, 1
        v_mov_b32 v1, s36
        v_mov_b32 v2, {DBG_TIME}
        buffer_store_dword v1, v2, s[{SRD_DBG}:{SRD_DBG+3}], 0 offen
        s_waitcnt vmcnt(0)
        """)
    a("s_branch END")
```

```python
from layout import *

S_X, S_MEM0, S_WQ, S_WK, S_WV, S_WO = 64, 66, 68, 70, 72, 74
S_SEG, S_BX = 76, 78
S_W1, S_B1, S_W2, S_B2 = 80, 82, 84, 86
S_OUT, S_DBG, S_WS = 88, 90, 92
S_WAVE = 94
S_ROLE = 95
S_TO   = 96
SRD_DBG = 28
TIMEOUT = 60000

def srd(a, d, base, off, size):
    if off:
        a(f"s_add_u32 s{d}, s{base}, {off:#x}")
        a(f"s_addc_u32 s{d+1}, s{base+1}, 0")
    else:
        a(f"s_mov_b32 s{d}, s{base}")
        a(f"s_mov_b32 s{d+1}, s{base+1}")
    a(f"s_mov_b32 s{d+2}, {size:#x}")
    a(f"s_mov_b32 s{d+3}, 0x00020000")

def emit_entry(a, nwg=256, fake=0):
    a(f"""
    s_cmp_ge_u32 s2, {nwg}
    s_cbranch_scc1 END
    s_load_dwordx16 s[64:79], s[0:1], 0
    s_load_dwordx8 s[80:87], s[0:1], 64
    s_load_dwordx4 s[88:91], s[0:1], 96
    s_load_dwordx2 s[92:93], s[0:1], 112
    s_getreg_b32 s3, hwreg(HW_REG_XCC_ID, 0, 4)
    {"s_lshr_b32 s3, s2, 5" if fake == 1 else ("s_and_b32 s3, s2, 3" if fake == 2 else ("s_and_b32 s3, s2, 3" + chr(10) + "s_add_u32 s3, s3, 1" if fake == 3 else ""))}
    v_lshrrev_b32 v1, 6, v0
    v_and_b32 v0, 63, v0
    s_nop 0
    v_readfirstlane_b32 s{S_WAVE}, v1
    s_waitcnt lgkmcnt(0)
    """)
    srd(a, SRD_DBG, S_DBG, 0, 256)
    D = f"s[{SRD_DBG}:{SRD_DBG+3}]"
    a(f"""
    s_cmp_eq_u32 s{S_WAVE}, 0
    s_cbranch_scc0 ROLE_WAIT
    s_and_b32 s3, s3, 7
    s_mov_b64 exec, 1
    v_mov_b32 v2, 1
    s_lshl_b32 s4, s3, 2
    s_add_u32 s4, s4, {DBG_XCNT}
    v_mov_b32 v3, s4
    buffer_atomic_add v2, v3, {D}, 0 offen sc0
    s_waitcnt vmcnt(0)
    v_readfirstlane_b32 s4, v2
    s_lshl_b32 s5, s3, 5
    s_add_u32 s5, s5, s4
    s_cmp_lt_u32 s4, 32
    s_cbranch_scc1 ROLE_PUB
    v_mov_b32 v2, 1
    v_mov_b32 v3, {DBG_OVF}
    buffer_atomic_add v2, v3, {D}, 0 offen sc0
    s_waitcnt vmcnt(0)
    v_readfirstlane_b32 s6, v2
    s_mov_b64 exec, 0xff
    v_lshlrev_b32 v3, 2, v0
    v_add_u32 v3, {DBG_XCNT}, v3
    s_mov_b32 s{S_TO}, 0
    ROLE_OVF:
    buffer_load_dword v2, v3, {D}, 0 offen sc1
    s_waitcnt vmcnt(0)
    s_mov_b32 s7, 0
    """)
    for x in range(8):
        a(f"v_readlane_b32 s{8+x}, v2, {x}")
    for x in range(8):
        a(f"s_add_u32 s7, s7, s{8+x}")
    a(f"""
    s_cmp_eq_u32 s7, {nwg}
    s_cbranch_scc1 ROLE_OVF_OK
    s_sleep 8
    s_add_u32 s{S_TO}, s{S_TO}, 1
    s_cmp_lt_u32 s{S_TO}, {TIMEOUT}
    s_cbranch_scc1 ROLE_OVF
    s_mov_b32 s5, 0xffff
    s_branch ROLE_PUB1
    ROLE_OVF_OK:
    s_mov_b32 s5, 0xffff
    """)
    for x in range(8):
        a(f"""
        s_min_u32 s7, s{8+x}, 32
        s_sub_u32 s16, 32, s7
        s_cmp_lt_u32 s6, s16
        s_cbranch_scc0 ROLE_OVF_N{x}
        s_add_u32 s5, s7, s6
        s_add_u32 s5, s5, {32*x}
        s_branch ROLE_OVF_DONE
        ROLE_OVF_N{x}:
        s_sub_u32 s6, s6, s16
        """)
    a(f"""
    ROLE_OVF_DONE:
    s_cmp_lt_u32 s5, 32
    s_cbranch_scc0 ROLE_PUB1
    s_mov_b64 exec, 1
    v_mov_b32 v2, 1
    v_mov_b32 v3, {DBG_SLOW}
    buffer_atomic_or v2, v3, {D}, 0 offen
    s_waitcnt vmcnt(0)
    ROLE_PUB1:
    s_mov_b64 exec, 1
    ROLE_PUB:
    v_mov_b32 v2, s5
    v_mov_b32 v3, 0
    ds_write_b32 v3, v2
    s_waitcnt lgkmcnt(0)
    s_mov_b64 exec, -1
    ROLE_WAIT:
    s_barrier
    v_mov_b32 v3, 0
    ds_read_b32 v2, v3
    s_waitcnt lgkmcnt(0)
    v_readfirstlane_b32 s{S_ROLE}, v2
    s_barrier
    s_cmp_lt_u32 s{S_ROLE}, 32
    s_cbranch_scc1 ROLE_CHAIN
    s_cmp_lt_u32 s{S_ROLE}, {nwg}
    s_cbranch_scc0 END
    s_sub_u32 s{S_ROLE}, s{S_ROLE}, 32
    s_branch ROLE_WORKER
    """)

def poll_dword_eq(a, srd_, voff_reg, vtmp, value, fail_label, name, ge=False, sleep=2):
    L = a.label(name)
    a(f"s_mov_b32 s{S_TO}, 0")
    a(f"{L}:")
    a(f"buffer_load_dword v{vtmp}, v{voff_reg}, s[{srd_}:{srd_+3}], 0 offen sc1")
    a("s_waitcnt vmcnt(0)")
    a(f"v_readfirstlane_b32 s3, v{vtmp}")
    a(f"s_cmp_{'ge' if ge else 'eq'}_u32 s3, {value}")
    a(f"s_cbranch_scc1 {L}_ok")
    if sleep: a(f"s_sleep {sleep}")
    a(f"s_add_u32 s{S_TO}, s{S_TO}, 1")
    a(f"s_cmp_lt_u32 s{S_TO}, {TIMEOUT}")
    a(f"s_cbranch_scc1 {L}")
    a(f"s_branch {fail_label}")
    a(f"{L}_ok:")
```

```python
S, DM, H, DH, M, SEG = 2048, 576, 32, 128, 8, 32
NSEG = S // SEG
F = 4608

WS_H1    = 0x0000000
H1_SIZE  = 18 * 32 * 512
WS_H2    = 0x0050000
H2_SIZE  = 9216
WS_FLAGS = 0x0060000
FL_KV    = 0x0000
FL_KM    = 0x2000
FL_G3    = 0x4000
FLAGS_SIZE = 0x5000
WS_XN    = 0x0100000
WS_HB    = 0x0400000
XN_SIZE  = S * DM * 2
WS_KX    = 0x0800000
WS_VX    = 0x1800000
WS_QX    = 0x2800000
QKV_SIZE = 0x1000000
WS_KM    = 0x3800000
KM_SIZE  = 0x1000000
WS_UT    = 0x4800000
UT_SIZE  = F * DM * 2
WS_P5    = 0x5000000
P5_SIZE  = 2 * S * DM * 4
WS_P3    = 0x6000000
P3_SIZE  = 64 * 16 * 36864

DBG_RANK, DBG_TICKET, DBG_SLOW, DBG_CINIT, DBG_UREADY, DBG_G5DONE = 0, 4, 8, 12, 16, 20
DBG_LN = 32
DBG_TIME, DBG_FAIL = 24, 28
DBG_XCNT = 96
DBG_OVF = 128
DBG_STAMP = 160

L_MEM = 0
L_S   = 9216
L_O   = 14336
L_W   = 16384

def mem_col(kt, ga, u, j):
    return 64 * kt + 16 * ga + 8 * u + 2 * (j & 3) + (j >> 2)

def logical_k(k):
    ga = k >> 4; pp = (k >> 2) & 3; u = (k >> 1) & 1; b = k & 1
    return ga, u, 2 * pp + b

def qkv_row(k):
    ga, u, j = logical_k(k)
    return mem_col(0, ga, u, j)

def wo_row(k):
    ga, u, j = logical_k(k)
    return 32 * (j >> 2) + 16 * u + 4 * ga + (j & 3)

def b_k(g, R, b):
    return (8 * g + 2 * R + b) if R < 4 else (32 + 8 * g + 2 * (R - 4) + b)

LDS_CHUNKS = [('q', 0), ('k', 0), ('q', 2), ('k', 3), ('q', 5), ('k', 6), ('k', 8), ('o', 1), ('o', 3)]
ALL_CHUNKS = [(m, i) for m in 'qkvo' for i in range(9)]
REG_CHUNKS = [c for c in ALL_CHUNKS if c not in LDS_CHUNKS]

def pu_tiles(pu):
    if pu < 16:
        w, pi = pu >> 2, pu & 3
        return 8 * pi + w, 8 * pi + 4 + w
    a = 32 + 2 * (pu - 16)
    return a, a + 1

def row_token(m):
    return 2 * (m >> 2) + (m & 1), (m >> 1) & 1
```

```python
from layout import *
from common import *
from asmlib import Cnt
import struct

def f32bits(x): return struct.unpack("<I", struct.pack("<f", x))[0]
CS = 128 ** -0.5 * 1.4426950408889634

sT, sT2, sT3, sT4 = 32, 33, 34, 35
SRD_A, SRD_B, SRD_C, SRD_D, SRD_FL = 8, 12, 16, 20, 24
sWK = S_ROLE
WFAIL = "W_FAIL"

def wstamp(a, cfg, i):
    if 'wtime' not in cfg: return
    L = a.label("WST")
    a(f"""
    s_cmp_eq_u32 s{sWK}, {cfg['wtime']}
    s_cbranch_scc0 {L}
    s_cmp_eq_u32 s{S_WAVE}, 0
    s_cbranch_scc0 {L}
    s_memrealtime s[4:5]
    s_waitcnt lgkmcnt(0)
    s_mov_b64 exec, 1
    v_mov_b32 v250, s4
    v_mov_b32 v251, {DBG_STAMP + 4*i}
    buffer_store_dword v250, v251, s[{SRD_DBG}:{SRD_DBG+3}], 0 offen
    s_mov_b64 exec, -1
    {L}:
    """)

def dpp_sum8(a, v, t):
    a(f"v_add_f32_dpp v{v}, v{v}, v{v} quad_perm:[1,0,3,2] row_mask:0xf bank_mask:0xf")
    a(f"v_add_f32_dpp v{v}, v{v}, v{v} quad_perm:[2,3,0,1] row_mask:0xf bank_mask:0xf")
    a(f"v_add_f32_dpp v{v}, v{v}, v{v} row_half_mirror row_mask:0xf bank_mask:0xf")

def emit_ln(a, cfg):
    w = S_WAVE
    a(f"s_cmp_lt_u32 s{sWK}, 64")
    a("s_cbranch_scc0 W_LN_DONE")
    srd(a, SRD_A, S_X, 0, XN_SIZE)
    srd(a, SRD_B, S_WS, WS_XN, XN_SIZE)
    srd(a, SRD_C, S_WS, WS_HB, XN_SIZE)
    P = 16
    F = 64
    a(f"""
    v_lshrrev_b32 v1, 3, v0
    v_mul_u32_u24 v1, 1152, v1
    v_and_b32 v2, 7, v0
    v_lshl_add_u32 v1, v2, 4, v1
    s_lshl_b32 s{sT}, s{sWK}, 2
    s_add_u32 s{sT}, s{sT}, s{w}
    s_mul_i32 s{sT}, s{sT}, {8*1152}
    """)
    for i in range(9):
        a(f"buffer_load_dwordx4 v[{P+4*i}:{P+4*i+3}], v1, s[{SRD_A}:{SRD_A+3}], s{sT} offen offset:{128*i}")
    a("s_waitcnt vmcnt(0)")
    for rep in range(2):
        for i in range(36):
            a(f"v_lshlrev_b32 v{F+2*i}, 16, v{P+i}")
            a(f"v_and_b32 v{F+2*i+1}, 0xffff0000, v{P+i}")
        a(f"v_add_f32 v4, v{F}, v{F+1}")
        a(f"v_add_f32 v5, v{F+2}, v{F+3}")
        for i in range(4, 72, 2):
            a(f"v_add_f32 v4, v4, v{F+i}")
            a(f"v_add_f32 v5, v5, v{F+i+1}")
        a("v_add_f32 v4, v4, v5")
        dpp_sum8(a, 4, 5)
        a(f"v_mul_f32 v4, {f32bits(1.0/576):#x}, v4")
        for i in range(72):
            a(f"v_sub_f32 v{F+i}, v{F+i}, v4")
        a(f"v_mul_f32 v5, v{F}, v{F}")
        a(f"v_mul_f32 v6, v{F+1}, v{F+1}")
        for i in range(2, 72, 2):
            a(f"v_fmac_f32 v5, v{F+i}, v{F+i}")
            a(f"v_fmac_f32 v6, v{F+i+1}, v{F+i+1}")
        a("v_add_f32 v5, v5, v6")
        dpp_sum8(a, 5, 6)
        a(f"v_mov_b32 v6, {f32bits(1e-5):#x}")
        a(f"v_fmac_f32 v6, {f32bits(1.0/576):#x}, v5")
        a("v_rsq_f32 v6, v6")
        for i in range(36):
            a(f"v_mul_f32 v{F+2*i}, v{F+2*i}, v6")
            a(f"v_mul_f32 v{F+2*i+1}, v{F+2*i+1}, v6")
            a(f"v_cvt_pk_bf16_f32 v{P+i}, v{F+2*i}, v{F+2*i+1}")
        s_ = SRD_B if rep == 0 else SRD_C
        for i in range(9):
            a(f"buffer_store_dwordx4 v[{P+4*i}:{P+4*i+3}], v1, s[{s_}:{s_+3}], s{sT} offen offset:{128*i} sc1")
        if rep == 0: a("s_nop 1")
    a(f"""
    s_waitcnt vmcnt(0)
    s_barrier
    s_cmp_eq_u32 s{w}, 0
    s_cbranch_scc0 W_LN_DONE
    s_mov_b64 exec, 1
    v_mov_b32 v2, 1
    s_add_u32 s{sT}, s{sWK}, {DBG_LN}
    v_mov_b32 v3, s{sT}
    buffer_store_byte v2, v3, s[{SRD_DBG}:{SRD_DBG+3}], 0 offen sc1
    s_mov_b64 exec, -1
    """)
    a("W_LN_DONE:")

def poll_byte_flag(a, sidx, name):
    L = a.label(name)
    a(f"""
    s_and_b32 s{sT3}, s{sidx}, 3
    s_lshl_b32 s{sT3}, s{sT3}, 3
    s_and_b32 s{sT4}, s{sidx}, 0xfffffffc
    s_add_u32 s{sT4}, s{sT4}, {DBG_LN}
    v_mov_b32 v2, s{sT4}
    s_mov_b32 s{S_TO}, 0
    {L}:
    buffer_load_dword v3, v2, s[{SRD_DBG}:{SRD_DBG+3}], 0 offen sc1
    s_waitcnt vmcnt(0)
    v_readfirstlane_b32 s3, v3
    s_lshr_b32 s3, s3, s{sT3}
    s_and_b32 s3, s3, 0xff
    s_cmp_eq_u32 s3, 1
    s_cbranch_scc1 {L}_ok
    s_sleep 4
    s_add_u32 s{S_TO}, s{S_TO}, 1
    s_cmp_lt_u32 s{S_TO}, {TIMEOUT}
    s_cbranch_scc1 {L}
    s_branch {WFAIL}
    {L}_ok:
    """)

G1_XB = [0, 36864]
G1_STG = 73728
G1_NSTG = 5

def emit_g1(a, cfg, mats, tag):
    w = S_WAVE
    nm = len(mats)
    sHd, sSeg, sXo = 36, 37, 38
    vDQ = [1, 2]; vTR = 3; vXD = [4, 5]; vXR = [6, 7, 8, 9]; vST = 10; vA = 11
    def wreg(mi, ks):
        i = mi * 36 + ks
        if i < 64: return ('a', 4 * i)
        return ('v', 64 + 4 * (i - 64))
    ACC = [[16 + 16 * mi] for mi in range(2)]
    XF = [48, 52, 56, 60]
    a(f"""
    s_mul_hi_u32 s{sHd}, s{sWK}, {(1 << 32) // 7 + 1}
    s_mul_i32 s{sSeg}, s{sHd}, 7
    s_sub_u32 s{sSeg}, s{sWK}, s{sSeg}
    v_lshrrev_b32 v12, 4, v0
    v_and_b32 v13, 15, v0
    v_lshlrev_b32 v14, 1, v12
    v_xor_b32 v14, v14, v13
    v_lshlrev_b32 v15, 13, v12
    v_lshl_add_u32 v{vDQ[0]}, v14, 4, v15
    v_xor_b32 v14, 8, v14
    v_lshl_add_u32 v{vDQ[1]}, v14, 4, v15
    v_lshrrev_b32 v14, 2, v13                 ; rho
    v_lshrrev_b32 v15, 1, v12                 ; g>>1
    v_lshl_or_b32 v16, v15, 3, v14
    v_lshl_or_b32 v17, v15, 2, v14
    v_and_b32 v18, 1, v12
    s_lshl_b32 s{sT}, s{w}, 1
    v_or_b32 v18, s{sT}, v18                  ; nt = 2w + (g&1)
    v_xor_b32 v18, v18, v17
    v_lshlrev_b32 v18, 5, v18
    v_lshl_add_u32 v18, v16, 8, v18
    v_and_b32 v19, 3, v0
    v_lshl_add_u32 v{vTR}, v19, 3, v18
    v_lshrrev_b32 v14, 3, v0
    v_mul_u32_u24 v15, 1152, v14
    v_lshrrev_b32 v14, 1, v14
    v_and_b32 v16, 7, v0
    v_xor_b32 v16, v16, v14
    v_lshl_add_u32 v{vXD[0]}, v16, 4, v15
    v_xor_b32 v16, 4, v16
    v_lshl_add_u32 v{vXD[1]}, v16, 4, v15
    v_and_b32 v14, 31, v0
    v_lshrrev_b32 v15, 5, v0
    v_bfe_u32 v16, v14, 1, 3
    v_lshlrev_b32 v14, 7, v14
    """)
    for k in range(4):
        a(f"v_or_b32 v17, {2*k}, v15")
        a(f"v_xor_b32 v17, v17, v16")
        a(f"v_lshl_add_u32 v{vXR[k]}, v17, 4, v14")
        a(f"v_add_u32 v{112+k}, {G1_XB[1]}, v{vXR[k]}")
    a(f"""
    v_bfe_u32 v14, v0, 4, 1
    v_lshlrev_b32 v14, 10, v14
    v_lshrrev_b32 v15, 5, v0
    v_lshl_add_u32 v14, v15, 8, v14
    v_and_b32 v15, 15, v0
    v_lshl_add_u32 v{vST}, v15, 4, v14
    """)
    wsz = DM * H * DH * 2
    chunks = [(mi, kt) for mi in range(nm) for kt in range(9)]
    for mi, (nme, sp, off, kind) in enumerate(mats):
        srd(a, SRD_A + 4 * mi, sp, 0, wsz)
    a(f"""
    s_lshl_b32 s{sT2}, s{sHd}, 8
    s_lshl_b32 s{sT}, s{w}, 17
    s_add_u32 s{sT2}, s{sT2}, s{sT}
    s_lshl_b32 s{sT3}, s{w}, 12
    s_add_u32 s{sT3}, s{sT3}, {G1_STG}
    """)
    def issue(ci):
        mi, kt = chunks[ci]; slot = ci % G1_NSTG
        for nl in range(4):
            a(f"s_add_u32 m0, s{sT3}, {slot*16384 + nl*1024}")
            a(f"s_add_u32 s{sT}, s{sT2}, {kt*524288 + nl*32768}")
            a(f"buffer_load_dwordx4 v{vDQ[nl>>1]}, s[{SRD_A+4*mi}:{SRD_A+4*mi+3}], s{sT} offen lds")
    a("s_barrier")
    npre = G1_NSTG
    for ci in range(min(npre, len(chunks))): issue(ci)
    for ci, (mi, kt) in enumerate(chunks):
        inflight = min(npre - 1 if ci == 0 else npre - 2, len(chunks) - 1 - ci)
        a(f"s_waitcnt vmcnt({4*inflight})")
        a("s_barrier")
        if ci >= 1 and ci + npre - 1 < len(chunks): issue(ci + npre - 1)
        a(f"v_add_u32 v{vA}, {G1_STG + (ci % G1_NSTG)*16384}, v{vTR}")
        for k4 in range(4):
            ks = 4 * kt + k4
            kind, rb = wreg(mi, ks)
            for p in range(2):
                a(f"ds_read_b64_tr_b16 {kind}[{rb+2*p}:{rb+2*p+1}], v{vA} offset:{(16*k4 + 4*p)*256}")
        a("s_waitcnt lgkmcnt(0)")
    a("s_barrier")
    srd(a, SRD_A, S_WS, WS_XN, XN_SIZE)
    for mi, (nme, sp, off, kind) in enumerate(mats):
        srd(a, SRD_C + 4 * mi, S_WS, off, QKV_SIZE)
    srd(a, SRD_FL, S_WS, WS_FLAGS, FLAGS_SIZE)
    flags = cfg.get('g1_flags', True) and tag == "KV"
    if flags:
        a(f"v_mov_b32 v12, {DBG_CINIT}")
        poll_dword_eq(a, SRD_DBG, 12, 13, 32, WFAIL, "W_CI", sleep=4)
    def xissue(buf, sseg):
        a(f"s_mul_i32 s{sXo}, s{sseg}, {32*1152}")
        a(f"s_mul_i32 s{sT}, s{w}, {8*1152}")
        a(f"s_add_u32 s{sXo}, s{sXo}, s{sT}")
        a(f"s_lshl_b32 s{sT2}, s{w}, 10")
        a(f"s_and_b32 s{sT3}, s{w}, 1")
        a(f"s_cmp_eq_u32 s{sT3}, 0")
        a(f"v_mov_b32 v12, v{vXD[1]}")
        a(f"s_cselect_b64 vcc, -1, 0")
        a(f"v_cndmask_b32 v12, v12, v{vXD[0]}, vcc")
        for cb in range(9):
            a(f"s_add_u32 m0, s{sT2}, {G1_XB[buf] + cb*4096 - cb*128}")
            a(f"buffer_load_dwordx4 v12, s[{SRD_A}:{SRD_A+3}], s{sXo} offen offset:{cb*128} sc1 lds")
    LP = a.label("G1" + tag)
    sNext, sPrev = 39, 40
    if tag == "KV":
        poll_byte_flag(a, sSeg, "G1F")
    xissue(0, sSeg)
    a(f"s_mov_b32 s{sPrev}, -1")
    a(f"{LP}:")
    for buf in range(2):
        a(f"s_add_u32 s{sNext}, s{sSeg}, 7")
        a(f"s_cmp_lt_u32 s{sNext}, 64")
        a(f"s_cbranch_scc0 {LP}_np{buf}")
        if tag == "KV":
            poll_byte_flag(a, sNext, "G1F")
        a("s_waitcnt vmcnt(0)")
        a("s_barrier")
        xissue(1 - buf, sNext)
        a(f"s_branch {LP}_go{buf}")
        a(f"{LP}_np{buf}:")
        a("s_waitcnt vmcnt(0)")
        a("s_barrier")
        a(f"{LP}_go{buf}:")
        if flags:
            a(f"""
            s_cmp_lt_i32 s{sPrev}, 0
            s_cbranch_scc1 {LP}_nf{buf}
            s_cmp_eq_u32 s{w}, 0
            s_cbranch_scc0 {LP}_nf{buf}
            s_lshl_b32 s{sT}, s{sHd}, 8
            s_lshl_b32 s{sT2}, s{sPrev}, 2
            s_add_u32 s{sT}, s{sT}, s{sT2}
            s_mov_b64 exec, 1
            v_mov_b32 v12, 1
            v_mov_b32 v13, 0
            buffer_store_dword v12, v13, s[{SRD_FL}:{SRD_FL+3}], s{sT} offen offset:{FL_KV} sc1
            s_mov_b64 exec, -1
            {LP}_nf{buf}:
            """)
        lg = Cnt(a, "lgkmcnt", 15)
        def xread(ks):
            va = vXR[ks & 3] if buf == 0 else 112 + (ks & 3)
            lg.issue(ks, f"ds_read_b128 v[{XF[ks%4]}:{XF[ks%4]+3}], v{va} offset:{(ks>>2)*4096}")
        for ks in range(3): xread(ks)
        for ks in range(36):
            if ks + 3 < 36: xread(ks + 3)
            lg.wait(ks)
            xf = f"v[{XF[ks%4]}:{XF[ks%4]+3}]"
            for mi, (nme, sp, off, kind) in enumerate(mats):
                k_, rb = wreg(mi, ks)
                wf = f"{k_}[{rb}:{rb+3}]"
                acc = f"v[{ACC[mi][0]}:{ACC[mi][0]+15}]"
                cin = "0" if ks == 0 else acc
                if kind == 'V': a(f"v_mfma_f32_32x32x16_bf16 {acc}, {xf}, {wf}, {cin}")
                else: a(f"v_mfma_f32_32x32x16_bf16 {acc}, {wf}, {xf}, {cin}")
        a(f"s_lshl_b32 s{sT}, s{sSeg}, 18")
        a(f"s_lshl_b32 s{sT2}, s{sHd}, 13")
        a(f"s_add_u32 s{sT}, s{sT}, s{sT2}")
        a(f"s_lshl_b32 s{sT2}, s{w}, 11")
        a(f"s_add_u32 s{sT}, s{sT}, s{sT2}")
        for mi, (nme, sp, off, kind) in enumerate(mats):
            b = ACC[mi][0]
            if nme == 'q':
                a(f"s_mov_b32 s{sT2}, {f32bits(CS):#x}")
                for r in range(16): a(f"v_mul_f32 v{b+r}, s{sT2}, v{b+r}")
            o = 96 + 8 * mi
            a(f"v_cvt_pk_bf16_f32 v{o}, v{b}, v{b+1}")
            a(f"v_cvt_pk_bf16_f32 v{o+1}, v{b+2}, v{b+3}")
            a(f"v_cvt_pk_bf16_f32 v{o+2}, v{b+8}, v{b+9}")
            a(f"v_cvt_pk_bf16_f32 v{o+3}, v{b+10}, v{b+11}")
            a(f"v_cvt_pk_bf16_f32 v{o+4}, v{b+4}, v{b+5}")
            a(f"v_cvt_pk_bf16_f32 v{o+5}, v{b+6}, v{b+7}")
            a(f"v_cvt_pk_bf16_f32 v{o+6}, v{b+12}, v{b+13}")
            a(f"v_cvt_pk_bf16_f32 v{o+7}, v{b+14}, v{b+15}")
            sr = SRD_C + 4 * mi
            a(f"buffer_store_dwordx4 v[{o}:{o+3}], v{vST}, s[{sr}:{sr+3}], s{sT} offen sc1")
            a(f"buffer_store_dwordx4 v[{o+4}:{o+7}], v{vST}, s[{sr}:{sr+3}], s{sT} offen offset:512 sc1")
        a(f"s_mov_b32 s{sPrev}, s{sSeg}")
        a(f"s_mov_b32 s{sSeg}, s{sNext}")
        a(f"s_cmp_lt_u32 s{sSeg}, 64")
        a(f"s_cbranch_scc0 {LP}_end")
    a(f"s_branch {LP}")
    a(f"{LP}_end:")
    a("s_waitcnt vmcnt(0)")
    a("s_barrier")
    if flags:
        a(f"""
        s_cmp_eq_u32 s{w}, 0
        s_cbranch_scc0 {LP}_nfe
        s_lshl_b32 s{sT}, s{sHd}, 8
        s_lshl_b32 s{sT2}, s{sPrev}, 2
        s_add_u32 s{sT}, s{sT}, s{sT2}
        s_mov_b64 exec, 1
        v_mov_b32 v12, 1
        v_mov_b32 v13, 0
        buffer_store_dword v12, v13, s[{SRD_FL}:{SRD_FL+3}], s{sT} offen offset:{FL_KV} sc1
        s_mov_b64 exec, -1
        {LP}_nfe:
        """)

GS_A, GS_B = 12288, 16384
GS = GS_A + GS_B
GNS = 4

def emit_gemm(a, cfg, which):
    w = S_WAVE
    g4 = which == 4
    ntask = 216 if g4 else 192
    strideB = 9216 if g4 else 4096
    nst = 32 if g4 else 36
    tag = f"G{which}"
    sM0, sN0, sK0, sAo, sBo, sIt = 36, 37, 38, 39, 40, 41
    vDA = [1, 2, 3]; vDB = 4; vRA = 5; vRB = 6; vCA = 7; vCB = 8
    ACC = [16, 32, 48]; FA = [[64, 68, 72], [80, 84, 88]]; FB = [76, 92]
    a(f"s_cmp_lt_u32 s{sWK}, {ntask}")
    a(f"s_cbranch_scc0 {tag}_DONE")
    if g4:
        srd(a, SRD_A, S_WS, WS_HB, XN_SIZE); srd(a, SRD_B, S_W1, 0, 2048 * 4608 * 2)
        srd(a, SRD_C, S_WS, WS_UT, UT_SIZE); srd(a, SRD_D, S_B1, 0, 4608 * 2)
        a(f"""
        s_mul_hi_u32 s{sN0}, s{sWK}, {(1 << 32) // 6 + 1}
        s_mul_i32 s{sT}, s{sN0}, 6
        s_sub_u32 s{sM0}, s{sWK}, s{sT}
        s_mov_b32 s{sK0}, 0
        """)
    else:
        srd(a, SRD_A, S_WS, WS_UT, UT_SIZE); srd(a, SRD_B, S_W2, 0, 4608 * 2048 * 2)
        srd(a, SRD_C, S_WS, WS_P5, P5_SIZE)
        a(f"""
        s_mul_hi_u32 s{sT2}, s{sWK}, {(1 << 32) // 6 + 1}
        s_mul_i32 s{sT}, s{sT2}, 6
        s_sub_u32 s{sM0}, s{sWK}, s{sT}
        s_and_b32 s{sN0}, s{sT2}, 15
        s_lshr_b32 s{sK0}, s{sT2}, 4
        s_mov_b32 s42, s{sK0}
        s_mul_i32 s{sK0}, s{sK0}, 2304
        """)
    a(f"""
    s_mul_i32 s{sM0}, s{sM0}, 96
    s_lshl_b32 s{sN0}, s{sN0}, 7
    ; A DMA offsets: gamma = 64 i + l -> row = gamma / 12, col = gamma % 12
    """)
    for i in range(3):
        a(f"""
        v_add_u32 v10, {64*i}, v0
        v_mul_u32_u24 v11, 43691, v10
        v_lshrrev_b32 v11, 19, v11
        v_mul_u32_u24 v12, 12, v11
        v_sub_u32 v12, v10, v12
        v_mul_u32_u24 v11, 1152, v11
        v_lshl_add_u32 v{vDA[i]}, v12, 4, v11
        """)
    a(f"""
    v_lshrrev_b32 v10, 4, v0                 ; g
    v_and_b32 v11, 15, v0
    v_lshlrev_b32 v12, 2, v10
    v_xor_b32 v12, v12, v11
    v_mul_u32_u24 v13, {strideB}, v10
    v_lshl_add_u32 v{vDB}, v12, 4, v13
    v_lshrrev_b32 v12, 2, v11                ; rho
    v_lshrrev_b32 v13, 1, v10                ; g>>1
    v_lshl_or_b32 v13, v13, 3, v12
    v_and_b32 v14, 1, v10                    ; g&1
    v_and_b32 v15, 3, v0                     ; c'
    v_mul_u32_u24 v16, 192, v13
    v_lshl_add_u32 v16, v14, 5, v16
    v_lshl_add_u32 v{vRA}, v15, 3, v16
    s_lshl_b32 s{sT}, s{w}, 2
    v_lshlrev_b32 v16, 1, v14
    v_or_b32 v16, s{sT}, v16                 ; 4w + 2(g&1)
    v_lshrrev_b32 v17, 1, v15
    v_or_b32 v16, v16, v17                   ; q16
    v_lshlrev_b32 v17, 2, v12
    v_xor_b32 v16, v16, v17
    v_lshlrev_b32 v16, 4, v16
    v_lshl_add_u32 v16, v13, 8, v16
    v_and_b32 v17, 1, v15
    v_lshl_add_u32 v16, v17, 3, v16
    v_add_u32 v{vRB}, {GS_A}, v16
    s_lshl_b32 s{sT}, s{w}, 4
    s_add_u32 s{sT}, s{sT}, s{sK0}
    s_mul_i32 s{sAo}, s{sT}, 1152
    s_lshl_b32 s{sT2}, s{sM0}, 1
    s_add_u32 s{sAo}, s{sAo}, s{sT2}          ; (k0 + 16w)*1152 + m0*2
    s_mul_i32 s{sBo}, s{sT}, {strideB}
    s_lshl_b32 s{sT2}, s{sN0}, 1
    s_add_u32 s{sBo}, s{sBo}, s{sT2}          ; (k0 + 16w)*strideB + n0*2
    s_mul_i32 s43, s{w}, 3072
    s_lshl_b32 s44, s{w}, 12
    s_add_u32 s44, s44, {GS_A}
    """)
    if g4:
        L = a.label("G4W")
        a(f"""
        v_and_b32 v10, 15, v0
        v_lshlrev_b32 v10, 2, v10
        v_add_u32 v10, {DBG_LN}, v10
        s_mov_b32 s{S_TO}, 0
        {L}:
        buffer_load_dword v11, v10, s[{SRD_DBG}:{SRD_DBG+3}], 0 offen sc1
        s_waitcnt vmcnt(0)
        v_cmp_ne_u32 vcc, 0x01010101, v11
        s_cbranch_vccz {L}_ok
        s_sleep 4
        s_add_u32 s{S_TO}, s{S_TO}, 1
        s_cmp_lt_u32 s{S_TO}, {TIMEOUT}
        s_cbranch_scc1 {L}
        s_branch {WFAIL}
        {L}_ok:
        """)
    def issue(slot):
        fl = "sc1"
        for i in range(3):
            a(f"s_add_u32 m0, s43, {slot*GS + i*1024}")
            a(f"buffer_load_dwordx4 v{vDA[i]}, s[{SRD_A}:{SRD_A+3}], s{sAo} offen {fl} lds")
        for i in range(4):
            a(f"s_add_u32 m0, s44, {slot*GS + i*1024}")
            if i: a(f"s_add_u32 s{sT}, s{sBo}, {4*i*strideB}")
            a(f"buffer_load_dwordx4 v{vDB}, s[{SRD_B}:{SRD_B+3}], s{sT if i else sBo} offen lds")
        a(f"s_add_u32 s{sAo}, s{sAo}, {64*1152}")
        a(f"s_add_u32 s{sBo}, s{sBo}, {64*strideB}")
    a("s_barrier")
    for s_ in range(GNS - 1): issue(s_)
    for acc in ACC:
        for r in range(0, 16, 2): a(f"v_mov_b64 v[{acc+r}:{acc+r+1}], 0")
    LP = a.label(tag + "L")
    a(f"s_mov_b32 s{sIt}, 0")
    a(f"{LP}:")
    for slot in range(GNS):
        a(f"s_add_u32 s{sT2}, s{sIt}, {slot + GNS - 1}")
        a(f"s_cmp_lt_u32 s{sT2}, {nst}")
        a(f"s_cbranch_scc0 {LP}_t{slot}")
        a(f"s_waitcnt vmcnt({7*(GNS-2)})")
        a("s_barrier")
        issue((slot + GNS - 1) % GNS)
        a(f"s_branch {LP}_c{slot}")
        a(f"{LP}_t{slot}:")
        a("s_waitcnt vmcnt(0)")
        a("s_barrier")
        a(f"{LP}_c{slot}:")
        a(f"v_add_u32 v{vCA}, {slot*GS}, v{vRA}")
        a(f"v_add_u32 v{vCB}, {slot*GS}, v{vRB}")
        lg = Cnt(a, "lgkmcnt", 15)
        def rd(ks):
            b = ks & 1
            for p in range(2):
                lg.issue(('B', ks), f"ds_read_b64_tr_b16 v[{FB[b]+2*p}:{FB[b]+2*p+1}], v{vCB} offset:{(16*ks + 4*p)*256}")
            for mt in range(3):
                for p in range(2):
                    lg.issue(('A', ks, mt), f"ds_read_b64_tr_b16 v[{FA[b][mt]+2*p}:{FA[b][mt]+2*p+1}], v{vCA} offset:{(16*ks + 4*p)*192 + mt*64}")
        rd(0)
        for ks in range(4):
            b = ks & 1
            for mt in range(3):
                if mt == 0 and ks + 1 < 4:
                    lg.wait(('B', ks), ('A', ks, 0))
                    rd(ks + 1)
                lg.wait(('B', ks), ('A', ks, mt))
                a(f"v_mfma_f32_32x32x16_bf16 v[{ACC[mt]}:{ACC[mt]+15}], v[{FA[b][mt]}:{FA[b][mt]+3}], v[{FB[b]}:{FB[b]+3}], v[{ACC[mt]}:{ACC[mt]+15}]")
    a(f"s_add_u32 s{sIt}, s{sIt}, {GNS}")
    a(f"s_cmp_lt_u32 s{sIt}, {nst}")
    a(f"s_cbranch_scc1 {LP}")
    if g4:
        a(f"""
        v_and_b32 v10, 31, v0
        s_lshl_b32 s{sT}, s{w}, 5
        s_add_u32 s{sT}, s{sT}, s{sN0}
        v_add_u32 v10, s{sT}, v10                 ; f
        v_lshlrev_b32 v11, 1, v10
        buffer_load_ushort v12, v11, s[{SRD_D}:{SRD_D+3}], 0 offen
        v_mul_u32_u24 v13, 1152, v10
        v_lshrrev_b32 v14, 5, v0
        v_lshl_add_u32 v13, v14, 4, v13
        s_lshl_b32 s{sT}, s{sM0}, 1
        s_mov_b32 s{sT2}, {f32bits(0.044715):#x}
        s_mov_b32 s{sT3}, {f32bits(-2.0*0.7978845608028654*1.4426950408889634):#x}
        s_waitcnt vmcnt(0)
        v_lshlrev_b32 v12, 16, v12
        """)
        for mt in range(3):
            b = ACC[mt]
            for r in range(16):
                x = b + r
                a(f"v_add_f32 v{x}, v{x}, v12")
                a(f"v_mul_f32 v64, v{x}, v{x}")
                a(f"v_fma_f32 v64, v64, s{sT2}, 1.0")
                a(f"v_mul_f32 v64, v64, v{x}")
                a(f"v_mul_f32 v64, s{sT3}, v64")
                a(f"v_exp_f32 v64, v64")
                a(f"v_add_f32 v64, 1.0, v64")
                a(f"v_rcp_f32 v64, v64")
                a(f"v_mul_f32 v{x}, v{x}, v64")
            for pr in range(2):
                o = 68 + 4 * pr
                q0, q1 = b + 8 * pr, b + 8 * pr + 4
                a(f"v_cvt_pk_bf16_f32 v{o}, v{q0}, v{q0+1}")
                a(f"v_cvt_pk_bf16_f32 v{o+1}, v{q0+2}, v{q0+3}")
                a(f"v_cvt_pk_bf16_f32 v{o+2}, v{q1}, v{q1+1}")
                a(f"v_cvt_pk_bf16_f32 v{o+3}, v{q1+2}, v{q1+3}")
                a(f"v_permlane32_swap_b32 v{o}, v{o+2}")
                a(f"v_permlane32_swap_b32 v{o+1}, v{o+3}")
                a(f"buffer_store_dwordx4 v[{o}:{o+3}], v13, s[{SRD_C}:{SRD_C+3}], s{sT} offen offset:{mt*64 + pr*32} sc1")
    else:
        a(f"""
        v_and_b32 v10, 31, v0
        s_lshl_b32 s{sT}, s{w}, 5
        s_add_u32 s{sT}, s{sT}, s{sN0}
        v_add_u32 v10, s{sT}, v10                 ; token
        v_mul_u32_u24 v13, 2304, v10
        v_lshrrev_b32 v14, 5, v0
        v_lshl_add_u32 v13, v14, 4, v13
        s_mul_i32 s{sT}, s42, {2048*576*4}
        s_lshl_b32 s{sT2}, s{sM0}, 2
        s_add_u32 s{sT}, s{sT}, s{sT2}
        """)
        for mt in range(3):
            for q in range(4):
                b = ACC[mt] + 4 * q
                a(f"buffer_store_dwordx4 v[{b}:{b+3}], v13, s[{SRD_C}:{SRD_C+3}], s{sT} offen offset:{mt*128 + q*32} sc1")
    a(f"{tag}_DONE:")
    cnt = DBG_UREADY if g4 else DBG_G5DONE
    a(f"""
    s_waitcnt vmcnt(0)
    s_barrier
    s_cmp_eq_u32 s{w}, 0
    s_cbranch_scc0 {tag}_ANN
    s_mov_b64 exec, 1
    v_mov_b32 v10, 1
    v_mov_b32 v11, {cnt}
    buffer_atomic_add v10, v11, s[{SRD_DBG}:{SRD_DBG+3}], 0 offen
    s_mov_b64 exec, -1
    {tag}_ANN:
    """)

def emit_g4(a, cfg): emit_gemm(a, cfg, 4)

def emit_g5(a, cfg):
    a(f"v_mov_b32 v10, {DBG_UREADY}")
    poll_dword_eq(a, SRD_DBG, 10, 11, 224, WFAIL, "G5W", sleep=8)
    emit_gemm(a, cfg, 5)

def emit_g23(a, cfg):
    w = S_WAVE
    sHP, sGR, sSeg, sPrev, sHH, sQT, sKo, sNx = 36, 37, 38, 39, 40, 41, 42, 43
    SM = [44, 46, 48, 50]
    SRD_O, SRD_QKV, SRD_KM2, SRD_P3, SRD_X, SRD_P5, SRD_OUT = 8, 12, 16, 20, 52, 56, 60
    vL16, vT = 1, [2, 3, 4, 5]
    Q, K, V, KM, VM = 16, 32, 64, 96, 112
    SMm, SX0, SX1, PX, PM, O = 128, 132, 136, 140, 144, 148
    ACC, BF = 128, [200, 204, 208, 212]
    L_OI = 0
    STG0 = 16384
    NS = 8
    def wfrag(nti, kap):
        i = nti * 8 + kap
        if i < 64: return ('a', 4 * i)
        return ('v', 224 + 4 * (i - 64))
    srd(a, SRD_O, S_WO, 0, DM * H * DH * 2)
    a(f"""
    s_mul_hi_u32 s{sHP}, s{sWK}, {(1 << 32) // 14 + 1}
    s_mul_i32 s{sGR}, s{sHP}, 14
    s_sub_u32 s{sGR}, s{sWK}, s{sGR}
    s_lshr_b32 s{sHH}, s{w}, 1
    s_and_b32 s{sQT}, s{w}, 1
    v_lshlrev_b32 v{vL16}, 4, v0
    v_lshrrev_b32 v10, 3, v0
    v_mul_u32_u24 v11, 1152, v10
    v_and_b32 v10, 7, v0
    s_lshl_b32 s{sT}, s{w}, 1
    s_and_b32 s{sT}, s{sT}, 3
    s_lshl_b32 s{sT}, s{sT}, 1
    v_xor_b32 v12, s{sT}, v10
    v_lshl_add_u32 v6, v12, 4, v11
    s_lshl_b32 s{sT}, s{w}, 1
    s_add_u32 s{sT}, s{sT}, 1
    s_and_b32 s{sT}, s{sT}, 3
    s_lshl_b32 s{sT}, s{sT}, 1
    v_xor_b32 v12, s{sT}, v10
    v_lshl_add_u32 v7, v12, 4, v11
    v_lshrrev_b32 v10, 4, v0
    v_bfe_u32 v11, v0, 2, 2
    v_lshl_or_b32 v10, v10, 2, v11
    v_lshlrev_b32 v10, 7, v10
    v_and_b32 v11, 3, v0
    v_lshl_add_u32 v10, v11, 3, v10
    """)
    for sw in range(4):
        a(f"s_xor_b32 s{sT}, s{w}, {sw}")
        a(f"s_lshl_b32 s{sT}, s{sT}, 5")
        a(f"v_add_u32 v{vT[sw]}, s{sT}, v10")
    chunks = [(hh, cb) for hh in range(2) for cb in range(9)]
    a(f"""
    s_lshl_b32 s{sT2}, s{sHP}, 8
    s_lshl_b32 s{sT}, s{w}, 5
    s_add_u32 s{sT2}, s{sT2}, s{sT}
    s_mul_i32 s{sT2}, s{sT2}, 1152              ; (256hp + 32w)*1152
    s_lshl_b32 s{sT3}, s{w}, 12
    s_add_u32 s{sT3}, s{sT3}, {STG0}
    """)
    def issue(ci):
        hh, cb = chunks[ci]; slot = ci % NS
        for nl in range(4):
            a(f"s_add_u32 m0, s{sT3}, {slot*16384 + nl*1024}")
            a(f"s_add_u32 s{sT}, s{sT2}, {hh*128*1152 + cb*128 + nl*8*1152}")
            a(f"buffer_load_dwordx4 v{6 + (nl>>1)}, s[{SRD_O}:{SRD_O+3}], s{sT} offen lds")
    a("s_barrier")
    for ci in range(NS): issue(ci)
    for ci, (hh, cb) in enumerate(chunks):
        inflight = min(NS - 1 if ci == 0 else NS - 2, len(chunks) - 1 - ci)
        a(f"s_waitcnt vmcnt({4*inflight})")
        a("s_barrier")
        if ci >= 1 and ci + NS - 1 < len(chunks): issue(ci + NS - 1)
        base = STG0 + (ci % NS) * 16384
        for sw in range(4): a(f"v_add_u32 v{8+sw}, {base}, v{vT[sw]}")
        for wp in range(4):
            kind, rb = wfrag(cb, 4 * hh + wp)
            for p in range(2):
                sw = (2 * wp + p) & 3
                a(f"ds_read_b64_tr_b16 {kind}[{rb+2*p}:{rb+2*p+1}], v{8+sw} offset:{(32*wp + 16*p)*128}")
        a("s_waitcnt lgkmcnt(0)")
    a("s_barrier")
    srd(a, SRD_QKV, S_WS, WS_KX, 3 * QKV_SIZE)
    srd(a, SRD_KM2, S_WS, WS_KM, KM_SIZE)
    srd(a, SRD_P3, S_WS, WS_P3, P3_SIZE)
    srd(a, SRD_FL, S_WS, WS_FLAGS, FLAGS_SIZE)
    srd(a, SRD_X, S_X, 0, XN_SIZE)
    srd(a, SRD_P5, S_WS, WS_P5, P5_SIZE)
    srd(a, SRD_OUT, S_OUT, 0, XN_SIZE)
    srd(a, SRD_O, S_B2, 0, 2048 * 2)
    a(f"""
    v_and_b32 v10, 15, v0
    v_lshrrev_b32 v11, 4, v0
    v_lshlrev_b32 v11, 2, v11
    """)
    for r in range(4):
        a(f"v_add_u32 v12, {r}, v11")
        a(f"v_cmp_le_u32 s[{SM[r]}:{SM[r]+1}], v12, v10")
    a(f"""
    s_lshl_b32 s{sKo}, s{sHP}, 1
    s_add_u32 s{sKo}, s{sKo}, s{sHH}
    s_lshl_b32 s{sKo}, s{sKo}, 13               ; head*8192
    """)
    def qkv_issue(sseg):
        a(f"s_lshl_b32 s{sT}, s{sseg}, 18")
        a(f"s_add_u32 s{sT}, s{sT}, s{sKo}")
        for wp in range(4):
            for t in range(2):
                o = wp * 2048 + t * 1024
                a(f"s_add_u32 s{sT2}, s{sT}, {o}")
                a(f"buffer_load_dwordx4 v[{K+4*(2*wp+t)}:{K+4*(2*wp+t)+3}], v{vL16}, s[{SRD_QKV}:{SRD_QKV+3}], s{sT2} offen sc1")
                a(f"s_add_u32 s{sT2}, s{sT2}, {QKV_SIZE}")
                a(f"buffer_load_dwordx4 v[{V+4*(2*wp+t)}:{V+4*(2*wp+t)+3}], v{vL16}, s[{SRD_QKV}:{SRD_QKV+3}], s{sT2} offen sc1")
        a(f"s_lshl_b32 s{sT3}, s{sQT}, 10")
        a(f"s_add_u32 s{sT}, s{sT}, s{sT3}")
        a(f"s_add_u32 s{sT}, s{sT}, {2*QKV_SIZE}")
        for wp in range(4):
            a(f"s_add_u32 s{sT2}, s{sT}, {wp*2048}")
            a(f"buffer_load_dwordx4 v[{Q+4*wp}:{Q+4*wp+3}], v{vL16}, s[{SRD_QKV}:{SRD_QKV+3}], s{sT2} offen sc1")

    def reduce_final(sseg, name):
        L = a.label(name)
        a(f"s_cmp_lt_u32 s{sHP}, 9")
        a(f"s_cbranch_scc0 {L}_skip")
        a(f"""
        v_and_b32 v10, 15, v0
        v_lshlrev_b32 v10, 2, v10
        s_lshl_b32 s{sT}, s{sseg}, 6
        s_add_u32 s{sT}, s{sT}, {FL_G3}
        s_mov_b32 s{S_TO}, 0
        {L}:
        buffer_load_dword v11, v10, s[{SRD_FL}:{SRD_FL+3}], s{sT} offen sc1
        s_waitcnt vmcnt(0)
        v_cmp_ne_u32 vcc, 1, v11
        s_cbranch_vccz {L}_ok
        s_sleep 2
        s_add_u32 s{S_TO}, s{S_TO}, 1
        s_cmp_lt_u32 s{S_TO}, {TIMEOUT}
        s_cbranch_scc1 {L}
        s_branch {WFAIL}
        {L}_ok:
        s_lshl_b32 s{sT}, s{sHP}, 2
        s_add_u32 s{sT}, s{sT}, s{w}                 ; chunk
        s_mul_i32 s{sT2}, s{sseg}, {16*36864}
        s_lshl_b32 s{sT3}, s{sT}, 10
        s_add_u32 s{sT2}, s{sT2}, s{sT3}
        """)
        R = 128
        for p in range(16):
            a(f"buffer_load_dwordx4 v[{R+4*p}:{R+4*p+3}], v{vL16}, s[{SRD_P3}:{SRD_P3+3}], s{sT2} offen sc1")
            if p < 15: a(f"s_add_u32 s{sT2}, s{sT2}, 36864")
        a(f"""
        s_mul_hi_u32 s{sT2}, s{sT}, {(1 << 32) // 9 + 1}
        s_mul_i32 s{sT3}, s{sT2}, 9
        s_sub_u32 s{sT3}, s{sT}, s{sT3}
        s_lshl_b32 s{sT3}, s{sT3}, 2
        s_add_u32 s{sT3}, s{sT3}, s{sT2}              ; nt
        s_lshl_b32 s{sT3}, s{sT3}, 4                  ; 16 nt
        v_lshrrev_b32 v10, 4, v0
        v_lshlrev_b32 v10, 2, v10
        v_add_u32 v10, s{sT3}, v10                    ; n0
        v_and_b32 v11, 15, v0
        s_lshl_b32 s{sT}, s{sseg}, 5
        v_add_u32 v11, s{sT}, v11
        v_mul_u32_u24 v12, 576, v11
        v_add_u32 v12, v12, v10
        v_lshlrev_b32 v13, 1, v12
        v_lshlrev_b32 v14, 2, v12
        v_lshlrev_b32 v15, 1, v11
        s_mov_b32 s{sT}, {16*576*2}
        s_mov_b32 s{sT2}, {16*576*4}
        s_mov_b32 s{sT3}, {2048*576*4}
        s_add_u32 s{sT4}, s{sT3}, s{sT2}
        buffer_load_dwordx2 v[200:201], v13, s[{SRD_X}:{SRD_X+3}], 0 offen
        buffer_load_dwordx2 v[202:203], v13, s[{SRD_X}:{SRD_X+3}], s{sT} offen
        buffer_load_dwordx4 v[204:207], v14, s[{SRD_P5}:{SRD_P5+3}], 0 offen sc1
        buffer_load_dwordx4 v[208:211], v14, s[{SRD_P5}:{SRD_P5+3}], s{sT2} offen sc1
        buffer_load_dwordx4 v[212:215], v14, s[{SRD_P5}:{SRD_P5+3}], s{sT3} offen sc1
        buffer_load_dwordx4 v[216:219], v14, s[{SRD_P5}:{SRD_P5+3}], s{sT4} offen sc1
        buffer_load_ushort v220, v15, s[{SRD_O}:{SRD_O+3}], 0 offen
        buffer_load_ushort v221, v15, s[{SRD_O}:{SRD_O+3}], 0 offen offset:32
        s_mov_b32 s{sT2}, 0x00003f80
        s_mov_b32 s{sT3}, 0x3f800000
        s_waitcnt vmcnt(0)
        v_lshlrev_b32 v220, 16, v220
        v_lshlrev_b32 v221, 16, v221
        """)
        for t in range(2):
            for r in range(4):
                d = 96 + 4 * t + r
                a(f"v_add_f32 v{d}, v{204+4*t+r}, v{212+4*t+r}")
                a(f"v_add_f32 v{d}, v{d}, v{220+t}")
            for h2 in range(2):
                a(f"v_dot2_f32_bf16 v{96+4*t+2*h2}, v{200+2*t+h2}, s{sT2}, v{96+4*t+2*h2}")
                a(f"v_dot2_f32_bf16 v{96+4*t+2*h2+1}, v{200+2*t+h2}, s{sT3}, v{96+4*t+2*h2+1}")
        for p in range(16):
            for dd in range(4):
                a(f"v_dot2_f32_bf16 v{96+2*dd}, v{R+4*p+dd}, s{sT2}, v{96+2*dd}")
                a(f"v_dot2_f32_bf16 v{96+2*dd+1}, v{R+4*p+dd}, s{sT3}, v{96+2*dd+1}")
        a(f"""
        v_cvt_pk_bf16_f32 v104, v96, v97
        v_cvt_pk_bf16_f32 v105, v98, v99
        v_cvt_pk_bf16_f32 v106, v100, v101
        v_cvt_pk_bf16_f32 v107, v102, v103
        buffer_store_dwordx2 v[104:105], v13, s[{SRD_OUT}:{SRD_OUT+3}], 0 offen
        buffer_store_dwordx2 v[106:107], v13, s[{SRD_OUT}:{SRD_OUT+3}], s{sT} offen
        {L}_skip:
        """)

    a(f"v_mov_b32 v10, {DBG_G5DONE}")
    poll_dword_eq(a, SRD_DBG, 10, 11, 224, WFAIL, "G3W", sleep=8)
    LP = a.label("G23")
    a(f"s_mov_b32 s{sSeg}, s{sGR}")
    a(f"s_mov_b32 s{sPrev}, -1")
    qkv_issue(sSeg)
    a(f"{LP}:")
    a(f"""
    s_lshr_b32 s{sT}, s{sKo}, 5                  ; head*256
    s_lshl_b32 s{sT2}, s{sSeg}, 2
    s_add_u32 s{sT}, s{sT}, s{sT2}
    s_add_u32 s{sT}, s{sT}, {FL_KM}
    v_mov_b32 v10, s{sT}
    """)
    poll_dword_eq(a, SRD_FL, 10, 11, 1, WFAIL, "G2W", sleep=2)
    a(f"s_lshl_b32 s{sT}, s{sSeg}, 18")
    a(f"s_add_u32 s{sT}, s{sT}, s{sKo}")
    for wp in range(4):
        a(f"s_add_u32 s{sT2}, s{sT}, {wp*1024}")
        a(f"buffer_load_dwordx4 v[{KM+4*wp}:{KM+4*wp+3}], v{vL16}, s[{SRD_KM2}:{SRD_KM2+3}], s{sT2} offen sc1")
        a(f"s_add_u32 s{sT2}, s{sT2}, 4096")
        a(f"buffer_load_dwordx4 v[{VM+4*wp}:{VM+4*wp+3}], v{vL16}, s[{SRD_KM2}:{SRD_KM2+3}], s{sT2} offen sc1")
    a("s_waitcnt vmcnt(0)")
    for wp in range(4):
        qf = f"v[{Q+4*wp}:{Q+4*wp+3}]"
        for (D, A) in ((SMm, KM + 4 * wp), (SX0, K + 8 * wp), (SX1, K + 8 * wp + 4)):
            c = "0" if wp == 0 else f"v[{D}:{D+3}]"
            a(f"v_mfma_f32_16x16x32_bf16 v[{D}:{D+3}], v[{A}:{A+3}], {qf}, {c}")
    a(f"v_mov_b32 v10, 0xff800000")
    a(f"s_cmp_eq_u32 s{sQT}, 0")
    a(f"s_cbranch_scc0 {LP}_q1")
    for r in range(4):
        a(f"v_cndmask_b32 v{SX0+r}, v10, v{SX0+r}, s[{SM[r]}:{SM[r]+1}]")
        a(f"v_mov_b32 v{SX1+r}, v10")
    a(f"s_branch {LP}_qd")
    a(f"{LP}_q1:")
    for r in range(4):
        a(f"v_cndmask_b32 v{SX1+r}, v10, v{SX1+r}, s[{SM[r]}:{SM[r]+1}]")
    a(f"{LP}_qd:")
    a(f"""
    v_max3_f32 v11, v{SMm}, v{SMm+1}, v{SX0}
    v_max3_f32 v11, v11, v{SX0+1}, v{SX0+2}
    v_max3_f32 v11, v11, v{SX0+3}, v{SX1}
    v_max3_f32 v11, v11, v{SX1+1}, v{SX1+2}
    v_max_f32 v11, v11, v{SX1+3}
    v_mov_b32 v12, v11
    v_permlane16_swap_b32 v11, v12
    v_max_f32 v11, v11, v12
    v_mov_b32 v12, v11
    v_permlane32_swap_b32 v11, v12
    v_max_f32 v11, v11, v12
    """)
    vals = [SMm, SMm + 1] + [SX0 + r for r in range(4)] + [SX1 + r for r in range(4)]
    for x in vals:
        a(f"v_sub_f32 v{x}, v{x}, v11")
    for x in vals:
        a(f"v_exp_f32 v{x}, v{x}")
    a(f"""
    v_cvt_pk_bf16_f32 v{PX}, v{SX0}, v{SX0+1}
    v_cvt_pk_bf16_f32 v{PX+1}, v{SX0+2}, v{SX0+3}
    v_cvt_pk_bf16_f32 v{PX+2}, v{SX1}, v{SX1+1}
    v_cvt_pk_bf16_f32 v{PX+3}, v{SX1+2}, v{SX1+3}
    v_cvt_pk_bf16_f32 v{PM}, v{SMm}, v{SMm+1}
    v_cvt_pk_bf16_f32 v{PM+1}, v{SMm}, v{SMm+1}
    s_mov_b32 s{sT}, 0x3f803f80
    v_mov_b32 v12, 0
    v_dot2_f32_bf16 v12, v{PX}, s{sT}, v12
    v_dot2_f32_bf16 v12, v{PX+1}, s{sT}, v12
    v_dot2_f32_bf16 v12, v{PX+2}, s{sT}, v12
    v_dot2_f32_bf16 v12, v{PX+3}, s{sT}, v12
    v_dot2_f32_bf16 v12, v{PM}, s{sT}, v12
    """)
    for wp in range(4):
        for t in range(2):
            D = O + 4 * (2 * wp + t)
            a(f"v_mfma_f32_16x16x32_bf16 v[{D}:{D+3}], v[{V+4*(2*wp+t)}:{V+4*(2*wp+t)+3}], v[{PX}:{PX+3}], 0")
    for wp in range(4):
        for t in range(2):
            D = O + 4 * (2 * wp + t)
            a(f"v_mfma_f32_16x16x16_bf16 v[{D}:{D+3}], v[{VM+4*wp+2*t}:{VM+4*wp+2*t+1}], v[{PM}:{PM+1}], v[{D}:{D+3}]")
    a(f"""
    v_mov_b32 v13, v12
    v_permlane16_swap_b32 v12, v13
    v_add_f32 v12, v12, v13
    v_mov_b32 v13, v12
    v_permlane32_swap_b32 v12, v13
    v_add_f32 v12, v12, v13
    v_rcp_f32 v12, v12
    s_lshl_b32 s{sT}, s{sHH}, 13
    s_lshl_b32 s{sT2}, s{sQT}, 10
    s_add_u32 s{sT}, s{sT}, s{sT2}
    v_add_u32 v13, s{sT}, v{vL16}
    """)
    for wp in range(4):
        for t in range(2):
            D = O + 4 * (2 * wp + t)
            for r in range(4): a(f"v_mul_f32 v{D+r}, v{D+r}, v12")
        D0 = O + 8 * wp
        a(f"v_cvt_pk_bf16_f32 v{D0}, v{D0}, v{D0+1}")
        a(f"v_cvt_pk_bf16_f32 v{D0+1}, v{D0+2}, v{D0+3}")
        a(f"v_cvt_pk_bf16_f32 v{D0+2}, v{D0+4}, v{D0+5}")
        a(f"v_cvt_pk_bf16_f32 v{D0+3}, v{D0+6}, v{D0+7}")
        a(f"ds_write_b128 v13, v[{D0}:{D0+3}] offset:{L_OI + wp*2048}")
    a("s_waitcnt lgkmcnt(0)")
    a("s_barrier")
    a(f"s_add_u32 s{sNx}, s{sSeg}, 14")
    a(f"s_cmp_lt_u32 s{sNx}, 64")
    a(f"s_cbranch_scc0 {LP}_np")
    qkv_issue(sNx)
    a(f"{LP}_np:")
    lg = Cnt(a, "lgkmcnt", 15)
    seq = [(kap, qt) for kap in range(8) for qt in range(2)]
    def bread(n):
        kap, qt = seq[n]
        lg.issue(n, f"ds_read_b128 v[{BF[n%4]}:{BF[n%4]+3}], v{vL16} offset:{L_OI + kap*2048 + qt*1024}")
    for n in range(3): bread(n)
    for n, (kap, qt) in enumerate(seq):
        if n + 3 < len(seq): bread(n + 3)
        lg.wait(n)
        for i in range(9):
            kind, rb = wfrag(i, kap)
            D = ACC + 8 * i + 4 * qt
            c = "0" if kap == 0 else f"v[{D}:{D+3}]"
            a(f"v_mfma_f32_16x16x32_bf16 v[{D}:{D+3}], {kind}[{rb}:{rb+3}], v[{BF[n%4]}:{BF[n%4]+3}], {c}")
    a(f"""
    s_lshl_b32 s{sT}, s{sSeg}, 4
    s_add_u32 s{sT}, s{sT}, s{sHP}
    s_mul_i32 s{sT}, s{sT}, 36864
    s_mul_i32 s{sT2}, s{w}, 9216
    s_add_u32 s{sT}, s{sT}, s{sT2}
    """)
    for i in range(9):
        D = ACC + 8 * i
        a(f"v_cvt_pk_bf16_f32 v{D}, v{D}, v{D+1}")
        a(f"v_cvt_pk_bf16_f32 v{D+1}, v{D+2}, v{D+3}")
        a(f"v_cvt_pk_bf16_f32 v{D+2}, v{D+4}, v{D+5}")
        a(f"v_cvt_pk_bf16_f32 v{D+3}, v{D+6}, v{D+7}")
        a(f"buffer_store_dwordx4 v[{D}:{D+3}], v{vL16}, s[{SRD_P3}:{SRD_P3+3}], s{sT} offen sc1")
        if i < 8: a(f"s_add_u32 s{sT}, s{sT}, 1024")
    a("s_waitcnt vmcnt(0)")
    a("s_barrier")
    a(f"""
    s_cmp_eq_u32 s{w}, 0
    s_cbranch_scc0 {LP}_nf
    s_lshl_b32 s{sT}, s{sSeg}, 4
    s_add_u32 s{sT}, s{sT}, s{sHP}
    s_lshl_b32 s{sT}, s{sT}, 2
    s_mov_b64 exec, 1
    v_mov_b32 v10, 1
    v_mov_b32 v11, 0
    buffer_store_dword v10, v11, s[{SRD_FL}:{SRD_FL+3}], s{sT} offen offset:0 sc1
    s_mov_b64 exec, -1
    {LP}_nf:
    """.replace("s{sT} offen offset:0 sc1", "s{sT} offen sc1").replace("{sT}", str(sT)) if False else f"""
    s_cmp_eq_u32 s{w}, 0
    s_cbranch_scc0 {LP}_nf
    s_lshl_b32 s{sT}, s{sSeg}, 4
    s_add_u32 s{sT}, s{sT}, s{sHP}
    s_lshl_b32 s{sT}, s{sT}, 2
    s_add_u32 s{sT}, s{sT}, {FL_G3}
    s_mov_b64 exec, 1
    v_mov_b32 v10, 1
    v_mov_b32 v11, 0
    buffer_store_dword v10, v11, s[{SRD_FL}:{SRD_FL+3}], s{sT} offen sc1
    s_mov_b64 exec, -1
    {LP}_nf:
    """)
    a(f"s_cmp_lt_i32 s{sPrev}, 0")
    a(f"s_cbranch_scc1 {LP}_nr")
    reduce_final(sPrev, "G3R")
    a(f"{LP}_nr:")
    a(f"s_mov_b32 s{sPrev}, s{sSeg}")
    a(f"s_mov_b32 s{sSeg}, s{sNx}")
    a(f"s_cmp_lt_u32 s{sSeg}, 64")
    a(f"s_cbranch_scc1 {LP}")
    reduce_final(sPrev, "G3E")
    a("s_waitcnt vmcnt(0)")
```

```python
import sys
from asmlib import Asm
from layout import *
from common import *
import chain, worker

NAME = "parallel_sum__memory_aug_recurrent_mem_tr__mixer_token_mlp__prompt_kernel"

def build(cfg, name=NAME, header=True):
    a = Asm()
    if header:
        a.raw("; memory-augmented recurrent attention + token-mixer MLP, one persistent launch")
        a.raw("; @launch grid=(256,1,1) block=(256,1,1) lds=163840")
    a.raw('.amdgcn_target "amdgcn-amd-amdhsa--gfx950"')
    a.raw(".text")
    a.raw(f".globl {name}")
    a.raw(".p2align 8")
    a.raw(f".type {name},@function")
    a(f"{name}:")
    emit_entry(a)
    a("ROLE_WORKER:")
    ph = cfg.get('phases', 'ln,kv,q,g4,g5,g23').split(',') if isinstance(cfg.get('phases', ''), str) else cfg['phases']
    worker.wstamp(a, cfg, 0)
    if 'ln' in ph: worker.emit_ln(a, cfg)
    worker.wstamp(a, cfg, 1)
    if 'kv' in ph: worker.emit_g1(a, cfg, [('k', S_WK, WS_KX, 'K'), ('v', S_WV, WS_VX, 'V')], "KV")
    worker.wstamp(a, cfg, 2)
    if 'q' in ph: worker.emit_g1(a, cfg, [('q', S_WQ, WS_QX, 'K')], "Q")
    worker.wstamp(a, cfg, 3)
    if 'g4' in ph: worker.emit_g4(a, cfg)
    worker.wstamp(a, cfg, 4)
    if 'g5' in ph: worker.emit_g5(a, cfg)
    worker.wstamp(a, cfg, 5)
    if 'g23' in ph: worker.emit_g23(a, cfg)
    worker.wstamp(a, cfg, 6)
    a("s_branch END")
    a("W_FAIL:")
    a(f"""
    s_mov_b64 exec, 1
    v_mov_b32 v1, 0xbad
    v_mov_b32 v2, {DBG_FAIL}
    buffer_store_dword v1, v2, s[{SRD_DBG}:{SRD_DBG+3}], 0 offen
    s_waitcnt vmcnt(0)
    s_branch END
    """)
    if cfg.get('nochain'):
        a("ROLE_CHAIN:")
        a(f"""
        s_cmp_eq_u32 s{S_WAVE}, 0
        s_cbranch_scc0 END
        s_mov_b64 exec, 1
        v_mov_b32 v1, 1
        v_mov_b32 v2, {DBG_CINIT}
        buffer_atomic_add v1, v2, s[{SRD_DBG}:{SRD_DBG+3}], 0 offen
        s_waitcnt vmcnt(0)
        s_branch END
        """)
    else:
        chain.emit_chain(a, cfg)
    a("END:")
    a("s_endpgm")
    a.raw('.section .rodata,"a"')
    a.raw(".p2align 6")
    a.raw(f""".amdhsa_kernel {name}
  .amdhsa_next_free_vgpr 512
  .amdhsa_next_free_sgpr 102
  .amdhsa_accum_offset 256
  .amdhsa_group_segment_fixed_size 0
  .amdhsa_kernarg_size 120
  .amdhsa_user_sgpr_count 2
  .amdhsa_user_sgpr_kernarg_segment_ptr 1
  .amdhsa_system_sgpr_workgroup_id_x 1
.end_amdhsa_kernel""")
    return a.text()

if __name__ == "__main__":
    cfg = {}
    for arg in sys.argv[2:]:
        k, v = arg.split("=")
        if k == "stamps": cfg[k] = v.split(",")
        elif k == "phases": cfg[k] = v
        else: cfg[k] = int(v)
    open(sys.argv[1], "w").write(build(cfg))
```

```python
import re

TRANS = ("v_exp_f32", "v_log_f32", "v_rcp_f32", "v_rsq_f32", "v_sqrt_f32", "v_sin_f32", "v_cos_f32")

def _regs(tok):
    tok = tok.strip()
    neg = tok.startswith("-")
    if neg: tok = tok[1:]
    if tok.startswith("abs(") and tok.endswith(")"): tok = tok[4:-1]
    if tok.startswith("|") and tok.endswith("|"): tok = tok[1:-1]
    m = re.fullmatch(r"([vas])(\d+)", tok)
    if m: return [(m.group(1), int(m.group(2)))]
    m = re.fullmatch(r"([vas])\[(\d+):(\d+)\]", tok)
    if m: return [(m.group(1), i) for i in range(int(m.group(2)), int(m.group(3)) + 1)]
    if tok == "vcc": return [("s", "vcc_lo"), ("s", "vcc_hi")]
    if tok in ("vcc_lo", "vcc_hi"): return [("s", tok)]
    if tok == "exec": return [("s", "exec_lo"), ("s", "exec_hi")]
    if tok in ("exec_lo", "exec_hi"): return [("s", tok)]
    if tok == "m0": return [("s", "m0")]
    return []

def split_ops(rest):
    ops = []; depth = 0; cur = ""
    for ch in rest:
        if ch in "[(": depth += 1
        if ch in "])": depth -= 1
        if ch == "," and depth == 0:
            ops.append(cur.strip()); cur = ""
        else:
            cur += ch
    if cur.strip(): ops.append(cur.strip())
    mods = ""
    if ops:
        last = ops[-1]
        parts = last.split()
        if len(parts) > 1:
            ops[-1] = parts[0]; mods = " ".join(parts[1:])
    return ops, mods

class Ins:
    __slots__ = ("text", "op", "ops", "mods", "kind", "wr", "rd", "passes", "isdpp", "srcC", "srcAB", "nopn", "store_data", "sgpr_rd")
    def __init__(self, text):
        self.text = text
        t = text.split(";")[0].strip()
        sp = t.split(None, 1)
        self.op = sp[0]
        rest = sp[1] if len(sp) > 1 else ""
        self.ops, self.mods = split_ops(rest)
        self.wr = []; self.rd = []; self.passes = 0; self.srcC = []; self.srcAB = []
        self.isdpp = False; self.nopn = 1; self.store_data = []
        op = self.op; ops = self.ops
        R = lambda i: _regs(ops[i]) if i < len(ops) else []
        if op.startswith("v_mfma") or op.startswith("v_smfmac"):
            self.kind = "mfma"
            if "32x32" in op: self.passes = 8
            else: self.passes = 4
            self.wr = R(0)
            self.srcAB = R(1) + R(2)
            if op.startswith("v_smfmac"):
                self.srcC = R(0); self.srcAB += R(3)
            else:
                self.srcC = R(3)
            self.rd = self.srcAB + self.srcC
        elif op.startswith("v_"):
            self.kind = "valu"
            self.isdpp = any(k in self.mods for k in ("quad_perm", "row_", "wave_", "row_bcast")) or op.endswith("_dpp")
            if op.startswith("v_cmp"):
                self.wr = R(0)
                self.rd = sum((R(i) for i in range(1, len(ops))), [])
                if op.startswith("v_cmpx"): self.wr = self.wr + _regs("exec")
            elif op.startswith("v_permlane32_swap") or op.startswith("v_permlane16_swap"):
                self.wr = R(0) + R(1); self.rd = R(0) + R(1)
            elif op.startswith("v_readfirstlane") or op.startswith("v_readlane"):
                self.wr = R(0); self.rd = sum((R(i) for i in range(1, len(ops))), [])
            elif "_co_" in op and not op.startswith("v_addc") and not op.startswith("v_subb"):
                self.wr = R(0) + R(1); self.rd = sum((R(i) for i in range(2, len(ops))), [])
            elif op.startswith("v_addc") or op.startswith("v_subb"):
                self.wr = R(0) + R(1); self.rd = sum((R(i) for i in range(2, len(ops))), [])
            else:
                self.wr = R(0)
                self.rd = sum((R(i) for i in range(1, len(ops))), [])
                if op.startswith("v_fmac") or op.startswith("v_dot2c") or op.startswith("v_pk_fmac") or op.startswith("v_writelane") or self.isdpp:
                    self.rd = self.rd + R(0)
                if op.startswith("v_cndmask") and len(ops) == 3:
                    self.rd = self.rd + _regs("vcc")
        elif op.startswith("buffer_") or op.startswith("global_"):
            self.kind = "vmem"
            isl = "_load" in op; iss = "_store" in op; isa = "atomic" in op
            lds = " lds" in (" " + self.mods) or "load_lds" in op
            if op.startswith("buffer_"):
                if op in ("buffer_inv", "buffer_wbl2"):
                    pass
                elif isl and lds:
                    self.rd = sum((R(i) for i in range(0, len(ops))), []) + _regs("m0")
                elif isl:
                    self.wr = R(0); self.rd = sum((R(i) for i in range(1, len(ops))), [])
                else:
                    self.rd = sum((R(i) for i in range(0, len(ops))), [])
                    self.store_data = R(0)
                    if isa and "sc0" in self.mods: self.wr = R(0)
            else:
                if isl and lds:
                    self.rd = sum((R(i) for i in range(0, len(ops))), []) + _regs("m0")
                elif isl:
                    self.wr = R(0); self.rd = sum((R(i) for i in range(1, len(ops))), [])
                elif isa and "sc0" in self.mods:
                    self.wr = R(0); self.rd = sum((R(i) for i in range(1, len(ops))), [])
                else:
                    self.rd = sum((R(i) for i in range(0, len(ops))), [])
                    self.store_data = R(1)
        elif op.startswith("ds_"):
            self.kind = "ds"
            if op.startswith("ds_read") or op.startswith("ds_bpermute") or op.startswith("ds_swizzle") or op.startswith("ds_permute"):
                self.wr = R(0); self.rd = sum((R(i) for i in range(1, len(ops))), [])
            else:
                self.rd = sum((R(i) for i in range(0, len(ops))), [])
        elif op.startswith("s_"):
            self.kind = "salu"
            if op == "s_nop":
                self.nopn = int(ops[0], 0) + 1
            elif op in ("s_waitcnt", "s_barrier", "s_endpgm", "s_branch", "s_sleep", "s_setprio") or op.startswith("s_cbranch"):
                pass
            elif op.startswith("s_cmp") or op.startswith("s_bitcmp"):
                self.rd = sum((R(i) for i in range(0, len(ops))), [])
            else:
                self.wr = R(0); self.rd = sum((R(i) for i in range(1, len(ops))), [])
                if "saveexec" in op: self.wr = self.wr + _regs("exec"); self.rd += _regs("exec")
        else:
            raise ValueError("unknown instr: " + text)

def _ov(a, b):
    if not a or not b: return False
    sb = set(b)
    return any(x in sb for x in a)

def _vonly(l): return [x for x in l if x[0] in "va"]
def _sonly(l): return [x for x in l if x[0] == "s"]

def need_states(prod, cons):
    n = 0
    pk, ck = prod.kind, cons.kind
    if pk == "valu":
        pw_v = _vonly(prod.wr); pw_s = _sonly(prod.wr)
        if ck == "mfma" and _ov(pw_v, cons.rd): n = max(n, 2)
        if ck == "valu":
            if cons.isdpp and _ov(pw_v, cons.rd): n = max(n, 2)
            if cons.op.startswith("v_permlane") and _ov(pw_v, cons.rd): n = max(n, 2)
            if (cons.op.startswith("v_readlane") or cons.op.startswith("v_readfirstlane")) and _ov(pw_v, cons.rd): n = max(n, 1)
            if prod.op.startswith(TRANS) and not cons.op.startswith(TRANS) and _ov(pw_v, cons.rd): n = max(n, 1)
            if _ov(pw_s, _sonly(cons.rd)): n = max(n, 2)
            if (cons.op.startswith("v_readlane") or cons.op.startswith("v_writelane")) and _ov(pw_s, _sonly(cons.rd)): n = max(n, 4)
            if _ov(pw_s, _regs("exec")):
                if cons.isdpp: n = max(n, 5)
                if cons.op.startswith("v_permlane") or cons.op.startswith("v_read"): n = max(n, 4)
            if ("sdwa" in prod.op or "op_sel" in prod.mods) and (_ov(pw_v, cons.rd) or _ov(pw_v, cons.wr)): n = max(n, 1)
        if prod.op.startswith("v_dot"):
            if ck == "valu" and cons.op == prod.op:
                srcs = cons.rd[:-len(pw_v)] if False else None
                ab = []
                for o in cons.ops[1:3]: ab += _regs(o)
                if _ov(pw_v, ab): n = max(n, 3)
            elif ck in ("valu", "mfma", "vmem", "ds") and (_ov(pw_v, cons.rd) or _ov(pw_v, cons.wr)): n = max(n, 3)
        if ck == "mfma" and _ov(pw_s, _regs("exec")): n = max(n, 4)
        if ck == "vmem" and _ov(pw_s, _sonly(cons.rd)): n = max(n, 5)
        if ck == "salu" and _ov(pw_s, cons.rd): n = max(n, 1)
        if ck == "salu" and cons.op.startswith("s_cbranch_vcc") and _ov(pw_s, _regs("vcc")): n = max(n, 1)
        if ck == "salu" and cons.op.startswith("s_cbranch_exec") and _ov(pw_s, _regs("exec")): n = max(n, 5)
    if pk == "mfma":
        P = prod.passes
        D = prod.wr
        if ck == "mfma":
            if _ov(D, cons.srcC):
                same = (cons.srcC == D and cons.op == prod.op)
                if not same: n = max(n, {4: 6, 8: 10}[P])
            if _ov(D, cons.srcAB): n = max(n, {4: 8, 8: 12}[P])
            if _ov(D, cons.wr) and not _ov(D, cons.srcC): n = max(n, {4: 6, 8: 10}[P])
        elif ck == "valu":
            if _ov(D, cons.rd) or _ov(D, cons.wr): n = max(n, {4: 8, 8: 12}[P])
            if _ov(prod.srcC, cons.wr): n = max(n, {4: 3, 8: 7}[P])
        elif ck in ("vmem", "ds"):
            if _ov(D, cons.rd) or _ov(D, cons.wr): n = max(n, {4: 8, 8: 12}[P])
            if _ov(prod.srcC, cons.wr): n = max(n, {4: 3, 8: 7}[P])
    if pk == "vmem" and prod.store_data and len(prod.store_data) >= 3:
        if _ov(prod.store_data, cons.wr): n = max(n, 2)
    if pk == "salu":
        if _ov(prod.wr, [("s", "m0")]) and ck == "vmem" and _ov([("s", "m0")], cons.rd): n = max(n, 1)
    return n

WINDOW = 14

class Asm:
    def __init__(self):
        self.items = []
        self._uid = 0
    def __call__(self, s):
        for line in s.split("\n"):
            line = line.strip()
            if line: self.items.append(line)
    def label(self, base="L"):
        self._uid += 1
        return f"{base}_{self._uid}"
    def raw(self, s): self.items.append("\x00" + s)

    @staticmethod
    def _is_label(l): return re.fullmatch(r"[\w.$]+:", l) is not None
    @staticmethod
    def _is_ins(l):
        if l.startswith("\x00") or l.startswith(";") or l.startswith("."): return False
        if re.fullmatch(r"[\w.$]+:", l): return False
        return True

    def resolve(self):
        def nops(n):
            r = []
            while n > 0:
                k = min(n, 16); r.append(f"s_nop {k-1}"); n -= k
            return r
        def window(parsed, i):
            out = []; d = 0; j = i - 1
            while j >= 0 and d < WINDOW:
                p = parsed[j]
                if p is not None:
                    if p.op in ("s_branch", "s_endpgm", "s_setpc_b64"): break
                    out.append((p, d)); d += p.nopn
                j -= 1
            return out
        items = []; parsed = []
        for l in self.items:
            if not self._is_ins(l):
                items.append(l); parsed.append(None); continue
            c = Ins(l)
            need = 0
            for p, d in window(parsed, len(parsed)):
                need = max(need, need_states(p, c) - d)
            for n in nops(need):
                items.append(n); parsed.append(Ins(n))
            items.append(l); parsed.append(c)
        for _ in range(8):
            labels = {l[:-1]: i for i, l in enumerate(items) if self._is_label(l)}
            ins = {}
            for i, c in enumerate(parsed):
                if c is None or not (c.op == "s_branch" or c.op.startswith("s_cbranch")): continue
                tgt = labels.get(c.ops[0])
                if tgt is None: continue
                win = [(p, d + 1) for p, d in window(parsed, i)]
                d0 = 0; j = tgt; need = 0
                while j < len(items) and d0 < WINDOW:
                    q = parsed[j]
                    if q is not None:
                        for p, d in win:
                            need = max(need, need_states(p, q) - (d + d0))
                        if q.op in ("s_branch", "s_endpgm"): break
                        d0 += q.nopn
                    j += 1
                if need > 0: ins[i] = need
            if not ins: break
            ni = []; np_ = []
            for i, l in enumerate(items):
                if i in ins:
                    for n in nops(ins[i]):
                        ni.append(n); np_.append(Ins(n))
                ni.append(l); np_.append(parsed[i])
            items, parsed = ni, np_
        else:
            raise RuntimeError("hazard resolution did not converge")
        return items

    def text(self):
        out = []
        for l in self.resolve():
            if l.startswith("\x00"): out.append(l[1:])
            elif self._is_label(l) or l.startswith("."): out.append(l)
            else: out.append("  " + l)
        return "\n".join(out) + "\n"

class Cnt:
    def __init__(self, a, name, maxn):
        self.a = a; self.name = name; self.maxn = maxn; self.q = []
    def issue(self, tag, text):
        self.a(text)
        if text.startswith("s_nop"): return
        self.q.append(tag)
        assert len(self.q) <= self.maxn, f"{self.name} counter overflow: {self.q}"
    def wait(self, *tags):
        idx = [i for i, t in enumerate(self.q) if t in tags]
        if not idx: return
        last = max(idx)
        n = len(self.q) - 1 - last
        self.a(f"s_waitcnt {self.name}({n})")
        self.q = self.q[last + 1:]
    def wait_all(self):
        self.a(f"s_waitcnt {self.name}(0)"); self.q = []
    def assume_empty(self): self.q = []
```

```python
from layout import *
from common import *
from asmlib import Cnt
import struct

SRD_H1, SRD_H2, SRD_KV, SRD_KM, SRD_FL = 8, 12, 16, 20, 24
SRD_W = {'q': 36, 'k': 40, 'v': 44, 'o': 48}
SRD_T = 52
sH, sSTEP, sT = 32, 33, 35
sKX, sKMO, sH1B, sRH1, sRH2, sRED, sH1S, sWB = 56, 57, 58, 59, 60, 61, 62, 63
sT2, sT3, sSLOW = 98, 99, 97
sR = [36, 37, 38, 39]
sH1P = [40, 41, 42, 43]
sOW = 44
sCS = 46
sG = [48, 49, 50]
sFLN = 51
sWARM = 45
sKXS, sVXS, sKMS, sVMS, sFKM, sONE, sSELC = 64, 65, 66, 67, 68, 69, 70
sM0W, sFLV, sWRM, sWRMX, sG3 = 71, 80, 81, 82, 83
S_FLP = 84
sSELM = 72

vT0, vIDX, vF, vL16, vSW, vSWm, vL4b, vW, vRD, vH2, vT1 = 0, 1, 2, 4, 5, 6, 7, 8, 9, 10, 11
A_BUF = [12, 16, 20]
ACCQ, ACCK, ACCV = 24, 32, 40
STG = [48, 56]
KX, VX = 64, 72
WV0 = 80

def tile_reg(i):
    if i < 32: return f"a[{8*i}:{8*i+7}]", ('a', 8 * i)
    b = WV0 + 8 * (i - 32)
    return f"v[{b}:{b+7}]", ('v', b)

REG_TILE = {}
for ci, c in enumerate(REG_CHUNKS):
    for tt in range(2):
        REG_TILE[(c, tt)] = 2 * ci + tt
LDS_SLOT = {c: i for i, c in enumerate(LDS_CHUNKS)}

def stamp_txt(cfg, name):
    st = cfg.get('stamps')
    if st and name in st:
        i = st.index(name)
        if name.startswith("cnt_"): return f"s_mov_b32 s{STAMP_REGS[i]}, s{S_TO}"
        return f"s_memtime s[{STAMP_REGS[i]}:{STAMP_REGS[i]+1}]"
    return ""
STAMP_REGS = [4, 6, 52, 54, 86, 88, 90, 92, 46]

def stamp(a, cfg, name):
    t = stamp_txt(cfg, name)
    if t: a(t)

def dump_stamps(a, cfg):
    if not cfg.get('stamps'): return ""
    L = a.label("CH_DS")
    if cfg.get('stamp_all'):
        t = [f"s_cmp_eq_u32 s{sSTEP}, {cfg.get('stamp_step', 32)}", f"s_cbranch_scc0 {L}",
             f"s_cmp_lt_u32 s{S_WAVE}, 2", f"s_cbranch_scc0 {L}",
             "s_waitcnt lgkmcnt(0)", f"s_mul_i32 s{sT}, s{S_WAVE}, 40", f"s_mul_i32 s{sT2}, s{sH}, 80", f"s_add_u32 s{sT}, s{sT}, s{sT2}",
             f"s_add_u32 s{sT}, s{sT}, {FL_G3}", "s_mov_b64 exec, 1"]
        for i in range(len(cfg['stamps'])):
            t += [f"v_mov_b32 v0, s{STAMP_REGS[i]}", f"v_mov_b32 v11, {4*i}",
                  f"buffer_store_dword v0, v11, s[{SRD_FL}:{SRD_FL+3}], s{sT} offen"]
        t += ["s_mov_b64 exec, -1", f"{L}:"]
        return "\n".join(t)
    t = [f"s_cmp_eq_u32 s{sSTEP}, {cfg.get('stamp_step', 32)}", f"s_cbranch_scc0 {L}",
         f"s_cmp_eq_u32 s{sH}, {cfg.get('stamp_h', 0)}", f"s_cbranch_scc0 {L}",
         "s_waitcnt lgkmcnt(0)", f"s_mul_i32 s{sT}, s{S_WAVE}, 40", f"s_add_u32 s{sT}, s{sT}, 96", "s_mov_b64 exec, 1"]
    for i in range(len(cfg['stamps'])):
        t += [f"s_sub_u32 s{sT2}, s{STAMP_REGS[i]}, s{STAMP_REGS[0]}", f"v_mov_b32 v0, s{sT2}", f"v_mov_b32 v11, {4*i}",
              f"buffer_store_dword v0, v11, s[{SRD_DBG}:{SRD_DBG+3}], s{sT} offen"]
    t += ["s_mov_b64 exec, -1", f"{L}:"]
    return "\n".join(t)

def emit_chain_setup(a, cfg):
    a(f"s_mov_b32 s{sH}, s{S_ROLE}")
    srd(a, SRD_H1, S_WS, WS_H1, H1_SIZE)
    srd(a, SRD_H2, S_WS, WS_H2, H2_SIZE)
    srd(a, SRD_KV, S_WS, WS_KX, 2 * QKV_SIZE)
    srd(a, SRD_KM, S_WS, WS_KM, KM_SIZE)
    srd(a, SRD_FL, S_WS, WS_FLAGS, FLAGS_SIZE)
    wsz = DM * H * DH * 2
    srd(a, SRD_W['q'], S_WQ, 0, wsz)
    srd(a, SRD_W['k'], S_WK, 0, wsz)
    srd(a, SRD_W['v'], S_WV, 0, wsz)
    srd(a, SRD_W['o'], S_WO, 0, wsz)
    srd(a, SRD_T, S_MEM0, 0, M * DM * 2)
    w = S_WAVE
    a(f"""
    v_lshlrev_b32 v{vL16}, 4, v0
    v_lshlrev_b32 v{vL4b}, 2, v0
    v_mov_b32 v12, 0
    v_mov_b32 v13, 0
    v_mov_b32 v14, 0
    v_mov_b32 v15, 0
    v_and_b32 v16, 31, v0
    v_lshlrev_b32 v16, 4, v16
    v_lshrrev_b32 v17, 5, v0
    v_lshlrev_b32 v17, 14, v17          ; (lane>>5)*16384
    v_add_u32 v16, v16, v17
    s_lshl_b32 s{sT}, s{sH}, 9
    s_lshl_b32 s{sT2}, s{w}, 15         ; w*2*16384
    s_add_u32 s{sT}, s{sT}, s{sT2}
    """)
    for i in range(3):
        if i == 2:
            a(f"s_cmp_eq_u32 s{w}, 0")
            a("s_cbranch_scc0 CH_INIT_H1_DONE")
        a(f"buffer_store_dwordx4 v[12:15], v16, s[{SRD_H1}:{SRD_H1+3}], s{sT} offen sc1")
        a(f"s_add_u32 s{sT}, s{sT}, {4*2*16384}")
    a("CH_INIT_H1_DONE:")
    a(f"""
    s_cmp_eq_u32 s{w}, 0
    s_cbranch_scc0 CH_INIT_W1
    s_mul_i32 s{sT}, s{sH}, 288
    s_mov_b32 exec_lo, 0x3ffff
    s_mov_b32 exec_hi, 0
    buffer_store_dwordx4 v[12:15], v{vL16}, s[{SRD_H2}:{SRD_H2+3}], s{sT} offen sc1
    s_mov_b64 exec, -1
    s_branch CH_INIT_DONE
    CH_INIT_W1:
    s_lshl_b32 s{sT}, s{sH}, 8
    s_cmp_eq_u32 s{w}, 3
    s_cbranch_scc1 CH_INIT_W3
    s_cmp_eq_u32 s{w}, 2
    s_cselect_b32 s{sT2}, {FL_KM}, {FL_KV}
    s_add_u32 s{sT}, s{sT}, s{sT2}
    buffer_store_dword v12, v{vL4b}, s[{SRD_FL}:{SRD_FL+3}], s{sT} offen sc1
    s_branch CH_INIT_DONE
    CH_INIT_W3:
    s_lshl_b32 s{sT}, s{sH}, 7
    s_add_u32 s{sT}, s{sT}, {FL_G3}
    s_mov_b32 exec_hi, 0
    buffer_store_dword v12, v{vL4b}, s[{SRD_FL}:{SRD_FL+3}], s{sT} offen sc1
    s_mov_b64 exec, -1
    CH_INIT_DONE:
    """)

def emit_dma_issue(a, c, slot, regs):
    m, i = c
    sB, sM0 = regs['sQB'] if m != 'o' else regs['sOB'], regs['sM0']
    for nl in range(4):
        if m != 'o':
            off = i * 524288 + nl * 32768
            vo = regs['vDQ'][nl >> 1]
        else:
            off = i * 128 + nl * 8 * 1152
            vo = regs['vDO'][nl >> 1]
        a(f"s_add_u32 m0, s{sM0}, {slot*16384 + nl*1024}")
        a(f"s_add_u32 s{sT}, s{sB}, {off}")
        a(f"buffer_load_dwordx4 v{vo}, s[{SRD_W[m]}:{SRD_W[m]+3}], s{sT} offen lds")

def emit_chain_weights(a, cfg):
    w = S_WAVE
    vDQ = [12, 13]; vDO = [14, 15]; vTQ = [16, 17]; vTO = 18; vX = 19; vY = 20; vC = 21; vG = 22; vR = 23
    regs = dict(sQB=sT2, sOB=sT3, sM0=100, vDQ=vDQ, vDO=vDO)
    a(f"""
    v_lshrrev_b32 v{vG}, 4, v0
    v_and_b32 v{vC}, 15, v0
    v_lshlrev_b32 v{vX}, 1, v{vG}
    v_xor_b32 v{vX}, v{vX}, v{vC}
    v_lshlrev_b32 v{vY}, 13, v{vG}
    v_lshl_add_u32 v{vDQ[0]}, v{vX}, 4, v{vY}
    v_xor_b32 v{vX}, 8, v{vX}
    v_lshl_add_u32 v{vDQ[1]}, v{vX}, 4, v{vY}
    v_lshrrev_b32 v{vX}, 3, v0
    v_mul_u32_u24 v{vY}, 1152, v{vX}
    v_and_b32 v{vX}, 7, v0
    s_lshl_b32 s{sT}, s{w}, 1
    s_and_b32 s{sT}, s{sT}, 3
    s_lshl_b32 s{sT}, s{sT}, 1
    v_xor_b32 v{vR}, s{sT}, v{vX}
    v_lshl_add_u32 v{vDO[0]}, v{vR}, 4, v{vY}
    s_lshl_b32 s{sT}, s{w}, 1
    s_add_u32 s{sT}, s{sT}, 1
    s_and_b32 s{sT}, s{sT}, 3
    s_lshl_b32 s{sT}, s{sT}, 1
    v_xor_b32 v{vR}, s{sT}, v{vX}
    v_lshl_add_u32 v{vDO[1]}, v{vR}, 4, v{vY}
    s_lshl_b32 s{sT2}, s{sH}, 8
    s_lshl_b32 s{sT}, s{w}, 17
    s_add_u32 s{sT2}, s{sT2}, s{sT}
    s_lshl_b32 s{sT3}, s{sH}, 7
    s_lshl_b32 s{sT}, s{w}, 5
    s_add_u32 s{sT3}, s{sT3}, s{sT}
    s_mul_i32 s{sT3}, s{sT3}, 1152
    s_lshl_b32 s100, s{w}, 12
    s_add_u32 s100, s100, {L_W}
    """)
    order = REG_CHUNKS + LDS_CHUNKS
    for c in range(9):
        emit_dma_issue(a, order[c], c, regs)
    a(f"""
    v_lshrrev_b32 v{vR}, 2, v{vC}
    v_and_b32 v{vX}, 1, v{vR}
    v_lshlrev_b32 v{vX}, 1, v{vX}
    v_and_b32 v{vY}, 1, v{vG}
    v_or_b32 v{vX}, v{vX}, v{vY}
    v_lshrrev_b32 v{vY}, 1, v{vR}
    v_lshl_or_b32 v24, v{vY}, 2, v{vX}
    v_lshl_or_b32 v25, v{vY}, 3, v{vX}
    v_lshrrev_b32 v26, 1, v{vG}
    v_lshl_or_b32 v25, v26, 4, v25
    v_lshlrev_b32 v25, 8, v25
    v_and_b32 v26, 3, v0
    v_lshlrev_b32 v26, 3, v26
    v_add_u32 v25, v25, v26
    s_lshl_b32 s{sT}, s{w}, 1
    v_xor_b32 v27, s{sT}, v24
    v_lshl_add_u32 v{vTQ[0]}, v27, 5, v25
    v_xor_b32 v27, 1, v27
    v_lshl_add_u32 v{vTQ[1]}, v27, 5, v25
    v_and_b32 v24, 1, v{vG}
    v_lshlrev_b32 v25, 5, v24
    v_lshl_or_b32 v25, v{vY}, 4, v25
    v_lshrrev_b32 v27, 1, v{vG}
    v_lshl_or_b32 v25, v27, 2, v25
    v_and_b32 v27, 1, v{vR}
    v_or_b32 v25, v25, v27
    v_lshlrev_b32 v25, 7, v25
    v_add_u32 v25, v25, v26
    v_lshl_or_b32 v24, v24, 1, v{vY}
    v_xor_b32 v24, s{w}, v24
    v_lshl_add_u32 v{vTO}, v24, 5, v25
    """)
    vA0, vA1 = 24, 25
    for ci, c in enumerate(order):
        m, i = c
        slot = ci % 9
        a(f"s_waitcnt vmcnt({4*min(8 if ci==0 else 7, len(order)-1-ci)})")
        a("s_barrier")
        if ci == 0:
            a(f"""
            s_cmp_eq_u32 s{w}, 0
            s_cbranch_scc0 CH_CINIT_SKIP
            s_mov_b64 exec, 1
            v_mov_b32 v26, 1
            v_mov_b32 v27, {DBG_CINIT}
            buffer_atomic_add v26, v27, s[{SRD_DBG}:{SRD_DBG+3}], 0 offen
            s_mov_b64 exec, -1
            CH_CINIT_SKIP:
            """)
        if ci >= 1 and ci + 8 < len(order):
            emit_dma_issue(a, order[ci + 8], (ci + 8) % 9, regs)
        base = L_W + slot * 16384
        a(f"s_mov_b32 s{sT}, {base}")
        if m != 'o':
            a(f"v_add_u32 v{vA0}, s{sT}, v{vTQ[0]}")
            a(f"v_add_u32 v{vA1}, s{sT}, v{vTQ[1]}")
        else:
            a(f"v_add_u32 v{vA0}, s{sT}, v{vTO}")
        for tt in range(2):
            if c in LDS_SLOT or m == 'q':
                kind, rb = 'v', STG[tt]
            else:
                kind, rb = tile_reg(REG_TILE[(c, tt)])[1]
            for p in range(4):
                if m != 'o':
                    off = (32 * (p >> 1) + 4 * (p & 1)) * 256; va = (vA0, vA1)[tt]
                else:
                    off = (8 * (p >> 1) + 2 * (p & 1) + 64 * tt) * 128; va = vA0
                a(f"ds_read_b64_tr_b16 {kind}[{rb+2*p}:{rb+2*p+1}], v{va} offset:{off}")
        a("s_waitcnt lgkmcnt(0)")
        if m == 'q':
            csb = struct.unpack("<I", struct.pack("<f", 128 ** -0.5 * 1.4426950408889634))[0]
            a(f"s_mov_b32 s{sT}, {csb:#x}")
            for tt in range(2):
                for r in range(8):
                    x = STG[tt] + r
                    a(f"v_lshlrev_b32 v26, 16, v{x}")
                    a(f"v_and_b32 v27, 0xffff0000, v{x}")
                    a(f"v_mul_f32 v26, s{sT}, v26")
                    a(f"v_mul_f32 v27, s{sT}, v27")
                    a(f"v_cvt_pk_bf16_f32 v{x}, v26, v27")
                    if c not in LDS_SLOT:
                        kind, rb = tile_reg(REG_TILE[(c, tt)])[1]
                        if kind == 'a': a(f"v_accvgpr_write_b32 a{rb+r}, v{x}")
                        else: a(f"v_mov_b32 v{rb+r}, v{x}")
        if c in LDS_SLOT:
            assert LDS_SLOT[c] == slot
            a("s_barrier")
            a(f"s_lshl_b32 s{sT}, s{w}, 12")
            a(f"s_add_u32 s{sT}, s{sT}, {base}")
            a(f"v_add_u32 v{vA0}, s{sT}, v{vL16}")
            for tt in range(2):
                for hf in range(2):
                    rb = STG[tt] + 4 * hf
                    a(f"ds_write_b128 v{vA0}, v[{rb}:{rb+3}] offset:{tt*2048 + hf*1024}")
            a("s_waitcnt lgkmcnt(0)")

def emit_chain_consts(a, cfg):
    w = S_WAVE
    cs = 128 ** -0.5 * 1.4426950408889634
    csb = struct.unpack("<I", struct.pack("<f", cs))[0]
    a(f"""
    v_and_b32 v12, 2, v0
    v_mov_b32 v13, 0x4444
    v_mov_b32 v14, 0xeeee
    v_cmp_eq_u32 vcc, 2, v12
    v_cndmask_b32 v{vIDX}, v13, v14, vcc
    v_and_b32 v12, 15, v0
    v_lshrrev_b32 v13, 2, v12
    v_lshlrev_b32 v13, 1, v13
    v_and_b32 v12, 1, v12
    v_or_b32 v12, v12, v13               ; token(n)
    v_lshrrev_b32 v13, 4, v0
    v_lshlrev_b32 v13, 1, v13            ; 2G
    v_sub_u32 v12, v12, v13
    v_mov_b32 v13, 0
    v_mov_b32 v14, 0x3f80
    v_cmp_eq_u32 vcc, 0, v12
    v_cndmask_b32 v13, v13, v14, vcc
    v_mov_b32 v14, 0x3f800000
    v_cmp_eq_u32 vcc, 1, v12
    v_cndmask_b32 v{vF}, v13, v14, vcc
    v_mov_b32 v{vF+1}, v{vF}
    s_lshl_b32 s{sT}, s{w}, 12
    s_add_u32 s{sT}, s{sT}, {L_W}
    v_add_u32 v{vW}, s{sT}, v{vL16}
    v_and_b32 v12, 0xffffffdf, v{vL16}          ; lane*16 & ~32
    s_lshl_b32 s{sT}, s{w}, 10
    s_add_u32 s{sT}, s{sT}, {L_S}
    v_add_u32 v{vSW}, s{sT}, v12
    v_and_b32 v12, 0xfffffff7, v{vL4b}          ; lane*4 & ~8
    s_lshl_b32 s{sT}, s{w}, 8
    s_add_u32 s{sT}, s{sT}, {L_S + 4096}
    v_add_u32 v{vSWm}, s{sT}, v12
    v_add_u32 v{vL4b}, {L_S + 4096}, v{vL4b}
    v_lshrrev_b32 v12, 4, v0
    v_and_b32 v13, 15, v0
    v_lshlrev_b32 v13, 4, v13
    v_lshl_add_u32 v{vRD}, v12, 9, v13
    s_lshl_b32 s{sKX}, s{sH}, 13
    s_lshl_b32 s{sT}, s{w}, 11
    s_add_u32 s{sKX}, s{sKX}, s{sT}
    s_lshl_b32 s{sKMO}, s{sH}, 13
    s_lshl_b32 s{sT}, s{w}, 10
    s_add_u32 s{sKMO}, s{sKMO}, s{sT}
    s_lshl_b32 s{sH1B}, s{w}, 16
    s_lshl_b32 s{sT}, s{sH}, 9
    s_add_u32 s{sH1B}, s{sH1B}, s{sT}
    s_lshr_b32 s{sH1S}, s{w}, 1
    s_add_u32 s{sH1S}, s{sH1S}, 16
    s_lshl_b32 s{sH1S}, s{sH1S}, 14
    s_add_u32 s{sH1S}, s{sH1S}, s{sT}
    s_and_b32 s{sT}, s{w}, 1
    s_lshl_b32 s{sT}, s{sT}, 2
    s_add_u32 s{sH1S}, s{sH1S}, s{sT}
    s_mov_b32 s{sRED}, 0
    s_mov_b32 s{sRH1}, 0
    s_mov_b32 s{sRH2}, 0
    s_mov_b32 s{sWB}, 0
    s_mov_b32 s{sT}, s{sH}
    s_cmp_eq_u32 s{w}, 0
    s_cbranch_scc1 CH_RED_YES
    s_cmp_eq_u32 s{w}, 1
    s_cbranch_scc0 CH_RED_NO
    s_and_b32 s{sT2}, s{sH}, 7
    s_cmp_eq_u32 s{sT2}, 0
    s_cbranch_scc0 CH_RED_NO
    s_lshr_b32 s{sT}, s{sH}, 3
    s_add_u32 s{sT}, s{sT}, 32
    s_mov_b32 s{sRED}, 1
    CH_RED_YES:
    s_add_u32 s{sRED}, s{sRED}, 1
    s_lshr_b32 s{sT2}, s{sT}, 1
    s_and_b32 s{sT}, s{sT}, 1
    s_lshl_b32 s{sRH1}, s{sT2}, 14
    s_lshl_b32 s{sT3}, s{sT}, 8
    s_add_u32 s{sRH1}, s{sRH1}, s{sT3}
    s_cmp_lt_u32 s{sT2}, 16
    s_cbranch_scc0 CH_RED_HI
    s_and_b32 s{sT3}, s{sT2}, 3
    s_lshl_b32 s{sT3}, s{sT3}, 3
    s_lshr_b32 s{sT2}, s{sT2}, 2
    s_add_u32 s{sT3}, s{sT3}, s{sT2}
    s_mov_b32 s{sWB}, 1024
    s_branch CH_RED_AB
    CH_RED_HI:
    s_sub_u32 s{sT3}, s{sT2}, 16
    s_lshl_b32 s{sT3}, s{sT3}, 1
    s_add_u32 s{sT3}, s{sT3}, 32
    s_mov_b32 s{sWB}, 256
    CH_RED_AB:
    s_lshl_b32 s{sRH2}, s{sT3}, 8
    s_lshl_b32 s{sT}, s{sT}, 7
    s_add_u32 s{sRH2}, s{sRH2}, s{sT}
    CH_RED_NO:
    v_and_b32 v12, 15, v0
    v_lshrrev_b32 v13, 4, v0
    v_lshlrev_b32 v13, 5, v13
    v_and_b32 v14, 1, v12
    v_lshl_or_b32 v13, v14, 4, v13
    v_bfe_u32 v14, v12, 2, 1
    v_lshl_or_b32 v13, v14, 3, v13
    v_bfe_u32 v14, v12, 1, 1
    v_mul_lo_u32 v14, v14, s{sWB}
    v_add_u32 v{vH2}, v13, v14
    """)
    a(f"""
    s_cmp_lt_u32 s{w}, 2
    s_cbranch_scc1 CH_W23_DONE
    v_lshlrev_b32 v{vH2}, 7, v0
    v_mov_b32 v{vRD}, 0
    s_cmp_eq_u32 s{w}, 2
    s_cbranch_scc1 CH_W23_DONE
    v_mov_b32 v{vH2}, 0
    CH_W23_DONE:
    """)
    for i in range(4):
        a(f"s_add_u32 s{sR[i]}, s{sRH1}, {i*4096}")
        a(f"s_add_u32 s{sH1P[i]}, s{sH1B}, {i*16384}")
    a(f"""
    s_lshr_b32 s{sOW}, s{w}, 1
    s_lshl_b32 s{sOW}, s{sOW}, 10
    s_and_b32 s{sT}, s{w}, 1
    s_lshl_b32 s{sT}, s{sT}, 3
    s_add_u32 s{sOW}, s{sOW}, s{sT}
    s_add_u32 s{sOW}, s{sOW}, {L_O}
    s_mov_b32 s{sCS}, {csb:#x}
    s_mov_b32 s{sCS+1}, {csb:#x}
    s_mov_b32 s{sKXS}, s{sKX}
    s_add_u32 s{sVXS}, s{sKX}, {QKV_SIZE}
    s_mov_b32 s{sKMS}, s{sKMO}
    s_add_u32 s{sVMS}, s{sKMO}, 4096
    s_lshl_b32 s{sFKM}, s{sH}, 8
    s_add_u32 s{sFKM}, s{sFKM}, {FL_KM}
    s_mov_b32 s{sONE}, 0x3f803f80
    s_lshl_b32 s{sM0W}, s{w}, 8
    s_add_u32 s{sM0W}, s{sM0W}, {L_O}
    s_lshl_b32 s{sWRM}, s{sH}, 13
    s_and_b32 s{sT}, s{w}, 1
    s_lshl_b32 s{sT}, s{sT}, 12
    s_add_u32 s{sWRM}, s{sWRM}, s{sT}
    s_lshr_b32 s{sT}, s{w}, 1
    s_lshl_b32 s{sT}, s{sT}, 24
    s_add_u32 s{sWRM}, s{sWRM}, s{sT}
    s_add_u32 s{sWRMX}, s{sWRM}, {63*262144}
    s_add_u32 s{sWRM}, s{sWRM}, 262144
    s_add_u32 s{S_FLP}, s{S_WS}, {WS_FLAGS}
    s_addc_u32 s{S_FLP+1}, s{S_WS+1}, 0
    s_mov_b32 s{sSELC}, 0x3f80
    v_bfe_u32 v12, v0, 1, 3
    v_cmp_eq_u32 s[{sSELM}:{sSELM+1}], 0, v12
    v_cmp_eq_u32 s[{sSELM+2}:{sSELM+3}], 1, v12
    v_cmp_eq_u32 s[{sSELM+4}:{sSELM+5}], 2, v12
    v_cmp_eq_u32 s[{sSELM+6}:{sSELM+7}], 3, v12
    v_and_b32 v12, 8, v0
    v_cmp_eq_u32 vcc, 0, v12
    s_and_b64 s[{sSELM}:{sSELM+1}], s[{sSELM}:{sSELM+1}], vcc
    s_and_b64 s[{sSELM+2}:{sSELM+3}], s[{sSELM+2}:{sSELM+3}], vcc
    s_and_b64 s[{sSELM+4}:{sSELM+5}], s[{sSELM+4}:{sSELM+5}], vcc
    s_and_b64 s[{sSELM+6}:{sSELM+7}], s[{sSELM+6}:{sSELM+7}], vcc
    s_lshl_b32 s{sG[0]}, s{w}, 10
    s_add_u32 s{sG[1]}, s{sG[0]}, 4096
    s_lshl_b32 s{sG3}, s{w}, 8
    s_add_u32 s{sG[2]}, s{sG3}, 8192
    """)
    srdm = f"s[{SRD_T}:{SRD_T+3}]"
    a(f"""
    v_and_b32 v12, 15, v0
    v_lshrrev_b32 v13, 2, v12
    v_lshlrev_b32 v13, 1, v13
    v_and_b32 v14, 1, v12
    v_or_b32 v13, v13, v14
    v_mul_u32_u24 v13, 1152, v13
    v_bfe_u32 v12, v12, 1, 1
    v_lshl_add_u32 v13, v12, 4, v13
    v_lshrrev_b32 v12, 4, v0
    v_lshl_add_u32 v13, v12, 5, v13
    s_mov_b32 s4, 0x05040100
    s_mov_b32 s5, 0x07060302
    """)
    for i in range(3):
        if i == 2:
            a(f"s_cmp_eq_u32 s{w}, 0")
            a("s_cbranch_scc0 CH_M0_DONE")
        a(f"""
        s_add_u32 s{sT}, s{w}, {4*i}
        s_lshl_b32 s{sT2}, s{sT}, 7
        buffer_load_dwordx4 v[16:19], v13, {srdm}, s{sT2} offen
        s_lshl_b32 s{sT2}, s{sT}, 10
        v_add_u32 v14, s{sT2}, v{vL16}
        s_waitcnt vmcnt(0)
        v_perm_b32 v20, v17, v16, s4
        v_perm_b32 v21, v19, v18, s4
        v_perm_b32 v22, v17, v16, s5
        v_perm_b32 v23, v19, v18, s5
        ds_write_b128 v14, v[20:23] offset:{L_MEM}
        """)
    a("CH_M0_DONE:")
    a("s_waitcnt lgkmcnt(0)")


def lds_tile(c, tt, dst):
    off = LDS_SLOT[c] * 16384 + tt * 2048
    va = vW
    if off >= 131072: va, off = vT0, off - 131072
    elif off >= 65536: va, off = vT1, off - 65536
    return [f"ds_read_b128 v[{dst}:{dst+3}], v{va} offset:{off}", f"ds_read_b128 v[{dst+4}:{dst+7}], v{va} offset:{off+1024}"]

def smf(acc, abuf, wt):
    return f"v_smfmac_f32_16x16x64_bf16 v[{acc}:{acc+3}], v[{abuf}:{abuf+3}], {wt}, v{vIDX}"

def rt(c, tt): return tile_reg(REG_TILE[(c, tt)])[0]
def vt(b): return f"v[{b}:{b+7}]"

def zero(a, regs):
    regs = list(regs)
    for i in range(0, len(regs), 2):
        assert regs[i] % 2 == 0 and regs[i + 1] == regs[i] + 1
        a(f"v_mov_b64 v[{regs[i]}:{regs[i]+1}], 0")

S0, S1 = STG[0], STG[1]
PRE = [(('q', 0), 0, S0), (('q', 0), 1, S1), (('k', 0), 0, KX), (('k', 0), 1, VX), (('q', 4), 0, ACCV)]

def preload_next(a):
    for (c, tt, dst) in PRE:
        for o in lds_tile(c, tt, dst): a(o)
    zero(a, range(ACCQ, ACCK + 8))

def aread_txt(kt, i):
    b = A_BUF[i % 3]
    return f"ds_read_b128 v[{b}:{b+3}], v{vL16} offset:{L_MEM + kt*1024}"

KTV = [1, 0, 3, 2, 5, 4, 7, 6, 8]

def emit_compute(a, cfg, st, par, sfx, lg, vm, tagop):
    w = S_WAVE
    DPPX = "quad_perm:[2,3,0,1] row_mask:0xf bank_mask:0xf"
    kmfl = '' if cfg.get('plain_km') else 'sc1'
    aseq = list(range(9)) + KTV
    lg.q = [('A', 0), ('A', 1), ('A', 2)]
    def anext(i):
        if i + 3 < 18: lg.issue(('A', i + 3), aread_txt(aseq[i + 3], i + 3))
    for kt in range(9):
        ab = A_BUF[kt % 3]
        tags = [('A', kt)]
        if kt == 4: tags += [('W', 'q4b', 0), ('W', 'q4b', 1)]
        lg.wait(*tags)
        wq0 = vt(S0) if kt == 0 else (vt(ACCV) if kt == 4 else rt(('q', kt), 0))
        wq1 = vt(S1) if kt == 0 else (vt(S0) if kt == 4 else rt(('q', kt), 1))
        wk0 = vt(KX) if kt == 0 else rt(('k', kt), 0)
        wk1 = vt(VX) if kt == 0 else rt(('k', kt), 1)
        a(smf(ACCQ, ab, wq0))
        if kt == 0:
            for j, o in enumerate(lds_tile(('q', 4), 1, S0)): lg.issue(('W', 'q4b', j), o)
        a(smf(ACCQ + 4, ab, wq1))
        if kt == 0:
            for j, o in enumerate(lds_tile(('v', 0), 0, S1)): lg.issue(('W', 'v0a', j), o)
        if kt == 4:
            for j, o in enumerate(lds_tile(('v', 0), 1, S0)): lg.issue(('W', 'v0b', j), o)
        if kt == 5:
            zero(a, range(ACCV, ACCV + 4))
        a(smf(ACCK, ab, wk0))
        if kt == 5:
            zero(a, range(ACCV + 4, ACCV + 8))
        a(smf(ACCK + 4, ab, wk1))
        anext(kt)
        if kt == 0:
            vm.issue('KX', f"buffer_load_dwordx4 v[{KX}:{KX+3}], v{vL16}, s[{SRD_KV}:{SRD_KV+3}], s{sKXS} offen sc1")
            vm.issue('KX', f"buffer_load_dwordx4 v[{KX+4}:{KX+7}], v{vL16}, s[{SRD_KV}:{SRD_KV+3}], s{sKXS} offen offset:1024 sc1")
            vm.issue('VX', f"buffer_load_dwordx4 v[{VX}:{VX+3}], v{vL16}, s[{SRD_KV}:{SRD_KV+3}], s{sVXS} offen sc1")
            vm.issue('VX', f"buffer_load_dwordx4 v[{VX+4}:{VX+7}], v{vL16}, s[{SRD_KV}:{SRD_KV+3}], s{sVXS} offen offset:1024 sc1")
        if kt == 1:
            a(f"v_and_b32 v{vT0}, 0x1f0, v{vL16}")
            a(f"s_mov_b32 m0, s{sM0W}")
            a(f"v_lshlrev_b32 v{vT0}, 3, v{vT0}")
            a(f"s_load_dword s{sFLV}, s[{S_FLP}:{S_FLP+1}], s{sFLN} glc")
            vm.issue('WARM', f"buffer_load_dword v{vT0}, s[{SRD_KV}:{SRD_KV+3}], s{sWRM} offen sc1 lds")
    stamp(a, cfg, 'p1')
    vs = {'i': 0}
    lds_kts = [0, 2, 4, 6]
    deferred = []
    def flush_deferred():
        for t, o in deferred: lg.issue(t, o)
        del deferred[:]
    def V(n, defer=False):
        iss = (lambda t, o: deferred.append((t, o))) if defer else lg.issue
        for _ in range(n):
            i = vs['i']
            if i >= 18: return
            kt = KTV[i >> 1]; tt = i & 1; ai = 9 + (i >> 1)
            tags = []
            if tt == 0: tags.append(('A', ai))
            if kt in lds_kts: tags += [('W', f"v{kt}{'ab'[tt]}", 0), ('W', f"v{kt}{'ab'[tt]}", 1)]
            lg.wait(*tags)
            wt = vt((S1, S0)[tt]) if kt in lds_kts else rt(('v', kt), tt)
            a(smf(ACCV + 4 * tt, A_BUF[ai % 3], wt))
            if tt == 1 and ai + 3 < 18: iss(('A', ai + 3), aread_txt(aseq[ai + 3], ai + 3))
            if kt in lds_kts:
                nk = kt + 2
                dst = (S1, S0)[tt]
                if nk in lds_kts:
                    for j, o in enumerate(lds_tile(('v', nk), tt, dst)): iss(('W', f"v{nk}{'ab'[tt]}", j), o)
                else:
                    for j, o in enumerate(lds_tile(('o', 1), tt, dst)): iss(('W', f"o1{'ab'[tt]}", j), o)
            vs['i'] += 1
    a(f"v_add_u32 v{vT1}, 65536, v{vW}")
    V(2)
    a(f"""
    v_cvt_pk_bf16_f32 v24, v24, v25
    v_cvt_pk_bf16_f32 v25, v26, v27
    v_cvt_pk_bf16_f32 v26, v28, v29
    v_cvt_pk_bf16_f32 v27, v30, v31
    v_mfma_f32_16x16x16_bf16 v[28:31], v[24:25], v[{vF}:{vF+1}], 0
    v_cvt_pk_bf16_f32 v32, v32, v33
    v_cvt_pk_bf16_f32 v33, v34, v35
    v_cvt_pk_bf16_f32 v34, v36, v37
    v_cvt_pk_bf16_f32 v35, v38, v39
    v_mfma_f32_16x16x16_bf16 v[36:39], v[26:27], v[{vF}:{vF+1}], 0
    """)
    V(2)
    a(f"""
    v_cvt_pk_bf16_f32 v24, v28, v29
    v_cvt_pk_bf16_f32 v25, v30, v31
    v_cvt_pk_bf16_f32 v26, v36, v37
    v_cvt_pk_bf16_f32 v27, v38, v39
    """)
    vm.wait('KX')
    a(f"""
    v_mfma_f32_16x16x32_bf16 v[28:31], v[{KX}:{KX+3}], v[24:27], 0
    v_mfma_f32_16x16x32_bf16 v[36:39], v[{KX+4}:{KX+7}], v[24:27], 0
    v_mfma_f32_16x16x16_bf16 v[64:67], v[32:33], v[{vF}:{vF+1}], 0
    v_mfma_f32_16x16x16_bf16 v[68:71], v[34:35], v[{vF}:{vF+1}], 0
    """)
    V(2)
    lg.issue('SW', f"ds_write2_b64 v{vSW}, v[28:29], v[30:31] offset0:0 offset1:4")
    a(f"""
    v_cvt_pk_bf16_f32 v32, v64, v65
    v_cvt_pk_bf16_f32 v33, v66, v67
    v_cvt_pk_bf16_f32 v34, v68, v69
    v_cvt_pk_bf16_f32 v35, v70, v71
    """)
    lg.issue('SW', f"ds_write2_b64 v{vSW}, v[36:37], v[38:39] offset0:1 offset1:5")
    a("v_mfma_f32_16x16x32_bf16 v[64:67], v[32:35], v[24:27], 0")
    vm.issue('KM', f"buffer_store_dwordx4 v[32:35], v{vL16}, s[{SRD_KM}:{SRD_KM+3}], s{sKMS} offen {kmfl}")
    V(2, defer=True)
    lg.issue('SW', f"ds_write2_b32 v{vSWm}, v64, v65 offset0:0 offset1:2")
    flush_deferred()
    lg.wait('SW')
    a("s_barrier")
    stamp(a, cfg, 'b1')
    for wp in range(4):
        lg.issue('SR', f"ds_read_b128 v[{24+4*wp}:{27+4*wp}], v{vL16} offset:{L_S + wp*1024}")
    lg.issue('SR', f"ds_read2st64_b32 v[64:65], v{vL4b} offset0:0 offset1:1")
    lg.issue('SR', f"ds_read2st64_b32 v[66:67], v{vL4b} offset0:2 offset1:3")
    V(4)
    lg.wait('SR')
    FB = a.label("CH_FB")
    a(f"""
    v_pk_add_f32 v[24:25], v[24:25], v[28:29]
    v_pk_add_f32 v[26:27], v[26:27], v[30:31]
    v_pk_add_f32 v[32:33], v[32:33], v[36:37]
    v_pk_add_f32 v[34:35], v[34:35], v[38:39]
    v_pk_add_f32 v[64:65], v[64:65], v[66:67]
    v_pk_add_f32 v[24:25], v[24:25], v[32:33]
    v_pk_add_f32 v[26:27], v[26:27], v[34:35]
    v_add_f32 v64, v64, v65
    v_max3_f32 v{vT0}, |v24|, |v25|, |v26|
    v_exp_f32 v24, v24
    v_max3_f32 v{vT0}, v{vT0}, |v27|, |v64|
    v_exp_f32 v25, v25
    v_cmp_lt_f32 vcc, 0x42700000, v{vT0}
    v_exp_f32 v26, v26
    v_exp_f32 v27, v27
    v_exp_f32 v64, v64
    s_cbranch_vccnz {FB}
    v_cvt_pk_bf16_f32 v28, v24, v25
    v_cvt_pk_bf16_f32 v30, v26, v27
    v_mov_b32_dpp v65, v64 {DPPX}
    v_mov_b32_dpp v29, v28 {DPPX}
    v_mov_b32_dpp v31, v30 {DPPX}
    v_cvt_pk_bf16_f32 v66, v64, v65
    v_cvt_pk_bf16_f32 v67, v64, v65
    {FB}_join:
    """)
    stamp(a, cfg, 'sm')
    vm.wait('VX')
    a(f"""
    v_mfma_f32_16x16x32_bf16 v[32:35], v[{VX}:{VX+3}], v[28:31], 0
    v_mfma_f32_16x16x32_bf16 v[36:39], v[{VX+4}:{VX+7}], v[28:31], 0
    v_dot2_f32_bf16 v68, v28, s{sONE}, v64
    v_dot2_f32_bf16 v68, v30, s{sONE}, v68
    v_add_u32 v{vT0}, 131072, v{vW}
    """)
    V(2)
    a(f"v_add_f32_dpp v68, v68, v68 {DPPX}")
    for j, o in enumerate(lds_tile(('o', 3), 0, VX)): lg.issue(('W', 'o3a', j), o)
    a("v_mov_b32 v69, v68")
    for j, o in enumerate(lds_tile(('o', 3), 1, 24)): lg.issue(('W', 'o3b', j), o)
    a("v_permlane16_swap_b32 v68, v69")
    a("v_add_f32 v68, v68, v69")
    V(1)
    a("v_mov_b32 v69, v68")
    V(1)
    a("v_permlane32_swap_b32 v68, v69")
    a("v_add_f32 v68, v68, v69")
    V(18)
    a("v_rcp_f32 v68, v68")
    a(f"""
    v_cvt_pk_bf16_f32 v40, v40, v41
    v_cvt_pk_bf16_f32 v41, v42, v43
    v_cvt_pk_bf16_f32 v42, v44, v45
    v_cvt_pk_bf16_f32 v43, v46, v47
    v_add_u32 v{vT0}, s{sOW}, v{vL16}
    v_mfma_f32_16x16x16_bf16 v[32:35], v[40:41], v[66:67], v[32:35]
    v_mfma_f32_16x16x16_bf16 v[36:39], v[42:43], v[66:67], v[36:39]
    """)
    vm.issue('VM', f"buffer_store_dwordx4 v[40:43], v{vL16}, s[{SRD_KM}:{SRD_KM+3}], s{sVMS} offen {kmfl}")
    a(f"""
    v_mov_b64 v[20:21], 0
    v_mov_b64 v[22:23], 0
    v_mov_b64 v[44:45], 0
    v_mov_b64 v[46:47], 0
    s_mov_b32 vcc_lo, 0x33333333
    s_mov_b32 vcc_hi, 0x33333333
    v_pk_mul_f32 v[32:33], v[32:33], v[68:69] op_sel_hi:[1,0]
    v_pk_mul_f32 v[34:35], v[34:35], v[68:69] op_sel_hi:[1,0]
    v_pk_mul_f32 v[36:37], v[36:37], v[68:69] op_sel_hi:[1,0]
    v_pk_mul_f32 v[38:39], v[38:39], v[68:69] op_sel_hi:[1,0]
    v_cvt_pk_bf16_f32 v32, v32, v33
    v_cvt_pk_bf16_f32 v33, v34, v35
    v_cvt_pk_bf16_f32 v34, v36, v37
    v_cvt_pk_bf16_f32 v35, v38, v39
    v_cndmask_b32_dpp v32, v34, v32, vcc quad_perm:[0,1,0,1] row_mask:0xf bank_mask:0xf
    v_cndmask_b32_dpp v33, v35, v33, vcc quad_perm:[0,1,0,1] row_mask:0xf bank_mask:0xf
    """)
    stamp(a, cfg, 'pv')
    vm.wait('WARM')
    lg.issue('OW', f"ds_write_b64 v{vT0}, v[32:33]")
    zero(a, [40, 41, 42, 43, 64, 65, 66, 67, 68, 69, 70, 71, 36, 37, 38, 39])
    a(f"v_lshrrev_b32 v{vT1}, 1, v{vL16}")
    lg.wait('OW')
    a("s_barrier")
    lg.issue('OA', f"ds_read_b128 v[12:15], v{vL16} offset:{L_O}")
    lg.issue('OA', f"ds_read_b128 v[16:19], v{vL16} offset:{L_O + 1024}")
    zero(a, [32, 33, 34, 35])
    lg.wait('OA', *[('W', n, j) for n in ('o1a', 'o1b', 'o3a', 'o3b') for j in range(2)])
    stamp(a, cfg, 'wo')
    slots = {1: (S1, S0), 3: (VX, 24)}
    free = [20, 44, 40, 64, 68, 36, 32]
    acc_of = {}
    def post(cb, dst, tag):
        acc = acc_of[cb]
        r = [f"v_add_f32 v{acc}, v{acc}, v{acc+2}", f"v_add_f32 v{acc+1}, v{acc+1}, v{acc+3}",
             f"v_cvt_pk_bf16_f32 v{dst}, v{acc}, v{acc+1}"]
        if tag: r.append(tagop(dst))
        return r
    work = []
    def drainw(n=1):
        for _ in range(n):
            if work:
                kind, x = work.pop(0)
                if kind == 'v': a(x)
                elif kind == 'vm': vm.issue('H1', x)
                elif kind == 'free': free.append(x); drainw()
    def q_pair(pi, ca, cb_):
        d = acc_of[ca]
        for t in post(ca, d, True): work.append(('v', t))
        for t in post(cb_, d + 1, False): work.append(('v', t))
        work.append(('vm', f"buffer_store_dwordx2 v[{d}:{d+1}], v{vT1}, s[{SRD_H1}:{SRD_H1+3}], s{sH1P[pi]} offen {st}"))
    order = [8, 0, 1, 2, 3, 4, 5, 6, 7]
    for idx, cb in enumerate(order):
        while not free: drainw()
        acc = free.pop(0)
        acc_of[cb] = acc
        oc = ('o', cb)
        w0, w1 = (vt(slots[cb][0]), vt(slots[cb][1])) if cb in slots else (rt(oc, 0), rt(oc, 1))
        a(smf(acc, 12, w0)); drainw()
        a(smf(acc, 16, w1)); drainw()
        if idx == 2:
            for t in post(8, acc_of[8], True): work.append(('v', t))
            work.append(('vm', f"buffer_store_dword v{acc_of[8]}, v{vT1}, s[{SRD_H1}:{SRD_H1+3}], s{sH1S} offen {st}"))
            work.append(('v', f"v_mov_b64 v[{acc_of[8]}:{acc_of[8]+1}], 0")); work.append(('v', f"v_mov_b64 v[{acc_of[8]+2}:{acc_of[8]+3}], 0"))
            work.append(('free', acc_of[8]))
        if idx == 4:
            q_pair(0, 0, 1)
            work.append(('v', f"v_mov_b64 v[{acc_of[1]}:{acc_of[1]+1}], 0")); work.append(('v', f"v_mov_b64 v[{acc_of[1]+2}:{acc_of[1]+3}], 0"))
            work.append(('free', acc_of[1]))
        if idx == 6:
            q_pair(1, 2, 3)
    q_pair(2, 4, 5)
    q_pair(3, 6, 7)
    while work: drainw()
    return dict(label=FB)

def emit_fallback(a, cfg, fb):
    DPPX = "quad_perm:[2,3,0,1] row_mask:0xf bank_mask:0xf"
    FB = fb['label']
    a(f"{FB}:")
    a(f"""
    s_waitcnt lgkmcnt(0)
    ds_read_b128 v[24:27], v{vL16} offset:{L_S}
    ds_read_b128 v[28:31], v{vL16} offset:{L_S + 1024}
    ds_read_b128 v[32:35], v{vL16} offset:{L_S + 2048}
    ds_read_b128 v[36:39], v{vL16} offset:{L_S + 3072}
    ds_read2st64_b32 v[64:65], v{vL4b} offset0:0 offset1:1
    ds_read2st64_b32 v[66:67], v{vL4b} offset0:2 offset1:3
    s_waitcnt lgkmcnt(0)
    """)
    for r in range(4): a(f"v_add_f32 v{24+r}, v{24+r}, v{28+r}")
    for r in range(4): a(f"v_add_f32 v{32+r}, v{32+r}, v{36+r}")
    a("v_add_f32 v64, v64, v65")
    a("v_add_f32 v66, v66, v67")
    for r in range(4): a(f"v_add_f32 v{24+r}, v{24+r}, v{32+r}")
    a(f"""
    v_add_f32 v64, v64, v66
    v_max3_f32 v36, v24, v25, v26
    v_max3_f32 v36, v36, v27, v64
    v_max_f32_dpp v36, v36, v36 {DPPX}
    v_mov_b32 v37, v36
    v_permlane16_swap_b32 v36, v37
    v_max_f32 v36, v36, v37
    v_mov_b32 v37, v36
    v_permlane32_swap_b32 v36, v37
    v_max_f32 v36, v36, v37
    v_sub_f32 v24, v24, v36
    v_sub_f32 v25, v25, v36
    v_sub_f32 v26, v26, v36
    v_sub_f32 v27, v27, v36
    v_sub_f32 v64, v64, v36
    v_exp_f32 v24, v24
    v_exp_f32 v25, v25
    v_exp_f32 v26, v26
    v_exp_f32 v27, v27
    v_exp_f32 v64, v64
    v_cvt_pk_bf16_f32 v28, v24, v25
    v_cvt_pk_bf16_f32 v30, v26, v27
    v_mov_b32_dpp v65, v64 {DPPX}
    v_mov_b32_dpp v29, v28 {DPPX}
    v_mov_b32_dpp v31, v30 {DPPX}
    v_cvt_pk_bf16_f32 v66, v64, v65
    v_cvt_pk_bf16_f32 v67, v64, v65
    s_nop 1
    s_branch {FB}_join
    """)

fbs = []
def emit_step(a, cfg, slow, par, sfx, nxt):
    w = S_WAVE
    st = "sc1" if slow else ""
    FAIL = "CH_FAIL"
    lg = Cnt(a, "lgkmcnt", 15); vm = Cnt(a, "vmcnt", 63)
    a(f"CH_STEP{sfx}:")
    stamp(a, cfg, 'top')
    tagop = (lambda r: f"v_or_b32 v{r}, 1, v{r}") if par else (lambda r: f"v_and_b32 v{r}, -2, v{r}")
    if cfg.get('nocompute'):
        for _ in range(cfg.get('delay', 0)): a("s_nop 15")
        a(f"v_lshrrev_b32 v{vT1}, 1, v{vL16}")
        a(f"v_mov_b32 v24, {par}")
        a(f"v_mov_b32 v25, {par}")
        for pi in range(4):
            a(f"buffer_store_dwordx2 v[24:25], v{vT1}, s[{SRD_H1}:{SRD_H1+3}], s{sH1P[pi]} offen {st}")
        a(f"buffer_store_dword v24, v{vT1}, s[{SRD_H1}:{SRD_H1+3}], s{sH1S} offen {st}")
    else:
        fbs.append(emit_compute(a, cfg, st, par, sfx, lg, vm, tagop))
    stamp(a, cfg, 'post')
    chk = (0xF0 | (~0xCC & 0xFF) | (~0xAA & 0xFF)) if par else (0xF0 | 0xCC | 0xAA)
    RL = a.label("CH_RED")
    if not cfg.get('nohops'):
        a(f"s_cmp_eq_u32 s{sRED}, 0")
        a(f"s_cbranch_scc1 {RL}_skip")
        a(f"v_and_b32 v56, 16, v{vL16}")
        a(f"v_lshlrev_b32_e64 v56, v56, s{sSELC}")
        for jj in range(4):
            a(f"v_cndmask_b32 v{60+jj}, 0, v56, s[{sSELM+2*jj}:{sSELM+2*jj+1}]")
        if cfg.get('rsleep'): a(f"s_sleep {cfg['rsleep']}")
        stamp(a, cfg, 'r_go')
        a(f"s_mov_b32 s{S_TO}, 0")
        LB = 24
        for variant in range(2):
            R2 = f"{RL}_v{variant}"
            if variant == 0:
                a(f"s_cmp_eq_u32 s{sRED}, 2")
                a(f"s_cbranch_scc1 {RL}_v1")
            a(f"{R2}:")
            for cc in range(8):
                a(f"buffer_load_dwordx4 v[{LB+4*cc}:{LB+3+4*cc}], v{vRD}, s[{SRD_H1}:{SRD_H1+3}], s{sR[cc>>1]} offen offset:{(cc&1)*2048} sc1")
            a("v_mov_b32 v12, 0")
            for c2 in range(4):
                a(f"s_waitcnt vmcnt({6-2*c2})")
                for cc in (2 * c2, 2 * c2 + 1):
                    b = LB + 4 * cc
                    c_in = "0" if cc == 0 else "v[56:59]"
                    a(f"v_mfma_f32_16x16x32_bf16 v[56:59], v[{b}:{b+3}], v[60:63], {c_in}")
                    if variant == 0:
                        a(f"v_bitop3_b32 v12, v12, v{b}, v{b+2} bitop3:{chk:#x}")
                    else:
                        a(f"v_bitop3_b32 v12, v12, v{b}, v{b+1} bitop3:{chk:#x}")
                        a(f"v_bitop3_b32 v12, v12, v{b+2}, v{b+3} bitop3:{chk:#x}")
            a(f"""
            v_and_b32 v12, 1, v12
            v_cmp_ne_u32 vcc, 0, v12
            s_cbranch_vccz {RL}_ok
            s_add_u32 s{S_TO}, s{S_TO}, 1
            s_cmp_lt_u32 s{S_TO}, {TIMEOUT}
            s_cbranch_scc1 {R2}
            s_branch {FAIL}
            """)
        a(f"""
        {RL}_ok:
        {stamp_txt(cfg, 'r_ok')}
        {stamp_txt(cfg, 'cnt_r')}
        s_mov_b32 exec_lo, 0x00ff00ff
        s_mov_b32 exec_hi, 0x00ff00ff
        v_cvt_pk_bf16_f32 v60, v56, v57
        v_cvt_pk_bf16_f32 v61, v58, v59
        {tagop(60)}
        buffer_store_dwordx2 v[60:61], v{vH2}, s[{SRD_H2}:{SRD_H2+3}], s{sRH2} offen {st}
        s_mov_b64 exec, -1
        {RL}_skip:
        {stamp_txt(cfg, 'r_st')}
        """)
    else:
        a("s_waitcnt vmcnt(0)")
    a(f"v_add_u32 v{vT1}, 65536, v{vW}") if False else None
    preload_next(a)
    FK = a.label("CH_FK")
    a(f"""
    s_cmp_eq_u32 s{sFLV}, 1
    s_cbranch_scc1 {FK}
    s_cmp_eq_u32 s{w}, 3
    s_cbranch_scc0 {FK}
    s_cmp_ge_u32 s{sSTEP}, {cfg.get('nsteps', 64) - 2}
    s_cbranch_scc1 {FK}
    v_mov_b32 v{vT1}, s{sFLN}
    """)
    poll_dword_eq(a, SRD_FL, vT1, vT0, 1, FAIL, "CH_FKV" + sfx, sleep=1)
    a(f"{FK}:")
    a(f"""
    s_add_u32 s{sFLN}, s{sFLN}, 4
    s_add_u32 s{sKXS}, s{sKXS}, 262144
    s_add_u32 s{sVXS}, s{sVXS}, 262144
    s_add_u32 s{sKMS}, s{sKMS}, 262144
    s_add_u32 s{sVMS}, s{sVMS}, 262144
    s_add_u32 s{sWRM}, s{sWRM}, 262144
    s_min_u32 s{sWRM}, s{sWRM}, s{sWRMX}
    """)
    if not cfg.get('nohops'):
        a("s_barrier")
        if cfg.get('gsleep'): a(f"s_sleep {cfg['gsleep']}")
        stamp(a, cfg, 'gat')
        GL = a.label("CH_GAT")
        a(f"s_mov_b32 s{S_TO}, 0")
        a(f"{GL}:")
        a(f"""
        buffer_load_dwordx4 v[12:15], v{vL16}, s[{SRD_H2}:{SRD_H2+3}], s{sG[0]} offen sc1
        buffer_load_dwordx4 v[16:19], v{vL16}, s[{SRD_H2}:{SRD_H2+3}], s{sG[1]} offen sc1
        s_mov_b64 exec, 0xffff
        buffer_load_dwordx4 v[20:23], v{vL16}, s[{SRD_H2}:{SRD_H2+3}], s{sG[2]} offen sc1
        s_mov_b64 exec, -1
        v_mov_b32 v{vT0}, 0
        v_add_u32 v{vT1}, s{sG[0]}, v{vL16}
        v_mov_b32 v22, v20
        """ if False else f"""
        v_mov_b32 v20, {par}
        v_mov_b32 v22, {par}
        buffer_load_dwordx4 v[12:15], v{vL16}, s[{SRD_H2}:{SRD_H2+3}], s{sG[0]} offen sc1
        buffer_load_dwordx4 v[16:19], v{vL16}, s[{SRD_H2}:{SRD_H2+3}], s{sG[1]} offen sc1
        s_mov_b64 exec, 0xffff
        buffer_load_dwordx4 v[20:23], v{vL16}, s[{SRD_H2}:{SRD_H2+3}], s{sG[2]} offen sc1
        s_mov_b64 exec, -1
        v_mov_b32 v{vT0}, 0
        v_add_u32 v{vT1}, s{sG[0]}, v{vL16}
        s_waitcnt vmcnt(2)
        v_bitop3_b32 v{vT0}, v{vT0}, v12, v14 bitop3:{chk:#x}
        s_waitcnt vmcnt(1)
        v_bitop3_b32 v{vT0}, v{vT0}, v16, v18 bitop3:{chk:#x}
        s_waitcnt vmcnt(0)
        v_bitop3_b32 v{vT0}, v{vT0}, v20, v22 bitop3:{chk:#x}
        v_and_b32 v{vT0}, 1, v{vT0}
        v_cmp_ne_u32 vcc, 0, v{vT0}
        s_cbranch_vccz {GL}_ok
        s_add_u32 s{S_TO}, s{S_TO}, 1
        s_cmp_lt_u32 s{S_TO}, {TIMEOUT}
        s_cbranch_scc1 {GL}
        s_branch {FAIL}
        {GL}_ok:
        {stamp_txt(cfg, 'gatok')}
        {stamp_txt(cfg, 'cnt_g')}
        ds_write_b128 v{vT1}, v[12:15] offset:{L_MEM}
        ds_write_b128 v{vT1}, v[16:19] offset:{L_MEM + 4096}
        v_add_u32 v{vT1}, s{sG3}, v{vL16}
        s_mov_b64 exec, 0xffff
        ds_write_b128 v{vT1}, v[20:23] offset:{L_MEM + 8192}
        s_mov_b64 exec, -1
        """)
    a("s_waitcnt lgkmcnt(0)")
    a("s_barrier")
    for i in range(3): a(aread_txt(i, i))
    NF = a.label("CH_NF")
    a(f"""
    s_cmp_eq_u32 s{w}, 3
    s_cbranch_scc0 {NF}
    s_mov_b64 exec, 1
    v_mov_b32 v{vT0}, 1
    buffer_store_dword v{vT0}, v{vH2}, s[{SRD_FL}:{SRD_FL+3}], s{sFKM} offen sc1
    s_mov_b64 exec, -1
    {NF}:
    s_add_u32 s{sFKM}, s{sFKM}, 4
    {stamp_txt(cfg, 'end')}
    {dump_stamps(a, cfg)}
    s_add_u32 s{sSTEP}, s{sSTEP}, 1
    s_cmp_lt_u32 s{sSTEP}, {cfg.get('nsteps', 64)}
    s_cbranch_scc0 CH_DONE
    """)
    if nxt: a(f"s_branch CH_STEP{nxt}")

def emit_chain(a, cfg):
    a("ROLE_CHAIN:")
    emit_chain_setup(a, cfg)
    emit_chain_weights(a, cfg)
    emit_chain_consts(a, cfg)
    a(f"v_mov_b32 v{vT1}, {DBG_CINIT}")
    poll_dword_eq(a, SRD_DBG, vT1, vT0, 32, "CH_FAIL", "CH_CI")
    a(f"""
    v_mov_b32 v{vT1}, {DBG_SLOW}
    buffer_load_dword v{vT0}, v{vT1}, s[{SRD_DBG}:{SRD_DBG+3}], 0 offen sc1
    s_waitcnt vmcnt(0)
    v_readfirstlane_b32 s{sSLOW}, v{vT0}
    s_mov_b32 s{sSTEP}, 0
    s_lshl_b32 s{sFLN}, s{sH}, 8
    s_add_u32 s{sFLN}, s{sFLN}, {FL_KV}
    v_mov_b32 v{vT1}, s{sFLN}
    """)
    poll_dword_eq(a, SRD_FL, vT1, vT0, 1, "CH_FAIL", "CH_F0", sleep=1)
    a(f"s_add_u32 s{sFLN}, s{sFLN}, 4")
    a(f"v_mov_b32 v{vT1}, s{sFLN}")
    poll_dword_eq(a, SRD_FL, vT1, vT0, 1, "CH_FAIL", "CH_F1", sleep=1)
    a(f"s_add_u32 s{sFLN}, s{sFLN}, 4")
    preload_next(a)
    a("s_waitcnt lgkmcnt(0)")
    a("s_barrier")
    for i in range(3): a(aread_txt(i, i))
    if cfg.get('timing'):
        a("s_memtime s[4:5]\ns_waitcnt lgkmcnt(0)")
        a("s_mov_b32 s101, s4")
    if cfg.get('force_slow'):
        a(f"s_mov_b32 s{sSLOW}, 1")
    a(f"s_cmp_eq_u32 s{sSLOW}, 0")
    a("s_cbranch_scc0 CH_STEP_S1")
    emit_step(a, cfg, False, 1, "_F1", None)
    emit_step(a, cfg, False, 0, "_F0", "_F1")
    emit_step(a, cfg, True, 1, "_S1", None)
    emit_step(a, cfg, True, 0, "_S0", "_S1")
    for fb in fbs: emit_fallback(a, cfg, fb)
    del fbs[:]
    a("CH_FAIL:")
    a(f"""
    s_mov_b64 exec, 1
    v_mov_b32 v1, 0xdead
    v_mov_b32 v2, {DBG_FAIL}
    buffer_store_dword v1, v2, s[{SRD_DBG}:{SRD_DBG+3}], 0 offen
    s_waitcnt vmcnt(0)
    s_branch END
    """)
    a("CH_DONE:")
    if cfg.get('timing'):
        a(f"""
        s_memtime s[36:37]
        s_waitcnt lgkmcnt(0)
        s_sub_u32 s36, s36, s101
        s_cmp_eq_u32 s{sH}, {cfg.get('stamp_h', 0)}
        s_cbranch_scc0 END
        s_mov_b64 exec, 1
        v_mov_b32 v1, s36
        v_mov_b32 v2, {DBG_TIME}
        buffer_store_dword v1, v2, s[{SRD_DBG}:{SRD_DBG+3}], 0 offen
        s_waitcnt vmcnt(0)
        """)
    a("s_branch END")
```

```python
from layout import *
from common import *
from asmlib import Cnt
import struct

SRD_H1, SRD_H2, SRD_KV, SRD_KM, SRD_FL = 8, 12, 16, 20, 24
SRD_W = {'q': 36, 'k': 40, 'v': 44, 'o': 48}
SRD_T = 52
sH, sSTEP, sT = 32, 33, 35
sKX, sKMO, sH1B, sRH1, sRH2, sRED, sH1S, sWB = 56, 57, 58, 59, 60, 61, 62, 63
sT2, sT3, sSLOW = 98, 99, 97
sR = [36, 37, 38, 39]
sH1P = [40, 41, 42, 43]
sOW = 44
sCS = 46
sG = [48, 49, 50]
sFLN = 51
sWARM = 45
sKXS, sVXS, sKMS, sVMS, sFKM, sONE, sSELC = 64, 65, 66, 67, 68, 69, 70
sM0W, sFLV, sWRM, sWRMX, sG3 = 71, 80, 81, 82, 83
sLATE = 45
S_FLP = 84
sSELM = 72

vT0, vIDX, vF, vL16, vSW, vSWm, vL4b, vW, vRD, vH2, vT1 = 0, 1, 2, 4, 5, 6, 7, 8, 9, 10, 11
A_BUF = [12, 16, 20]
ACCQ, ACCK, ACCV = 24, 32, 40
STG = [48, 56]
KX, VX = 64, 72
WV0 = 80

def tile_reg(i):
    if i < 32: return f"a[{8*i}:{8*i+7}]", ('a', 8 * i)
    b = WV0 + 8 * (i - 32)
    return f"v[{b}:{b+7}]", ('v', b)

REG_TILE = {}
for ci, c in enumerate(REG_CHUNKS):
    for tt in range(2):
        REG_TILE[(c, tt)] = 2 * ci + tt
LDS_SLOT = {c: i for i, c in enumerate(LDS_CHUNKS)}

def stamp_txt(cfg, name):
    st = cfg.get('stamps')
    if st and name in st:
        i = st.index(name)
        if name.startswith("cnt_"): return f"s_mov_b32 s{STAMP_REGS[i]}, s{S_TO}"
        if cfg.get('rt'): return f"s_memrealtime s[{STAMP_REGS[i]}:{STAMP_REGS[i]+1}]"
        return f"s_memtime s[{STAMP_REGS[i]}:{STAMP_REGS[i]+1}]"
    return ""
STAMP_REGS = [4, 6, 52, 54, 86, 88, 90, 92, 46]

def stamp(a, cfg, name):
    t = stamp_txt(cfg, name)
    if t: a(t)

def dump_stamps(a, cfg):
    if not cfg.get('stamps'): return ""
    L = a.label("CH_DS")
    if cfg.get('stamp_all'):
        t = [f"s_cmp_eq_u32 s{sSTEP}, {cfg.get('stamp_step', 32)}", f"s_cbranch_scc0 {L}",
             f"s_cmp_lt_u32 s{S_WAVE}, 2", f"s_cbranch_scc0 {L}",
             "s_waitcnt lgkmcnt(0)", f"s_mul_i32 s{sT}, s{S_WAVE}, 40", f"s_mul_i32 s{sT2}, s{sH}, 80", f"s_add_u32 s{sT}, s{sT}, s{sT2}",
             f"s_add_u32 s{sT}, s{sT}, {FL_G3}", "s_mov_b64 exec, 1"]
        for i in range(len(cfg['stamps'])):
            t += [f"v_mov_b32 v0, s{STAMP_REGS[i]}", f"v_mov_b32 v11, {4*i}",
                  f"buffer_store_dword v0, v11, s[{SRD_FL}:{SRD_FL+3}], s{sT} offen"]
        t += ["s_mov_b64 exec, -1", f"{L}:"]
        return "\n".join(t)
    t = [f"s_cmp_eq_u32 s{sSTEP}, {cfg.get('stamp_step', 32)}", f"s_cbranch_scc0 {L}",
         f"s_cmp_eq_u32 s{sH}, {cfg.get('stamp_h', 0)}", f"s_cbranch_scc0 {L}",
         "s_waitcnt lgkmcnt(0)", f"s_mul_i32 s{sT}, s{S_WAVE}, 40", f"s_add_u32 s{sT}, s{sT}, 96", "s_mov_b64 exec, 1"]
    for i in range(len(cfg['stamps'])):
        t += [f"s_sub_u32 s{sT2}, s{STAMP_REGS[i]}, s{STAMP_REGS[0]}", f"v_mov_b32 v0, s{sT2}", f"v_mov_b32 v11, {4*i}",
              f"buffer_store_dword v0, v11, s[{SRD_DBG}:{SRD_DBG+3}], s{sT} offen"]
    t += ["s_mov_b64 exec, -1", f"{L}:"]
    return "\n".join(t)

def emit_chain_setup(a, cfg):
    a(f"s_mov_b32 s{sH}, s{S_ROLE}")
    srd(a, SRD_H1, S_WS, WS_H1, H1_SIZE)
    srd(a, SRD_H2, S_WS, WS_H2, H2_SIZE)
    srd(a, SRD_KV, S_WS, WS_KX, 2 * QKV_SIZE)
    srd(a, SRD_KM, S_WS, WS_KM, KM_SIZE)
    srd(a, SRD_FL, S_WS, WS_FLAGS, FLAGS_SIZE)
    wsz = DM * H * DH * 2
    srd(a, SRD_W['q'], S_WQ, 0, wsz)
    srd(a, SRD_W['k'], S_WK, 0, wsz)
    srd(a, SRD_W['v'], S_WV, 0, wsz)
    srd(a, SRD_W['o'], S_WO, 0, wsz)
    srd(a, SRD_T, S_MEM0, 0, M * DM * 2)
    w = S_WAVE
    a(f"""
    v_lshlrev_b32 v{vL16}, 4, v0
    v_lshlrev_b32 v{vL4b}, 2, v0
    v_mov_b32 v12, 0
    v_mov_b32 v13, 0
    v_mov_b32 v14, 0
    v_mov_b32 v15, 0
    v_and_b32 v16, 31, v0
    v_lshlrev_b32 v16, 4, v16
    v_lshrrev_b32 v17, 5, v0
    v_lshlrev_b32 v17, 14, v17          ; (lane>>5)*16384
    v_add_u32 v16, v16, v17
    s_lshl_b32 s{sT}, s{sH}, 9
    s_lshl_b32 s{sT2}, s{w}, 15         ; w*2*16384
    s_add_u32 s{sT}, s{sT}, s{sT2}
    """)
    for i in range(3):
        if i == 2:
            a(f"s_cmp_eq_u32 s{w}, 0")
            a("s_cbranch_scc0 CH_INIT_H1_DONE")
        a(f"buffer_store_dwordx4 v[12:15], v16, s[{SRD_H1}:{SRD_H1+3}], s{sT} offen sc1")
        a(f"s_add_u32 s{sT}, s{sT}, {4*2*16384}")
    a("CH_INIT_H1_DONE:")
    a(f"""
    s_cmp_eq_u32 s{w}, 0
    s_cbranch_scc0 CH_INIT_W1
    s_mul_i32 s{sT}, s{sH}, 288
    s_mov_b32 exec_lo, 0x3ffff
    s_mov_b32 exec_hi, 0
    buffer_store_dwordx4 v[12:15], v{vL16}, s[{SRD_H2}:{SRD_H2+3}], s{sT} offen sc1
    s_mov_b64 exec, -1
    s_branch CH_INIT_DONE
    CH_INIT_W1:
    s_lshl_b32 s{sT}, s{sH}, 8
    s_cmp_eq_u32 s{w}, 3
    s_cbranch_scc1 CH_INIT_W3
    s_cmp_eq_u32 s{w}, 2
    s_cselect_b32 s{sT2}, {FL_KM}, {FL_KV}
    s_add_u32 s{sT}, s{sT}, s{sT2}
    buffer_store_dword v12, v{vL4b}, s[{SRD_FL}:{SRD_FL+3}], s{sT} offen sc1
    s_branch CH_INIT_DONE
    CH_INIT_W3:
    s_lshl_b32 s{sT}, s{sH}, 7
    s_add_u32 s{sT}, s{sT}, {FL_G3}
    s_mov_b32 exec_hi, 0
    buffer_store_dword v12, v{vL4b}, s[{SRD_FL}:{SRD_FL+3}], s{sT} offen sc1
    s_mov_b64 exec, -1
    CH_INIT_DONE:
    """)

def emit_dma_issue(a, c, slot, regs):
    m, i = c
    sB, sM0 = regs['sQB'] if m != 'o' else regs['sOB'], regs['sM0']
    for nl in range(4):
        if m != 'o':
            off = i * 524288 + nl * 32768
            vo = regs['vDQ'][nl >> 1]
        else:
            off = i * 128 + nl * 8 * 1152
            vo = regs['vDO'][nl >> 1]
        a(f"s_add_u32 m0, s{sM0}, {slot*16384 + nl*1024}")
        a(f"s_add_u32 s{sT}, s{sB}, {off}")
        a(f"buffer_load_dwordx4 v{vo}, s[{SRD_W[m]}:{SRD_W[m]+3}], s{sT} offen lds")

def emit_chain_weights(a, cfg):
    w = S_WAVE
    vDQ = [12, 13]; vDO = [14, 15]; vTQ = [16, 17]; vTO = 18; vX = 19; vY = 20; vC = 21; vG = 22; vR = 23
    regs = dict(sQB=sT2, sOB=sT3, sM0=100, vDQ=vDQ, vDO=vDO)
    a(f"""
    v_lshrrev_b32 v{vG}, 4, v0
    v_and_b32 v{vC}, 15, v0
    v_lshlrev_b32 v{vX}, 1, v{vG}
    v_xor_b32 v{vX}, v{vX}, v{vC}
    v_lshlrev_b32 v{vY}, 13, v{vG}
    v_lshl_add_u32 v{vDQ[0]}, v{vX}, 4, v{vY}
    v_xor_b32 v{vX}, 8, v{vX}
    v_lshl_add_u32 v{vDQ[1]}, v{vX}, 4, v{vY}
    v_lshrrev_b32 v{vX}, 3, v0
    v_mul_u32_u24 v{vY}, 1152, v{vX}
    v_and_b32 v{vX}, 7, v0
    s_lshl_b32 s{sT}, s{w}, 1
    s_and_b32 s{sT}, s{sT}, 3
    s_lshl_b32 s{sT}, s{sT}, 1
    v_xor_b32 v{vR}, s{sT}, v{vX}
    v_lshl_add_u32 v{vDO[0]}, v{vR}, 4, v{vY}
    s_lshl_b32 s{sT}, s{w}, 1
    s_add_u32 s{sT}, s{sT}, 1
    s_and_b32 s{sT}, s{sT}, 3
    s_lshl_b32 s{sT}, s{sT}, 1
    v_xor_b32 v{vR}, s{sT}, v{vX}
    v_lshl_add_u32 v{vDO[1]}, v{vR}, 4, v{vY}
    s_lshl_b32 s{sT2}, s{sH}, 8
    s_lshl_b32 s{sT}, s{w}, 17
    s_add_u32 s{sT2}, s{sT2}, s{sT}
    s_lshl_b32 s{sT3}, s{sH}, 7
    s_lshl_b32 s{sT}, s{w}, 5
    s_add_u32 s{sT3}, s{sT3}, s{sT}
    s_mul_i32 s{sT3}, s{sT3}, 1152
    s_lshl_b32 s100, s{w}, 12
    s_add_u32 s100, s100, {L_W}
    """)
    order = REG_CHUNKS + LDS_CHUNKS
    for c in range(9):
        emit_dma_issue(a, order[c], c, regs)
    a(f"""
    v_lshrrev_b32 v{vR}, 2, v{vC}
    v_and_b32 v{vX}, 1, v{vR}
    v_lshlrev_b32 v{vX}, 1, v{vX}
    v_and_b32 v{vY}, 1, v{vG}
    v_or_b32 v{vX}, v{vX}, v{vY}
    v_lshrrev_b32 v{vY}, 1, v{vR}
    v_lshl_or_b32 v24, v{vY}, 2, v{vX}
    v_lshl_or_b32 v25, v{vY}, 3, v{vX}
    v_lshrrev_b32 v26, 1, v{vG}
    v_lshl_or_b32 v25, v26, 4, v25
    v_lshlrev_b32 v25, 8, v25
    v_and_b32 v26, 3, v0
    v_lshlrev_b32 v26, 3, v26
    v_add_u32 v25, v25, v26
    s_lshl_b32 s{sT}, s{w}, 1
    v_xor_b32 v27, s{sT}, v24
    v_lshl_add_u32 v{vTQ[0]}, v27, 5, v25
    v_xor_b32 v27, 1, v27
    v_lshl_add_u32 v{vTQ[1]}, v27, 5, v25
    v_and_b32 v24, 1, v{vG}
    v_lshlrev_b32 v25, 5, v24
    v_lshl_or_b32 v25, v{vY}, 4, v25
    v_lshrrev_b32 v27, 1, v{vG}
    v_lshl_or_b32 v25, v27, 2, v25
    v_and_b32 v27, 1, v{vR}
    v_or_b32 v25, v25, v27
    v_lshlrev_b32 v25, 7, v25
    v_add_u32 v25, v25, v26
    v_lshl_or_b32 v24, v24, 1, v{vY}
    v_xor_b32 v24, s{w}, v24
    v_lshl_add_u32 v{vTO}, v24, 5, v25
    """)
    vA0, vA1 = 24, 25
    for ci, c in enumerate(order):
        m, i = c
        slot = ci % 9
        a(f"s_waitcnt vmcnt({4*min(8 if ci==0 else 7, len(order)-1-ci)})")
        a("s_barrier")
        if ci == 0:
            a(f"""
            s_cmp_eq_u32 s{w}, 0
            s_cbranch_scc0 CH_CINIT_SKIP
            s_mov_b64 exec, 1
            v_mov_b32 v26, 1
            v_mov_b32 v27, {DBG_CINIT}
            buffer_atomic_add v26, v27, s[{SRD_DBG}:{SRD_DBG+3}], 0 offen
            s_mov_b64 exec, -1
            CH_CINIT_SKIP:
            """)
        if ci >= 1 and ci + 8 < len(order):
            emit_dma_issue(a, order[ci + 8], (ci + 8) % 9, regs)
        base = L_W + slot * 16384
        a(f"s_mov_b32 s{sT}, {base}")
        if m != 'o':
            a(f"v_add_u32 v{vA0}, s{sT}, v{vTQ[0]}")
            a(f"v_add_u32 v{vA1}, s{sT}, v{vTQ[1]}")
        else:
            a(f"v_add_u32 v{vA0}, s{sT}, v{vTO}")
        for tt in range(2):
            if c in LDS_SLOT or m == 'q':
                kind, rb = 'v', STG[tt]
            else:
                kind, rb = tile_reg(REG_TILE[(c, tt)])[1]
            for p in range(4):
                if m != 'o':
                    off = (32 * (p >> 1) + 4 * (p & 1)) * 256; va = (vA0, vA1)[tt]
                else:
                    off = (8 * (p >> 1) + 2 * (p & 1) + 64 * tt) * 128; va = vA0
                a(f"ds_read_b64_tr_b16 {kind}[{rb+2*p}:{rb+2*p+1}], v{va} offset:{off}")
        a("s_waitcnt lgkmcnt(0)")
        if m == 'q':
            csb = struct.unpack("<I", struct.pack("<f", 128 ** -0.5 * 1.4426950408889634))[0]
            a(f"s_mov_b32 s{sT}, {csb:#x}")
            for tt in range(2):
                for r in range(8):
                    x = STG[tt] + r
                    a(f"v_lshlrev_b32 v26, 16, v{x}")
                    a(f"v_and_b32 v27, 0xffff0000, v{x}")
                    a(f"v_mul_f32 v26, s{sT}, v26")
                    a(f"v_mul_f32 v27, s{sT}, v27")
                    a(f"v_cvt_pk_bf16_f32 v{x}, v26, v27")
                    if c not in LDS_SLOT:
                        kind, rb = tile_reg(REG_TILE[(c, tt)])[1]
                        if kind == 'a': a(f"v_accvgpr_write_b32 a{rb+r}, v{x}")
                        else: a(f"v_mov_b32 v{rb+r}, v{x}")
        if c in LDS_SLOT:
            assert LDS_SLOT[c] == slot
            a("s_barrier")
            a(f"s_lshl_b32 s{sT}, s{w}, 12")
            a(f"s_add_u32 s{sT}, s{sT}, {base}")
            a(f"v_add_u32 v{vA0}, s{sT}, v{vL16}")
            for tt in range(2):
                for hf in range(2):
                    rb = STG[tt] + 4 * hf
                    a(f"ds_write_b128 v{vA0}, v[{rb}:{rb+3}] offset:{tt*2048 + hf*1024}")
            a("s_waitcnt lgkmcnt(0)")

def emit_chain_consts(a, cfg):
    w = S_WAVE
    cs = 128 ** -0.5 * 1.4426950408889634
    csb = struct.unpack("<I", struct.pack("<f", cs))[0]
    a(f"""
    v_and_b32 v12, 2, v0
    v_mov_b32 v13, 0x4444
    v_mov_b32 v14, 0xeeee
    v_cmp_eq_u32 vcc, 2, v12
    v_cndmask_b32 v{vIDX}, v13, v14, vcc
    v_and_b32 v12, 15, v0
    v_lshrrev_b32 v13, 2, v12
    v_lshlrev_b32 v13, 1, v13
    v_and_b32 v12, 1, v12
    v_or_b32 v12, v12, v13               ; token(n)
    v_lshrrev_b32 v13, 4, v0
    v_lshlrev_b32 v13, 1, v13            ; 2G
    v_sub_u32 v12, v12, v13
    v_mov_b32 v13, 0
    v_mov_b32 v14, 0x3f80
    v_cmp_eq_u32 vcc, 0, v12
    v_cndmask_b32 v13, v13, v14, vcc
    v_mov_b32 v14, 0x3f800000
    v_cmp_eq_u32 vcc, 1, v12
    v_cndmask_b32 v{vF}, v13, v14, vcc
    v_mov_b32 v{vF+1}, v{vF}
    s_lshl_b32 s{sT}, s{w}, 12
    s_add_u32 s{sT}, s{sT}, {L_W}
    v_add_u32 v{vW}, s{sT}, v{vL16}
    v_and_b32 v12, 0xffffffdf, v{vL16}          ; lane*16 & ~32
    s_lshl_b32 s{sT}, s{w}, 10
    s_add_u32 s{sT}, s{sT}, {L_S}
    v_add_u32 v{vSW}, s{sT}, v12
    v_and_b32 v12, 0xfffffff7, v{vL4b}          ; lane*4 & ~8
    s_lshl_b32 s{sT}, s{w}, 8
    s_add_u32 s{sT}, s{sT}, {L_S + 4096}
    v_add_u32 v{vSWm}, s{sT}, v12
    v_add_u32 v{vL4b}, {L_S + 4096}, v{vL4b}
    v_lshrrev_b32 v12, 4, v0
    v_and_b32 v13, 15, v0
    v_lshlrev_b32 v13, 4, v13
    v_lshl_add_u32 v{vRD}, v12, 9, v13
    s_lshl_b32 s{sKX}, s{sH}, 13
    s_lshl_b32 s{sT}, s{w}, 11
    s_add_u32 s{sKX}, s{sKX}, s{sT}
    s_lshl_b32 s{sKMO}, s{sH}, 13
    s_lshl_b32 s{sT}, s{w}, 10
    s_add_u32 s{sKMO}, s{sKMO}, s{sT}
    s_lshl_b32 s{sH1B}, s{w}, 16
    s_lshl_b32 s{sT}, s{sH}, 9
    s_add_u32 s{sH1B}, s{sH1B}, s{sT}
    s_lshr_b32 s{sH1S}, s{w}, 1
    s_add_u32 s{sH1S}, s{sH1S}, 16
    s_lshl_b32 s{sH1S}, s{sH1S}, 14
    s_add_u32 s{sH1S}, s{sH1S}, s{sT}
    s_and_b32 s{sT}, s{w}, 1
    s_lshl_b32 s{sT}, s{sT}, 2
    s_add_u32 s{sH1S}, s{sH1S}, s{sT}
    s_mov_b32 s{sRED}, 0
    s_mov_b32 s{sLATE}, 0
    s_mov_b32 s{sRH1}, 0
    s_mov_b32 s{sRH2}, 0
    s_mov_b32 s{sWB}, 0
    s_mov_b32 s{sT}, s{sH}
    s_cmp_eq_u32 s{w}, 0
    s_cbranch_scc1 CH_RED_YES
    s_cmp_eq_u32 s{w}, 1
    s_cbranch_scc0 CH_RED_NO
    s_and_b32 s{sT2}, s{sH}, 7
    s_cmp_eq_u32 s{sT2}, 0
    s_cbranch_scc0 CH_RED_NO
    s_lshr_b32 s{sT}, s{sH}, 3
    s_add_u32 s{sT}, s{sT}, 32
    s_mov_b32 s{sRED}, 1
    CH_RED_YES:
    s_add_u32 s{sRED}, s{sRED}, 1
    s_lshr_b32 s{sT2}, s{sT}, 1
    s_and_b32 s{sT}, s{sT}, 1
    s_lshl_b32 s{sRH1}, s{sT2}, 14
    s_lshl_b32 s{sT3}, s{sT}, 8
    s_add_u32 s{sRH1}, s{sRH1}, s{sT3}
    s_cmp_lt_u32 s{sT2}, 16
    s_cbranch_scc0 CH_RED_HI
    s_and_b32 s{sT3}, s{sT2}, 3
    s_min_u32 s{sLATE}, s{sT3}, 2
    s_lshl_b32 s{sT3}, s{sT3}, 3
    s_lshr_b32 s{sT2}, s{sT2}, 2
    s_add_u32 s{sT3}, s{sT3}, s{sT2}
    s_mov_b32 s{sWB}, 1024
    s_branch CH_RED_AB
    CH_RED_HI:
    s_sub_u32 s{sT3}, s{sT2}, 16
    s_lshl_b32 s{sT3}, s{sT3}, 1
    s_add_u32 s{sT3}, s{sT3}, 32
    s_mov_b32 s{sWB}, 256
    CH_RED_AB:
    s_lshl_b32 s{sRH2}, s{sT3}, 8
    s_lshl_b32 s{sT}, s{sT}, 7
    s_add_u32 s{sRH2}, s{sRH2}, s{sT}
    CH_RED_NO:
    v_and_b32 v12, 15, v0
    v_lshrrev_b32 v13, 4, v0
    v_lshlrev_b32 v13, 5, v13
    v_and_b32 v14, 1, v12
    v_lshl_or_b32 v13, v14, 4, v13
    v_bfe_u32 v14, v12, 2, 1
    v_lshl_or_b32 v13, v14, 3, v13
    v_bfe_u32 v14, v12, 1, 1
    v_mul_lo_u32 v14, v14, s{sWB}
    v_add_u32 v{vH2}, v13, v14
    """)
    a(f"""
    s_cmp_lt_u32 s{w}, 2
    s_cbranch_scc1 CH_W23_DONE
    v_lshlrev_b32 v{vH2}, 7, v0
    v_mov_b32 v{vRD}, 0
    s_cmp_eq_u32 s{w}, 2
    s_cbranch_scc1 CH_W23_DONE
    v_mov_b32 v{vH2}, 0
    CH_W23_DONE:
    """)
    for i in range(4):
        a(f"s_add_u32 s{sR[i]}, s{sRH1}, {i*4096}")
        a(f"s_add_u32 s{sH1P[i]}, s{sH1B}, {i*16384}")
    a(f"""
    s_lshl_b32 s{sOW}, s{w}, 9
    s_add_u32 s{sOW}, s{sOW}, {L_O}
    s_mov_b32 s{sCS}, {csb:#x}
    s_mov_b32 s{sCS+1}, {csb:#x}
    s_mov_b32 s{sKXS}, s{sKX}
    s_add_u32 s{sVXS}, s{sKX}, {QKV_SIZE}
    s_mov_b32 s{sKMS}, s{sKMO}
    s_add_u32 s{sVMS}, s{sKMO}, 4096
    s_lshl_b32 s{sFKM}, s{sH}, 8
    s_add_u32 s{sFKM}, s{sFKM}, {FL_KM}
    s_mov_b32 s{sONE}, 0x3f803f80
    s_lshl_b32 s{sM0W}, s{w}, 9
    s_add_u32 s{sM0W}, s{sM0W}, {L_O}
    s_lshl_b32 s{sWRM}, s{sH}, 13
    s_and_b32 s{sT}, s{w}, 1
    s_lshl_b32 s{sT}, s{sT}, 12
    s_add_u32 s{sWRM}, s{sWRM}, s{sT}
    s_lshr_b32 s{sT}, s{w}, 1
    s_lshl_b32 s{sT}, s{sT}, 24
    s_add_u32 s{sWRM}, s{sWRM}, s{sT}
    s_add_u32 s{sWRMX}, s{sWRM}, {63*262144}
    s_add_u32 s{sWRM}, s{sWRM}, 262144
    s_add_u32 s{S_FLP}, s{S_WS}, {WS_FLAGS}
    s_addc_u32 s{S_FLP+1}, s{S_WS+1}, 0
    s_mov_b32 s{sSELC}, 0x3f80
    v_bfe_u32 v12, v0, 1, 3
    v_cmp_eq_u32 s[{sSELM}:{sSELM+1}], 0, v12
    v_cmp_eq_u32 s[{sSELM+2}:{sSELM+3}], 1, v12
    v_cmp_eq_u32 s[{sSELM+4}:{sSELM+5}], 2, v12
    v_cmp_eq_u32 s[{sSELM+6}:{sSELM+7}], 3, v12
    v_and_b32 v12, 8, v0
    v_cmp_eq_u32 vcc, 0, v12
    s_and_b64 s[{sSELM}:{sSELM+1}], s[{sSELM}:{sSELM+1}], vcc
    s_and_b64 s[{sSELM+2}:{sSELM+3}], s[{sSELM+2}:{sSELM+3}], vcc
    s_and_b64 s[{sSELM+4}:{sSELM+5}], s[{sSELM+4}:{sSELM+5}], vcc
    s_and_b64 s[{sSELM+6}:{sSELM+7}], s[{sSELM+6}:{sSELM+7}], vcc
    s_lshl_b32 s{sG[0]}, s{w}, 10
    s_add_u32 s{sG[1]}, s{sG[0]}, 4096
    s_lshl_b32 s{sG3}, s{w}, 8
    s_add_u32 s{sG[2]}, s{sG3}, 8192
    """)
    srdm = f"s[{SRD_T}:{SRD_T+3}]"
    a(f"""
    v_and_b32 v12, 15, v0
    v_lshrrev_b32 v13, 2, v12
    v_lshlrev_b32 v13, 1, v13
    v_and_b32 v14, 1, v12
    v_or_b32 v13, v13, v14
    v_mul_u32_u24 v13, 1152, v13
    v_bfe_u32 v12, v12, 1, 1
    v_lshl_add_u32 v13, v12, 4, v13
    v_lshrrev_b32 v12, 4, v0
    v_lshl_add_u32 v13, v12, 5, v13
    s_mov_b32 s4, 0x05040100
    s_mov_b32 s5, 0x07060302
    """)
    for i in range(3):
        if i == 2:
            a(f"s_cmp_eq_u32 s{w}, 0")
            a("s_cbranch_scc0 CH_M0_DONE")
        a(f"""
        s_add_u32 s{sT}, s{w}, {4*i}
        s_lshl_b32 s{sT2}, s{sT}, 7
        buffer_load_dwordx4 v[16:19], v13, {srdm}, s{sT2} offen
        s_lshl_b32 s{sT2}, s{sT}, 10
        v_add_u32 v14, s{sT2}, v{vL16}
        s_waitcnt vmcnt(0)
        v_perm_b32 v20, v17, v16, s4
        v_perm_b32 v21, v19, v18, s4
        v_perm_b32 v22, v17, v16, s5
        v_perm_b32 v23, v19, v18, s5
        ds_write_b128 v14, v[20:23] offset:{L_MEM}
        """)
    a("CH_M0_DONE:")
    a("s_waitcnt lgkmcnt(0)")


def lds_tile(c, tt, dst):
    off = LDS_SLOT[c] * 16384 + tt * 2048
    va = vW
    if off >= 131072: va, off = vT0, off - 131072
    elif off >= 65536: va, off = vT1, off - 65536
    return [f"ds_read_b128 v[{dst}:{dst+3}], v{va} offset:{off}", f"ds_read_b128 v[{dst+4}:{dst+7}], v{va} offset:{off+1024}"]

def smf(acc, abuf, wt):
    return f"v_smfmac_f32_16x16x64_bf16 v[{acc}:{acc+3}], v[{abuf}:{abuf+3}], {wt}, v{vIDX}"

def rt(c, tt): return tile_reg(REG_TILE[(c, tt)])[0]
def vt(b): return f"v[{b}:{b+7}]"

def zero(a, regs):
    regs = list(regs)
    for i in range(0, len(regs), 2):
        assert regs[i] % 2 == 0 and regs[i + 1] == regs[i] + 1
        a(f"v_mov_b64 v[{regs[i]}:{regs[i]+1}], 0")

S0, S1 = STG[0], STG[1]
PRE = [(('q', 0), 0, S0), (('q', 0), 1, S1), (('k', 0), 0, KX), (('k', 0), 1, VX), (('q', 2), 0, ACCV)]

def preload_next(a):
    for (c, tt, dst) in PRE:
        for o in lds_tile(c, tt, dst): a(o)
    zero(a, range(ACCQ, ACCK + 8))

def aread_txt(kt, i):
    b = A_BUF[i % 3]
    return f"ds_read_b128 v[{b}:{b+3}], v{vL16} offset:{L_MEM + kt*1024}"

KTV = list(range(9))

def emit_compute(a, cfg, st, par, sfx, lg, vm, tagop):
    w = S_WAVE
    DPPX = "quad_perm:[2,3,0,1] row_mask:0xf bank_mask:0xf"
    kmfl = '' if cfg.get('plain_km') else 'sc1'
    aseq = list(range(9)) + KTV
    lg.q = [('A', 0), ('A', 1), ('A', 2)]
    def anext(i):
        if i + 3 < 18: lg.issue(('A', i + 3), aread_txt(aseq[i + 3], i + 3))
    slot1 = {0: S0, 1: S1, 2: KX, 3: VX, 8: ACCV, 9: S0, 14: S1, 15: ACCV, 20: S0, 21: S1, 26: ACCV, 27: S0, 34: S1, 35: S0}
    refill = {0: (9, ('q', 2), 1), 1: (14, ('k', 3), 0), 8: (15, ('k', 3), 1), 9: (20, ('q', 5), 0), 14: (21, ('q', 5), 1),
              15: (26, ('k', 6), 0), 20: (27, ('k', 6), 1), 21: (34, ('k', 8), 0), 27: (35, ('k', 8), 1)}
    fo = []
    seq = [0]
    def add(dl, kind, x):
        seq[0] += 1; fo.append((dl, seq[0], kind, x)); fo.sort()
    add(1, 'v', f"v_add_u32 v{vT1}, 65536, v{vW}")
    def put(item):
        _, _, kind, x = item
        if kind == 'v': a(x)
        elif kind == 'l': lg.issue(x[0], x[1])
        elif kind == 'vm': vm.issue(x[0], x[1])
    for n in range(36):
        kt, j = n >> 2, n & 3
        ab = A_BUF[kt % 3]
        tags = [('A', kt)] if j == 0 else []
        if n in slot1 and n > 3 and n != 8:
            assert not any(it[2] == 'l' and it[3][0][:2] == ('W', n) for it in fo), n
            tags += [('W', n, 0), ('W', n, 1)]
        lg.wait(*tags)
        m = 'q' if j < 2 else 'k'
        wt = vt(slot1[n]) if n in slot1 else rt((m, kt), j & 1)
        a(smf((ACCQ if j < 2 else ACCK) + 4 * (j & 1), ab, wt))
        if n in refill:
            un, ch, tt = refill[n]
            for i_, o in enumerate(lds_tile(ch, tt, slot1[un])): add(un - 8 + i_, 'l', (('W', un, i_), o))
        if j == 3 and kt + 3 < 18: add(0, 'l', (('A', kt + 3), aread_txt(aseq[kt + 3], kt + 3)))
        if n == 3:
            add(9, 'vm', ('KX', f"buffer_load_dwordx4 v[{KX}:{KX+3}], v{vL16}, s[{SRD_KV}:{SRD_KV+3}], s{sKXS} offen sc1"))
            add(10, 'vm', ('KX', f"buffer_load_dwordx4 v[{KX+4}:{KX+7}], v{vL16}, s[{SRD_KV}:{SRD_KV+3}], s{sKXS} offen offset:1024 sc1"))
            add(11, 'vm', ('VX', f"buffer_load_dwordx4 v[{VX}:{VX+3}], v{vL16}, s[{SRD_KV}:{SRD_KV+3}], s{sVXS} offen sc1"))
            add(12, 'vm', ('VX', f"buffer_load_dwordx4 v[{VX+4}:{VX+7}], v{vL16}, s[{SRD_KV}:{SRD_KV+3}], s{sVXS} offen offset:1024 sc1"))
            add(12, 'v', f"v_and_b32 v{vT0}, 0x1f0, v{vL16}")
            add(13, 'v', f"v_lshlrev_b32 v{vT0}, 3, v{vT0}\ns_mov_b32 m0, s{sM0W}")
            add(14, 'vm', ('WARM', f"buffer_load_dword v{vT0}, s[{SRD_KV}:{SRD_KV+3}], s{sWRM} offen sc1 lds"))
        if n == 26:
            for r in range(ACCV, ACCV + 8, 2): add(34, 'v', f"v_mov_b64 v[{r}:{r+1}], 0")
        if fo: put(fo.pop(0))
        while fo and fo[0][0] < n: put(fo.pop(0))
    while fo: put(fo.pop(0))
    stamp(a, cfg, 'p1')
    vs = {'i': 0}
    deferred = []
    def flush_deferred():
        for t, o in deferred: lg.issue(t, o)
        del deferred[:]
    def V(n, defer=False):
        iss = (lambda t, o: deferred.append((t, o))) if defer else lg.issue
        for _ in range(n):
            i = vs['i']
            if i >= 18: return
            kt = KTV[i >> 1]; tt = i & 1; ai = 9 + (i >> 1)
            if tt == 0: lg.wait(('A', ai))
            a(smf(ACCV + 4 * tt, A_BUF[ai % 3], rt(('v', kt), tt)))
            if tt == 1 and ai + 3 < 18: iss(('A', ai + 3), aread_txt(aseq[ai + 3], ai + 3))
            vs['i'] += 1
    V(2)
    a(f"""
    v_cvt_pk_bf16_f32 v24, v24, v25
    v_cvt_pk_bf16_f32 v25, v26, v27
    v_cvt_pk_bf16_f32 v26, v28, v29
    v_cvt_pk_bf16_f32 v27, v30, v31
    v_mfma_f32_16x16x16_bf16 v[28:31], v[24:25], v[{vF}:{vF+1}], 0
    v_cvt_pk_bf16_f32 v32, v32, v33
    v_cvt_pk_bf16_f32 v33, v34, v35
    v_cvt_pk_bf16_f32 v34, v36, v37
    v_cvt_pk_bf16_f32 v35, v38, v39
    v_mfma_f32_16x16x16_bf16 v[36:39], v[26:27], v[{vF}:{vF+1}], 0
    v_mfma_f32_16x16x16_bf16 v[48:51], v[32:33], v[{vF}:{vF+1}], 0
    v_mfma_f32_16x16x16_bf16 v[52:55], v[34:35], v[{vF}:{vF+1}], 0
    """)
    V(2)
    a(f"""
    v_cvt_pk_bf16_f32 v24, v28, v29
    v_cvt_pk_bf16_f32 v25, v30, v31
    v_cvt_pk_bf16_f32 v26, v36, v37
    v_cvt_pk_bf16_f32 v27, v38, v39
    """)
    vm.wait('KX')
    a(f"""
    v_mfma_f32_16x16x32_bf16 v[28:31], v[{KX}:{KX+3}], v[24:27], 0
    v_cvt_pk_bf16_f32 v32, v48, v49
    v_cvt_pk_bf16_f32 v33, v50, v51
    v_mfma_f32_16x16x32_bf16 v[36:39], v[{KX+4}:{KX+7}], v[24:27], 0
    v_cvt_pk_bf16_f32 v34, v52, v53
    v_cvt_pk_bf16_f32 v35, v54, v55
    """)
    a("v_mfma_f32_16x16x32_bf16 v[64:67], v[32:35], v[24:27], 0")
    vm.issue('KM', f"buffer_store_dwordx4 v[32:35], v{vL16}, s[{SRD_KM}:{SRD_KM+3}], s{sKMS} offen {kmfl}")
    V(2, defer=True)
    lg.issue('SW', f"ds_write2_b64 v{vSW}, v[28:29], v[30:31] offset0:0 offset1:4")
    lg.issue('SW', f"ds_write2_b64 v{vSW}, v[36:37], v[38:39] offset0:1 offset1:5")
    lg.issue('SW', f"ds_write2_b32 v{vSWm}, v64, v65 offset0:0 offset1:2")
    flush_deferred()
    for tt in range(2):
        for j, o in enumerate(lds_tile(('o', 1), tt, (S1, S0)[tt])): lg.issue(('W', f"o1{'ab'[tt]}", j), o)
    V(2)
    lg.wait('SW')
    a("s_barrier")
    stamp(a, cfg, 'b1')
    for wp in range(4):
        lg.issue('SR', f"ds_read_b128 v[{24+4*wp}:{27+4*wp}], v{vL16} offset:{L_S + wp*1024}")
    lg.issue('SR', f"ds_read2st64_b32 v[64:65], v{vL4b} offset0:0 offset1:1")
    lg.issue('SR', f"ds_read2st64_b32 v[66:67], v{vL4b} offset0:2 offset1:3")
    V(4)
    lg.wait('SR')
    FB = a.label("CH_FB")
    a(f"""
    v_pk_add_f32 v[24:25], v[24:25], v[28:29]
    v_pk_add_f32 v[26:27], v[26:27], v[30:31]
    v_pk_add_f32 v[32:33], v[32:33], v[36:37]
    v_pk_add_f32 v[34:35], v[34:35], v[38:39]
    v_pk_add_f32 v[64:65], v[64:65], v[66:67]
    v_pk_add_f32 v[24:25], v[24:25], v[32:33]
    v_pk_add_f32 v[26:27], v[26:27], v[34:35]
    v_add_f32 v64, v64, v65
    v_max3_f32 v{vT0}, |v24|, |v25|, |v26|
    v_exp_f32 v24, v24
    v_max3_f32 v{vT0}, v{vT0}, |v27|, |v64|
    v_exp_f32 v25, v25
    v_cmp_lt_f32 vcc, 0x42700000, v{vT0}
    v_exp_f32 v26, v26
    v_exp_f32 v27, v27
    v_exp_f32 v64, v64
    s_cbranch_vccnz {FB}
    v_cvt_pk_bf16_f32 v28, v24, v25
    v_cvt_pk_bf16_f32 v30, v26, v27
    v_mov_b32_dpp v65, v64 {DPPX}
    v_mov_b32_dpp v29, v28 {DPPX}
    v_mov_b32_dpp v31, v30 {DPPX}
    v_cvt_pk_bf16_f32 v66, v64, v65
    v_cvt_pk_bf16_f32 v67, v64, v65
    {FB}_join:
    """)
    stamp(a, cfg, 'sm')
    vm.wait('VX')
    a(f"""
    v_mfma_f32_16x16x32_bf16 v[32:35], v[{VX}:{VX+3}], v[28:31], 0
    v_mfma_f32_16x16x32_bf16 v[36:39], v[{VX+4}:{VX+7}], v[28:31], 0
    v_dot2_f32_bf16 v68, v28, s{sONE}, v64
    v_dot2_f32_bf16 v68, v30, s{sONE}, v68
    v_add_u32 v{vT0}, 131072, v{vW}
    """)
    V(2)
    a(f"v_add_f32_dpp v68, v68, v68 {DPPX}")
    for j, o in enumerate(lds_tile(('o', 3), 0, VX)): lg.issue(('W', 'o3a', j), o)
    a("v_mov_b32 v69, v68")
    for j, o in enumerate(lds_tile(('o', 3), 1, 24)): lg.issue(('W', 'o3b', j), o)
    a("v_permlane16_swap_b32 v68, v69")
    a("v_add_f32 v68, v68, v69")
    V(1)
    a("v_mov_b32 v69, v68")
    V(1)
    a("v_permlane32_swap_b32 v68, v69")
    a("v_add_f32 v68, v68, v69")
    V(18)
    a("v_rcp_f32 v68, v68")
    a(f"""
    v_cvt_pk_bf16_f32 v40, v40, v41
    v_cvt_pk_bf16_f32 v41, v42, v43
    v_cvt_pk_bf16_f32 v42, v44, v45
    v_cvt_pk_bf16_f32 v43, v46, v47
    v_lshrrev_b32 v{vT1}, 1, v{vL16}
    v_mfma_f32_16x16x16_bf16 v[32:35], v[40:41], v[66:67], v[32:35]
    v_mfma_f32_16x16x16_bf16 v[36:39], v[42:43], v[66:67], v[36:39]
    """)
    vm.issue('VM', f"buffer_store_dwordx4 v[40:43], v{vL16}, s[{SRD_KM}:{SRD_KM+3}], s{sVMS} offen {kmfl}")
    a(f"""
    v_mov_b64 v[20:21], 0
    v_mov_b64 v[22:23], 0
    v_mov_b64 v[44:45], 0
    v_mov_b64 v[46:47], 0
    v_add_u32 v{vT0}, s{sOW}, v{vT1}
    s_mov_b32 vcc_lo, 0x33333333
    s_mov_b32 vcc_hi, 0x33333333
    v_pk_mul_f32 v[32:33], v[32:33], v[68:69] op_sel_hi:[1,0]
    v_pk_mul_f32 v[34:35], v[34:35], v[68:69] op_sel_hi:[1,0]
    v_pk_mul_f32 v[36:37], v[36:37], v[68:69] op_sel_hi:[1,0]
    v_pk_mul_f32 v[38:39], v[38:39], v[68:69] op_sel_hi:[1,0]
    v_cvt_pk_bf16_f32 v32, v32, v33
    v_cvt_pk_bf16_f32 v33, v34, v35
    v_cvt_pk_bf16_f32 v34, v36, v37
    v_cvt_pk_bf16_f32 v35, v38, v39
    v_cndmask_b32_dpp v32, v34, v32, vcc quad_perm:[0,1,0,1] row_mask:0xf bank_mask:0xf
    v_cndmask_b32_dpp v33, v35, v33, vcc quad_perm:[0,1,0,1] row_mask:0xf bank_mask:0xf
    """)
    stamp(a, cfg, 'pv')
    vm.wait('WARM')
    lg.issue('OW', f"ds_write_b64 v{vT0}, v[32:33]")
    zero(a, [40, 41, 42, 43, 64, 65, 66, 67, 68, 69, 70, 71, 36, 37, 38, 39])
    lg.wait('OW')
    a("s_barrier")
    lg.issue('OA', f"ds_read2st64_b64 v[12:15], v{vT1} offset0:{L_O//512} offset1:{L_O//512 + 1}")
    lg.issue('OA', f"ds_read2st64_b64 v[16:19], v{vT1} offset0:{L_O//512 + 2} offset1:{L_O//512 + 3}")
    zero(a, [32, 33, 34, 35])
    lg.wait('OA', *[('W', n, j) for n in ('o1a', 'o1b', 'o3a', 'o3b') for j in range(2)])
    stamp(a, cfg, 'wo')
    slots = {1: (S1, S0), 3: (VX, 24)}
    free = [20, 44, 40, 64, 68, 36, 32]
    acc_of = {}
    def post(cb, dst, tag):
        acc = acc_of[cb]
        r = [f"v_add_f32 v{acc}, v{acc}, v{acc+2}", f"v_add_f32 v{acc+1}, v{acc+1}, v{acc+3}",
             f"v_cvt_pk_bf16_f32 v{dst}, v{acc}, v{acc+1}"]
        if tag: r.append(tagop(dst))
        return r
    work = []
    def drainw(n=1):
        for _ in range(n):
            if work:
                kind, x = work.pop(0)
                if kind == 'v': a(x)
                elif kind == 'vm': vm.issue('H1', x)
                elif kind == 'free': free.append(x); drainw()
    def q_pair(pi, ca, cb_):
        d = acc_of[ca]
        for t in post(ca, d, True): work.append(('v', t))
        for t in post(cb_, d + 1, False): work.append(('v', t))
        work.append(('vm', f"buffer_store_dwordx2 v[{d}:{d+1}], v{vT1}, s[{SRD_H1}:{SRD_H1+3}], s{sH1P[pi]} offen {st}"))
    order = [8, 0, 1, 2, 3, 4, 5, 6, 7]
    nd = cfg.get('wodrain', 2)
    for idx, cb in enumerate(order):
        while not free: drainw()
        acc = free.pop(0)
        acc_of[cb] = acc
        oc = ('o', cb)
        w0, w1 = (vt(slots[cb][0]), vt(slots[cb][1])) if cb in slots else (rt(oc, 0), rt(oc, 1))
        a(smf(acc, 12, w0)); drainw(nd)
        a(smf(acc, 16, w1)); drainw(nd)
        if idx == 2:
            for t in post(8, acc_of[8], True): work.append(('v', t))
            work.append(('vm', f"buffer_store_dword v{acc_of[8]}, v{vT1}, s[{SRD_H1}:{SRD_H1+3}], s{sH1S} offen {st}"))
            work.append(('v', f"v_mov_b64 v[{acc_of[8]}:{acc_of[8]+1}], 0")); work.append(('v', f"v_mov_b64 v[{acc_of[8]+2}:{acc_of[8]+3}], 0"))
            work.append(('free', acc_of[8]))
        if idx == 4:
            q_pair(0, 0, 1)
            work.append(('v', f"v_mov_b64 v[{acc_of[1]}:{acc_of[1]+1}], 0")); work.append(('v', f"v_mov_b64 v[{acc_of[1]+2}:{acc_of[1]+3}], 0"))
            work.append(('free', acc_of[1]))
        if idx == 6:
            q_pair(1, 2, 3)
        if idx == 8:
            q_pair(2, 4, 5)
    q_pair(3, 6, 7)
    while work: drainw()
    return dict(label=FB)

def emit_fallback(a, cfg, fb):
    DPPX = "quad_perm:[2,3,0,1] row_mask:0xf bank_mask:0xf"
    FB = fb['label']
    a(f"{FB}:")
    a(f"""
    s_waitcnt lgkmcnt(0)
    ds_read_b128 v[24:27], v{vL16} offset:{L_S}
    ds_read_b128 v[28:31], v{vL16} offset:{L_S + 1024}
    ds_read_b128 v[32:35], v{vL16} offset:{L_S + 2048}
    ds_read_b128 v[36:39], v{vL16} offset:{L_S + 3072}
    ds_read2st64_b32 v[64:65], v{vL4b} offset0:0 offset1:1
    ds_read2st64_b32 v[66:67], v{vL4b} offset0:2 offset1:3
    s_waitcnt lgkmcnt(0)
    """)
    for r in range(4): a(f"v_add_f32 v{24+r}, v{24+r}, v{28+r}")
    for r in range(4): a(f"v_add_f32 v{32+r}, v{32+r}, v{36+r}")
    a("v_add_f32 v64, v64, v65")
    a("v_add_f32 v66, v66, v67")
    for r in range(4): a(f"v_add_f32 v{24+r}, v{24+r}, v{32+r}")
    a(f"""
    v_add_f32 v64, v64, v66
    v_max3_f32 v36, v24, v25, v26
    v_max3_f32 v36, v36, v27, v64
    v_max_f32_dpp v36, v36, v36 {DPPX}
    v_mov_b32 v37, v36
    v_permlane16_swap_b32 v36, v37
    v_max_f32 v36, v36, v37
    v_mov_b32 v37, v36
    v_permlane32_swap_b32 v36, v37
    v_max_f32 v36, v36, v37
    v_sub_f32 v24, v24, v36
    v_sub_f32 v25, v25, v36
    v_sub_f32 v26, v26, v36
    v_sub_f32 v27, v27, v36
    v_sub_f32 v64, v64, v36
    v_exp_f32 v24, v24
    v_exp_f32 v25, v25
    v_exp_f32 v26, v26
    v_exp_f32 v27, v27
    v_exp_f32 v64, v64
    v_cvt_pk_bf16_f32 v28, v24, v25
    v_cvt_pk_bf16_f32 v30, v26, v27
    v_mov_b32_dpp v65, v64 {DPPX}
    v_mov_b32_dpp v29, v28 {DPPX}
    v_mov_b32_dpp v31, v30 {DPPX}
    v_cvt_pk_bf16_f32 v66, v64, v65
    v_cvt_pk_bf16_f32 v67, v64, v65
    s_nop 1
    s_branch {FB}_join
    """)

fbs = []
def emit_step(a, cfg, slow, par, sfx, nxt):
    w = S_WAVE
    st = "sc1" if slow else ""
    FAIL = "CH_FAIL"
    lg = Cnt(a, "lgkmcnt", 15); vm = Cnt(a, "vmcnt", 63)
    a(f"CH_STEP{sfx}:")
    stamp(a, cfg, 'top')
    tagop = (lambda r: f"v_or_b32 v{r}, 1, v{r}") if par else (lambda r: f"v_and_b32 v{r}, -2, v{r}")
    if cfg.get('nocompute'):
        for _ in range(cfg.get('delay', 0)): a("s_nop 15")
        a(f"v_lshrrev_b32 v{vT1}, 1, v{vL16}")
        a(f"v_mov_b32 v24, {par}")
        a(f"v_mov_b32 v25, {par}")
        for pi in range(4):
            a(f"buffer_store_dwordx2 v[24:25], v{vT1}, s[{SRD_H1}:{SRD_H1+3}], s{sH1P[pi]} offen {st}")
        a(f"buffer_store_dword v24, v{vT1}, s[{SRD_H1}:{SRD_H1+3}], s{sH1S} offen {st}")
    else:
        fbs.append(emit_compute(a, cfg, st, par, sfx, lg, vm, tagop))
    stamp(a, cfg, 'post')
    a(f"s_load_dword s{sFLV}, s[{S_FLP}:{S_FLP+1}], s{sFLN} glc")
    chk = (0xF0 | (~0xCC & 0xFF) | (~0xAA & 0xFF)) if par else (0xF0 | 0xCC | 0xAA)
    RL = a.label("CH_RED")
    if not cfg.get('nohops'):
        a(f"s_cmp_eq_u32 s{sRED}, 0")
        a(f"s_cbranch_scc1 {RL}_skip")
        a(f"v_and_b32 v56, 16, v{vL16}")
        a(f"v_lshlrev_b32_e64 v56, v56, s{sSELC}")
        for jj in range(4):
            a(f"v_cndmask_b32 v{60+jj}, 0, v56, s[{sSELM+2*jj}:{sSELM+2*jj+1}]")
        if cfg.get('rsleep'):
            SL = a.label("CH_RS")
            a(f"s_cmp_eq_u32 s{sLATE}, 0")
            a(f"s_cbranch_scc1 {SL}")
            a(f"s_cmp_eq_u32 s{sLATE}, 1")
            a(f"s_cbranch_scc1 {SL}_1")
            a(f"s_sleep {cfg['rsleep']}")
            a(f"s_branch {SL}")
            a(f"{SL}_1:")
            a(f"s_sleep {max(cfg['rsleep'] - cfg.get('rs1', 1), 1)}")
            a(f"{SL}:")
        stamp(a, cfg, 'r_go')
        a(f"s_mov_b32 s{S_TO}, 0")
        LB = 24
        for variant in range(2):
            R2 = f"{RL}_v{variant}"
            if variant == 0:
                a(f"s_cmp_eq_u32 s{sRED}, 2")
                a(f"s_cbranch_scc1 {RL}_v1")
            a(f"{R2}:")
            for cc in range(8):
                a(f"buffer_load_dwordx4 v[{LB+4*cc}:{LB+3+4*cc}], v{vRD}, s[{SRD_H1}:{SRD_H1+3}], s{sR[cc>>1]} offen offset:{(cc&1)*2048} sc1")
            a("v_mov_b32 v12, 0")
            for c2 in range(4):
                a(f"s_waitcnt vmcnt({6-2*c2})")
                for cc in (2 * c2, 2 * c2 + 1):
                    b = LB + 4 * cc
                    c_in = "0" if cc == 0 else "v[56:59]"
                    a(f"v_mfma_f32_16x16x32_bf16 v[56:59], v[{b}:{b+3}], v[60:63], {c_in}")
                    if variant == 0:
                        a(f"v_bitop3_b32 v12, v12, v{b}, v{b+2} bitop3:{chk:#x}")
                    else:
                        a(f"v_bitop3_b32 v12, v12, v{b}, v{b+1} bitop3:{chk:#x}")
                        a(f"v_bitop3_b32 v12, v12, v{b+2}, v{b+3} bitop3:{chk:#x}")
            a(f"""
            v_and_b32 v12, 1, v12
            v_cmp_ne_u32 vcc, 0, v12
            s_cbranch_vccz {RL}_ok
            s_add_u32 s{S_TO}, s{S_TO}, 1
            s_cmp_lt_u32 s{S_TO}, {TIMEOUT}
            s_cbranch_scc1 {R2}
            s_branch {FAIL}
            """)
        a(f"""
        {RL}_ok:
        {stamp_txt(cfg, 'r_ok')}
        {stamp_txt(cfg, 'cnt_r')}
        s_mov_b32 exec_lo, 0x00ff00ff
        s_mov_b32 exec_hi, 0x00ff00ff
        v_cvt_pk_bf16_f32 v60, v56, v57
        v_cvt_pk_bf16_f32 v61, v58, v59
        {tagop(60)}
        buffer_store_dwordx2 v[60:61], v{vH2}, s[{SRD_H2}:{SRD_H2+3}], s{sRH2} offen {st}
        s_mov_b64 exec, -1
        {RL}_skip:
        {stamp_txt(cfg, 'r_st')}
        """)
    else:
        a("s_waitcnt vmcnt(0)")
    a(f"v_add_u32 v{vT1}, 65536, v{vW}") if False else None
    preload_next(a)
    a(f"""
    s_add_u32 s{sKXS}, s{sKXS}, 262144
    s_add_u32 s{sVXS}, s{sVXS}, 262144
    s_add_u32 s{sKMS}, s{sKMS}, 262144
    s_add_u32 s{sVMS}, s{sVMS}, 262144
    s_add_u32 s{sWRM}, s{sWRM}, 262144
    s_min_u32 s{sWRM}, s{sWRM}, s{sWRMX}
    """)
    if not cfg.get('nohops'):
        a("s_barrier")
        if cfg.get('gsleep'): a(f"s_sleep {cfg['gsleep']}")
        stamp(a, cfg, 'gat')
        GL = a.label("CH_GAT")
        SETS = [12, 24]
        def gissue(b):
            a(f"v_mov_b32 v{b+8}, {par}")
            a(f"v_mov_b32 v{b+10}, {par}")
            a(f"buffer_load_dwordx4 v[{b}:{b+3}], v{vL16}, s[{SRD_H2}:{SRD_H2+3}], s{sG[0]} offen sc1")
            a(f"buffer_load_dwordx4 v[{b+4}:{b+7}], v{vL16}, s[{SRD_H2}:{SRD_H2+3}], s{sG[1]} offen sc1")
            a("s_mov_b64 exec, 0xffff")
            a(f"buffer_load_dwordx4 v[{b+8}:{b+11}], v{vL16}, s[{SRD_H2}:{SRD_H2+3}], s{sG[2]} offen sc1")
            a("s_mov_b64 exec, -1")
        def gcheck(b, ok, n):
            a(f"s_waitcnt vmcnt({n})")
            a(f"v_bitop3_b32 v{vT0}, 0, v{b}, v{b+2} bitop3:{chk:#x}")
            a(f"v_bitop3_b32 v{vT0}, v{vT0}, v{b+4}, v{b+6} bitop3:{chk:#x}")
            a(f"v_bitop3_b32 v{vT0}, v{vT0}, v{b+8}, v{b+10} bitop3:{chk:#x}")
            a(f"v_and_b32 v{vT0}, 1, v{vT0}")
            a(f"v_cmp_ne_u32 vcc, 0, v{vT0}")
            a(f"s_cbranch_vccz {ok}")
        def gwrite(b):
            a(f"ds_write_b128 v{vT1}, v[{b}:{b+3}] offset:{L_MEM}")
            a(f"ds_write_b128 v{vT1}, v[{b+4}:{b+7}] offset:{L_MEM + 4096}")
            a(f"v_add_u32 v{vT1}, s{sG3}, v{vL16}")
            a("s_mov_b64 exec, 0xffff")
            a(f"ds_write_b128 v{vT1}, v[{b+8}:{b+11}] offset:{L_MEM + 8192}")
            a("s_mov_b64 exec, -1")
        a(f"s_mov_b32 s{S_TO}, 0")
        a(f"v_add_u32 v{vT1}, s{sG[0]}, v{vL16}")
        a(f"{GL}:")
        gissue(SETS[0])
        gcheck(SETS[0], f"{GL}_okA", 0)
        a(f"""
        s_add_u32 s{S_TO}, s{S_TO}, 1
        s_cmp_lt_u32 s{S_TO}, {TIMEOUT}
        s_cbranch_scc1 {GL}
        s_branch {FAIL}
        {GL}_okA:
        {stamp_txt(cfg, 'gatok')}
        {stamp_txt(cfg, 'cnt_g')}
        """)
        gwrite(SETS[0])
    a("s_waitcnt lgkmcnt(0)")
    FK = a.label("CH_FK")
    a(f"""
    s_cmp_eq_u32 s{sFLV}, 1
    s_cbranch_scc1 {FK}
    s_cmp_eq_u32 s{w}, 3
    s_cbranch_scc0 {FK}
    s_cmp_ge_u32 s{sSTEP}, {cfg.get('nsteps', 64) - 2}
    s_cbranch_scc1 {FK}
    v_mov_b32 v{vT1}, s{sFLN}
    """)
    poll_dword_eq(a, SRD_FL, vT1, vT0, 1, FAIL, "CH_FKV" + sfx, sleep=1)
    a(f"{FK}:")
    a(f"s_add_u32 s{sFLN}, s{sFLN}, 4")
    a("s_barrier")
    for i in range(3): a(aread_txt(i, i))
    NF = a.label("CH_NF")
    a(f"""
    s_cmp_eq_u32 s{w}, 3
    s_cbranch_scc0 {NF}
    s_mov_b64 exec, 1
    v_mov_b32 v{vT0}, 1
    buffer_store_dword v{vT0}, v{vH2}, s[{SRD_FL}:{SRD_FL+3}], s{sFKM} offen sc1
    s_mov_b64 exec, -1
    {NF}:
    s_add_u32 s{sFKM}, s{sFKM}, 4
    {stamp_txt(cfg, 'end')}
    {prog_stamp(a, cfg)}
    {dump_stamps(a, cfg)}
    s_add_u32 s{sSTEP}, s{sSTEP}, 1
    s_cmp_lt_u32 s{sSTEP}, {cfg.get('nsteps', 64)}
    s_cbranch_scc0 CH_DONE
    """)
    if nxt: a(f"s_branch CH_STEP{nxt}")

def prog_stamp(a, cfg):
    if not cfg.get('prog'): return ""
    L = a.label("PST")
    return f"""
    s_and_b32 s4, s{sSTEP}, 7
    s_cmp_eq_u32 s4, 7
    s_cbranch_scc0 {L}
    s_cmp_eq_u32 s{S_ROLE}, 0
    s_cbranch_scc0 {L}
    s_cmp_eq_u32 s{S_WAVE}, 0
    s_cbranch_scc0 {L}
    s_memrealtime s[4:5]
    s_memtime s[6:7]
    s_waitcnt lgkmcnt(0)
    s_mov_b64 exec, 1
    v_mov_b32 v0, s4
    s_lshr_b32 s5, s{sSTEP}, 3
    s_lshl_b32 s5, s5, 2
    s_add_u32 s5, s5, 192
    v_mov_b32 v11, s5
    buffer_store_dword v0, v11, s[{SRD_DBG}:{SRD_DBG+3}], 0 offen
    v_mov_b32 v0, s6
    buffer_store_dword v0, v11, s[{SRD_DBG}:{SRD_DBG+3}], 0 offen offset:32
    s_mov_b64 exec, -1
    {L}:
    """

def cstamp(a, cfg, i):
    if not cfg.get('ctime'): return
    L = a.label("CST")
    a(f"""
    s_cmp_eq_u32 s{S_ROLE}, 0
    s_cbranch_scc0 {L}
    s_cmp_eq_u32 s{S_WAVE}, 0
    s_cbranch_scc0 {L}
    s_memrealtime s[4:5]
    s_waitcnt lgkmcnt(0)
    s_mov_b64 exec, 1
    v_mov_b32 v0, s4
    v_mov_b32 v11, {DBG_STAMP + 32 + 4*i}
    buffer_store_dword v0, v11, s[{SRD_DBG}:{SRD_DBG+3}], 0 offen
    s_mov_b64 exec, -1
    v_mbcnt_lo_u32_b32 v0, -1, 0
    v_mbcnt_hi_u32_b32 v0, -1, v0
    {L}:
    """)

def emit_chain(a, cfg):
    a("ROLE_CHAIN:")
    cstamp(a, cfg, 0)
    emit_chain_setup(a, cfg)
    emit_chain_weights(a, cfg)
    emit_chain_consts(a, cfg)
    cstamp(a, cfg, 1)
    a(f"v_mov_b32 v{vT1}, {DBG_CINIT}")
    poll_dword_eq(a, SRD_DBG, vT1, vT0, 32, "CH_FAIL", "CH_CI")
    a(f"""
    v_mov_b32 v{vT1}, {DBG_SLOW}
    buffer_load_dword v{vT0}, v{vT1}, s[{SRD_DBG}:{SRD_DBG+3}], 0 offen sc1
    s_waitcnt vmcnt(0)
    v_readfirstlane_b32 s{sSLOW}, v{vT0}
    s_mov_b32 s{sSTEP}, 0
    s_lshl_b32 s{sFLN}, s{sH}, 8
    s_add_u32 s{sFLN}, s{sFLN}, {FL_KV}
    v_mov_b32 v{vT1}, s{sFLN}
    """)
    poll_dword_eq(a, SRD_FL, vT1, vT0, 1, "CH_FAIL", "CH_F0", sleep=1)
    a(f"s_add_u32 s{sFLN}, s{sFLN}, 4")
    a(f"v_mov_b32 v{vT1}, s{sFLN}")
    poll_dword_eq(a, SRD_FL, vT1, vT0, 1, "CH_FAIL", "CH_F1", sleep=1)
    a(f"s_add_u32 s{sFLN}, s{sFLN}, 4")
    preload_next(a)
    a("s_waitcnt lgkmcnt(0)")
    a("s_barrier")
    for i in range(3): a(aread_txt(i, i))
    cstamp(a, cfg, 2)
    if cfg.get('timing'):
        a("s_memtime s[4:5]\ns_waitcnt lgkmcnt(0)")
        a("s_mov_b32 s101, s4")
    if cfg.get('force_slow'):
        a(f"s_mov_b32 s{sSLOW}, 1")
    a(f"s_cmp_eq_u32 s{sSLOW}, 0")
    a("s_cbranch_scc0 CH_STEP_S1")
    emit_step(a, cfg, False, 1, "_F1", None)
    emit_step(a, cfg, False, 0, "_F0", "_F1")
    emit_step(a, cfg, True, 1, "_S1", None)
    emit_step(a, cfg, True, 0, "_S0", "_S1")
    for fb in fbs: emit_fallback(a, cfg, fb)
    del fbs[:]
    a("CH_FAIL:")
    a(f"""
    s_mov_b64 exec, 1
    v_mov_b32 v1, 0xdead
    v_mov_b32 v2, {DBG_FAIL}
    buffer_store_dword v1, v2, s[{SRD_DBG}:{SRD_DBG+3}], 0 offen
    s_waitcnt vmcnt(0)
    s_branch END
    """)
    a("CH_DONE:")
    cstamp(a, cfg, 3)
    if cfg.get('timing'):
        a(f"""
        s_memtime s[36:37]
        s_waitcnt lgkmcnt(0)
        s_sub_u32 s36, s36, s101
        s_cmp_eq_u32 s{sH}, {cfg.get('stamp_h', 0)}
        s_cbranch_scc0 END
        s_mov_b64 exec, 1
        v_mov_b32 v1, s36
        v_mov_b32 v2, {DBG_TIME}
        buffer_store_dword v1, v2, s[{SRD_DBG}:{SRD_DBG+3}], 0 offen
        s_waitcnt vmcnt(0)
        """)
    a("s_branch END")
```

```python
from layout import *
from common import *
from asmlib import Cnt
import struct

SRD_H1, SRD_H2, SRD_KV, SRD_KM, SRD_FL = 8, 12, 16, 20, 24
SRD_W = {'q': 36, 'k': 40, 'v': 44, 'o': 48}
SRD_T = 52
sH, sSTEP, sT = 32, 33, 35
sKX, sKMO, sH1B, sRH1, sRH2, sRED, sH1S, sWB = 56, 57, 58, 59, 60, 61, 62, 63
sT2, sT3, sSLOW = 98, 99, 97
sR = [36, 37, 38, 39]
sH1P = [40, 41, 42, 43]
sOW = 44
sCS = 46
sG = [48, 49, 50]
sFLN = 51
sKXS, sVXS, sKMS, sVMS, sFKM, sONE, sSELC = 64, 65, 66, 67, 68, 69, 70
sFLV, sWRM, sWRMX, sG3 = 80, 81, 82, 83
sLATE = 45
sSPARE = 71
S_FLP = 84
sSELM = 72

vT0, vIDX, vF, vL16, vSW, vSWm, vL4b, vW, vRD, vH2, vT1 = 0, 1, 2, 4, 5, 6, 7, 8, 9, 10, 11
vWA = vH2
A_BUF = [12, 16, 20]
ACCQ, ACCK, ACCV = 24, 32, 40
STG = [48, 56]
KX, VX = 64, 72
WV0 = 80

def tile_reg(i):
    if i < 32: return f"a[{8*i}:{8*i+7}]", ('a', 8 * i)
    b = WV0 + 8 * (i - 32)
    return f"v[{b}:{b+7}]", ('v', b)

REG_TILE = {}
for ci, c in enumerate(REG_CHUNKS):
    for tt in range(2):
        REG_TILE[(c, tt)] = 2 * ci + tt
LDS_SLOT = {c: i for i, c in enumerate(LDS_CHUNKS)}

def stamp_txt(cfg, name):
    st = cfg.get('stamps')
    if st and name in st:
        i = st.index(name)
        if name.startswith("cnt_"): return f"s_mov_b32 s{STAMP_REGS[i]}, s{S_TO}"
        if cfg.get('rt'): return f"s_memrealtime s[{STAMP_REGS[i]}:{STAMP_REGS[i]+1}]"
        return f"s_memtime s[{STAMP_REGS[i]}:{STAMP_REGS[i]+1}]"
    return ""
STAMP_REGS = [4, 6, 52, 54, 86, 88, 90, 92, 46]

def stamp(a, cfg, name):
    t = stamp_txt(cfg, name)
    if t: a(t)

def dump_stamps(a, cfg):
    if not cfg.get('stamps'): return ""
    L = a.label("CH_DS")
    if cfg.get('stamp_all'):
        t = [f"s_cmp_eq_u32 s{sSTEP}, {cfg.get('stamp_step', 32)}", f"s_cbranch_scc0 {L}",
             f"s_cmp_lt_u32 s{S_WAVE}, 2", f"s_cbranch_scc0 {L}",
             "s_waitcnt lgkmcnt(0)", f"s_mul_i32 s{sT}, s{S_WAVE}, 40", f"s_mul_i32 s{sT2}, s{sH}, 80", f"s_add_u32 s{sT}, s{sT}, s{sT2}",
             f"s_add_u32 s{sT}, s{sT}, {FL_G3}", "s_mov_b64 exec, 1"]
        for i in range(len(cfg['stamps'])):
            t += [f"v_mov_b32 v0, s{STAMP_REGS[i]}", f"v_mov_b32 v11, {4*i}",
                  f"buffer_store_dword v0, v11, s[{SRD_FL}:{SRD_FL+3}], s{sT} offen"]
        t += ["s_mov_b64 exec, -1", f"{L}:"]
        return "\n".join(t)
    t = [f"s_cmp_eq_u32 s{sSTEP}, {cfg.get('stamp_step', 32)}", f"s_cbranch_scc0 {L}",
         f"s_cmp_eq_u32 s{sH}, {cfg.get('stamp_h', 0)}", f"s_cbranch_scc0 {L}",
         "s_waitcnt lgkmcnt(0)", f"s_mul_i32 s{sT}, s{S_WAVE}, 40", f"s_add_u32 s{sT}, s{sT}, 96", "s_mov_b64 exec, 1"]
    for i in range(len(cfg['stamps'])):
        t += [f"s_sub_u32 s{sT2}, s{STAMP_REGS[i]}, s{STAMP_REGS[0]}", f"v_mov_b32 v0, s{sT2}", f"v_mov_b32 v11, {4*i}",
              f"buffer_store_dword v0, v11, s[{SRD_DBG}:{SRD_DBG+3}], s{sT} offen"]
    t += ["s_mov_b64 exec, -1", f"{L}:"]
    return "\n".join(t)

def emit_chain_setup(a, cfg):
    a(f"s_mov_b32 s{sH}, s{S_ROLE}")
    if cfg.get('hxor'): a(f"s_xor_b32 s{sH}, s{sH}, {cfg['hxor']}")
    srd(a, SRD_H1, S_WS, WS_H1, H1_SIZE)
    srd(a, SRD_H2, S_WS, WS_H2, H2_SIZE)
    srd(a, SRD_KV, S_WS, WS_KX, 2 * QKV_SIZE)
    srd(a, SRD_KM, S_WS, WS_KM, KM_SIZE)
    srd(a, SRD_FL, S_WS, WS_FLAGS, FLAGS_SIZE)
    wsz = DM * H * DH * 2
    srd(a, SRD_W['q'], S_WQ, 0, wsz)
    srd(a, SRD_W['k'], S_WK, 0, wsz)
    srd(a, SRD_W['v'], S_WV, 0, wsz)
    srd(a, SRD_W['o'], S_WO, 0, wsz)
    srd(a, SRD_T, S_MEM0, 0, M * DM * 2)
    w = S_WAVE
    a(f"""
    v_lshlrev_b32 v{vL16}, 4, v0
    v_lshlrev_b32 v{vL4b}, 2, v0
    v_mov_b32 v12, 0
    v_mov_b32 v13, 0
    v_mov_b32 v14, 0
    v_mov_b32 v15, 0
    v_and_b32 v16, 31, v0
    v_lshlrev_b32 v16, 4, v16
    v_lshrrev_b32 v17, 5, v0
    v_lshlrev_b32 v17, 14, v17          ; (lane>>5)*16384
    v_add_u32 v16, v16, v17
    s_lshl_b32 s{sT}, s{sH}, 9
    s_lshl_b32 s{sT2}, s{w}, 15         ; w*2*16384
    s_add_u32 s{sT}, s{sT}, s{sT2}
    """)
    for i in range(3):
        if i == 2:
            a(f"s_cmp_eq_u32 s{w}, 0")
            a("s_cbranch_scc0 CH_INIT_H1_DONE")
        a(f"buffer_store_dwordx4 v[12:15], v16, s[{SRD_H1}:{SRD_H1+3}], s{sT} offen sc1")
        a(f"s_add_u32 s{sT}, s{sT}, {4*2*16384}")
    a("CH_INIT_H1_DONE:")
    a(f"""
    s_cmp_eq_u32 s{w}, 0
    s_cbranch_scc0 CH_INIT_W1
    s_mul_i32 s{sT}, s{sH}, 288
    s_mov_b32 exec_lo, 0x3ffff
    s_mov_b32 exec_hi, 0
    buffer_store_dwordx4 v[12:15], v{vL16}, s[{SRD_H2}:{SRD_H2+3}], s{sT} offen sc1
    s_mov_b64 exec, -1
    s_branch CH_INIT_DONE
    CH_INIT_W1:
    s_lshl_b32 s{sT}, s{sH}, 8
    s_cmp_eq_u32 s{w}, 3
    s_cbranch_scc1 CH_INIT_W3
    s_cmp_eq_u32 s{w}, 2
    s_cselect_b32 s{sT2}, {FL_KM}, {FL_KV}
    s_add_u32 s{sT}, s{sT}, s{sT2}
    buffer_store_dword v12, v{vL4b}, s[{SRD_FL}:{SRD_FL+3}], s{sT} offen sc1
    s_branch CH_INIT_DONE
    CH_INIT_W3:
    s_lshl_b32 s{sT}, s{sH}, 7
    s_add_u32 s{sT}, s{sT}, {FL_G3}
    s_mov_b32 exec_hi, 0
    buffer_store_dword v12, v{vL4b}, s[{SRD_FL}:{SRD_FL+3}], s{sT} offen sc1
    s_mov_b64 exec, -1
    CH_INIT_DONE:
    """)

def emit_dma_issue(a, c, slot, regs):
    m, i = c
    sB, sM0 = regs['sQB'] if m != 'o' else regs['sOB'], regs['sM0']
    for nl in range(4):
        if m != 'o':
            off = i * 524288 + nl * 32768
            vo = regs['vDQ'][nl >> 1]
        else:
            off = i * 128 + nl * 8 * 1152
            vo = regs['vDO'][nl >> 1]
        a(f"s_add_u32 m0, s{sM0}, {slot*16384 + nl*1024}")
        a(f"s_add_u32 s{sT}, s{sB}, {off}")
        a(f"buffer_load_dwordx4 v{vo}, s[{SRD_W[m]}:{SRD_W[m]+3}], s{sT} offen lds")

def emit_chain_weights(a, cfg):
    w = S_WAVE
    vDQ = [12, 13]; vDO = [14, 15]; vTQ = [16, 17]; vTO = 18; vX = 19; vY = 20; vC = 21; vG = 22; vR = 23
    regs = dict(sQB=sT2, sOB=sT3, sM0=100, vDQ=vDQ, vDO=vDO)
    a(f"""
    v_lshrrev_b32 v{vG}, 4, v0
    v_and_b32 v{vC}, 15, v0
    v_lshlrev_b32 v{vX}, 1, v{vG}
    v_xor_b32 v{vX}, v{vX}, v{vC}
    v_lshlrev_b32 v{vY}, 13, v{vG}
    v_lshl_add_u32 v{vDQ[0]}, v{vX}, 4, v{vY}
    v_xor_b32 v{vX}, 8, v{vX}
    v_lshl_add_u32 v{vDQ[1]}, v{vX}, 4, v{vY}
    v_lshrrev_b32 v{vX}, 3, v0
    v_mul_u32_u24 v{vY}, 1152, v{vX}
    v_and_b32 v{vX}, 7, v0
    s_lshl_b32 s{sT}, s{w}, 1
    s_and_b32 s{sT}, s{sT}, 3
    s_lshl_b32 s{sT}, s{sT}, 1
    v_xor_b32 v{vR}, s{sT}, v{vX}
    v_lshl_add_u32 v{vDO[0]}, v{vR}, 4, v{vY}
    s_lshl_b32 s{sT}, s{w}, 1
    s_add_u32 s{sT}, s{sT}, 1
    s_and_b32 s{sT}, s{sT}, 3
    s_lshl_b32 s{sT}, s{sT}, 1
    v_xor_b32 v{vR}, s{sT}, v{vX}
    v_lshl_add_u32 v{vDO[1]}, v{vR}, 4, v{vY}
    s_lshl_b32 s{sT2}, s{sH}, 8
    s_lshl_b32 s{sT}, s{w}, 17
    s_add_u32 s{sT2}, s{sT2}, s{sT}
    s_lshl_b32 s{sT3}, s{sH}, 7
    s_lshl_b32 s{sT}, s{w}, 5
    s_add_u32 s{sT3}, s{sT3}, s{sT}
    s_mul_i32 s{sT3}, s{sT3}, 1152
    s_lshl_b32 s100, s{w}, 12
    s_add_u32 s100, s100, {L_W}
    """)
    order = REG_CHUNKS + LDS_CHUNKS
    for c in range(9):
        emit_dma_issue(a, order[c], c, regs)
    a(f"""
    v_lshrrev_b32 v{vR}, 2, v{vC}
    v_and_b32 v{vX}, 1, v{vR}
    v_lshlrev_b32 v{vX}, 1, v{vX}
    v_and_b32 v{vY}, 1, v{vG}
    v_or_b32 v{vX}, v{vX}, v{vY}
    v_lshrrev_b32 v{vY}, 1, v{vR}
    v_lshl_or_b32 v24, v{vY}, 2, v{vX}
    v_lshl_or_b32 v25, v{vY}, 3, v{vX}
    v_lshrrev_b32 v26, 1, v{vG}
    v_lshl_or_b32 v25, v26, 4, v25
    v_lshlrev_b32 v25, 8, v25
    v_and_b32 v26, 3, v0
    v_lshlrev_b32 v26, 3, v26
    v_add_u32 v25, v25, v26
    s_lshl_b32 s{sT}, s{w}, 1
    v_xor_b32 v27, s{sT}, v24
    v_lshl_add_u32 v{vTQ[0]}, v27, 5, v25
    v_xor_b32 v27, 1, v27
    v_lshl_add_u32 v{vTQ[1]}, v27, 5, v25
    v_and_b32 v24, 1, v{vG}
    v_lshlrev_b32 v25, 5, v24
    v_lshl_or_b32 v25, v{vY}, 4, v25
    v_lshrrev_b32 v27, 1, v{vG}
    v_lshl_or_b32 v25, v27, 2, v25
    v_and_b32 v27, 1, v{vR}
    v_or_b32 v25, v25, v27
    v_lshlrev_b32 v25, 7, v25
    v_add_u32 v25, v25, v26
    v_lshl_or_b32 v24, v24, 1, v{vY}
    v_xor_b32 v24, s{w}, v24
    v_lshl_add_u32 v{vTO}, v24, 5, v25
    """)
    vA0, vA1 = 24, 25
    for ci, c in enumerate(order):
        m, i = c
        slot = ci % 9
        a(f"s_waitcnt vmcnt({4*min(8 if ci==0 else 7, len(order)-1-ci)})")
        a("s_barrier")
        if ci == 0:
            a(f"""
            s_cmp_eq_u32 s{w}, 0
            s_cbranch_scc0 CH_CINIT_SKIP
            s_mov_b64 exec, 1
            v_mov_b32 v26, 1
            v_mov_b32 v27, {DBG_CINIT}
            buffer_atomic_add v26, v27, s[{SRD_DBG}:{SRD_DBG+3}], 0 offen
            s_mov_b64 exec, -1
            CH_CINIT_SKIP:
            """)
        if ci >= 1 and ci + 8 < len(order):
            emit_dma_issue(a, order[ci + 8], (ci + 8) % 9, regs)
        base = L_W + slot * 16384
        a(f"s_mov_b32 s{sT}, {base}")
        if m != 'o':
            a(f"v_add_u32 v{vA0}, s{sT}, v{vTQ[0]}")
            a(f"v_add_u32 v{vA1}, s{sT}, v{vTQ[1]}")
        else:
            a(f"v_add_u32 v{vA0}, s{sT}, v{vTO}")
        for tt in range(2):
            if c in LDS_SLOT or m == 'q':
                kind, rb = 'v', STG[tt]
            else:
                kind, rb = tile_reg(REG_TILE[(c, tt)])[1]
            for p in range(4):
                if m != 'o':
                    off = (32 * (p >> 1) + 4 * (p & 1)) * 256; va = (vA0, vA1)[tt]
                else:
                    off = (8 * (p >> 1) + 2 * (p & 1) + 64 * tt) * 128; va = vA0
                a(f"ds_read_b64_tr_b16 {kind}[{rb+2*p}:{rb+2*p+1}], v{va} offset:{off}")
        a("s_waitcnt lgkmcnt(0)")
        if m == 'q':
            csb = struct.unpack("<I", struct.pack("<f", 128 ** -0.5 * 1.4426950408889634))[0]
            a(f"s_mov_b32 s{sT}, {csb:#x}")
            for tt in range(2):
                for r in range(8):
                    x = STG[tt] + r
                    a(f"v_lshlrev_b32 v26, 16, v{x}")
                    a(f"v_and_b32 v27, 0xffff0000, v{x}")
                    a(f"v_mul_f32 v26, s{sT}, v26")
                    a(f"v_mul_f32 v27, s{sT}, v27")
                    a(f"v_cvt_pk_bf16_f32 v{x}, v26, v27")
                    if c not in LDS_SLOT:
                        kind, rb = tile_reg(REG_TILE[(c, tt)])[1]
                        if kind == 'a': a(f"v_accvgpr_write_b32 a{rb+r}, v{x}")
                        else: a(f"v_mov_b32 v{rb+r}, v{x}")
        if c in LDS_SLOT:
            assert LDS_SLOT[c] == slot
            a("s_barrier")
            a(f"s_lshl_b32 s{sT}, s{w}, 12")
            a(f"s_add_u32 s{sT}, s{sT}, {base}")
            a(f"v_add_u32 v{vA0}, s{sT}, v{vL16}")
            for tt in range(2):
                for hf in range(2):
                    rb = STG[tt] + 4 * hf
                    a(f"ds_write_b128 v{vA0}, v[{rb}:{rb+3}] offset:{tt*2048 + hf*1024}")
            a("s_waitcnt lgkmcnt(0)")

def emit_chain_consts(a, cfg):
    w = S_WAVE
    cs = 128 ** -0.5 * 1.4426950408889634
    csb = struct.unpack("<I", struct.pack("<f", cs))[0]
    a(f"""
    v_and_b32 v12, 2, v0
    v_mov_b32 v13, 0x4444
    v_mov_b32 v14, 0xeeee
    v_cmp_eq_u32 vcc, 2, v12
    v_cndmask_b32 v{vIDX}, v13, v14, vcc
    v_and_b32 v12, 15, v0
    v_lshrrev_b32 v13, 2, v12
    v_lshlrev_b32 v13, 1, v13
    v_and_b32 v12, 1, v12
    v_or_b32 v12, v12, v13               ; token(n)
    v_lshrrev_b32 v13, 4, v0
    v_lshlrev_b32 v13, 1, v13            ; 2G
    v_sub_u32 v12, v12, v13
    v_mov_b32 v13, 0
    v_mov_b32 v14, 0x3f80
    v_cmp_eq_u32 vcc, 0, v12
    v_cndmask_b32 v13, v13, v14, vcc
    v_mov_b32 v14, 0x3f800000
    v_cmp_eq_u32 vcc, 1, v12
    v_cndmask_b32 v{vF}, v13, v14, vcc
    v_mov_b32 v{vF+1}, v{vF}
    s_lshl_b32 s{sT}, s{w}, 12
    s_add_u32 s{sT}, s{sT}, {L_W}
    v_add_u32 v{vW}, s{sT}, v{vL16}
    v_and_b32 v12, 0xffffffdf, v{vL16}          ; lane*16 & ~32
    s_lshl_b32 s{sT}, s{w}, 10
    s_add_u32 s{sT}, s{sT}, {L_S}
    v_add_u32 v{vSW}, s{sT}, v12
    v_and_b32 v12, 0xfffffff7, v{vL4b}          ; lane*4 & ~8
    s_lshl_b32 s{sT}, s{w}, 8
    s_add_u32 s{sT}, s{sT}, {L_S + 4096}
    v_add_u32 v{vSWm}, s{sT}, v12
    v_add_u32 v{vL4b}, {L_S + 4096}, v{vL4b}
    v_lshrrev_b32 v12, 4, v0
    v_and_b32 v13, 15, v0
    v_lshlrev_b32 v13, 4, v13
    v_lshl_add_u32 v{vRD}, v12, 9, v13
    s_lshl_b32 s{sKX}, s{sH}, 13
    s_lshl_b32 s{sT}, s{w}, 11
    s_add_u32 s{sKX}, s{sKX}, s{sT}
    s_lshl_b32 s{sKMO}, s{sH}, 13
    s_lshl_b32 s{sT}, s{w}, 10
    s_add_u32 s{sKMO}, s{sKMO}, s{sT}
    s_lshl_b32 s{sH1B}, s{w}, 16
    s_lshl_b32 s{sT}, s{sH}, 9
    s_add_u32 s{sH1B}, s{sH1B}, s{sT}
    s_lshr_b32 s{sH1S}, s{w}, 1
    s_add_u32 s{sH1S}, s{sH1S}, 16
    s_lshl_b32 s{sH1S}, s{sH1S}, 14
    s_add_u32 s{sH1S}, s{sH1S}, s{sT}
    s_and_b32 s{sT}, s{w}, 1
    s_lshl_b32 s{sT}, s{sT}, 2
    s_add_u32 s{sH1S}, s{sH1S}, s{sT}
    s_mov_b32 s{sRED}, 0
    s_mov_b32 s{sLATE}, 0
    s_mov_b32 s{sRH1}, 0
    s_mov_b32 s{sRH2}, 0
    s_mov_b32 s{sWB}, 0
    s_mov_b32 s{sT}, s{sH}
    s_cmp_eq_u32 s{w}, 0
    s_cbranch_scc1 CH_RED_YES
    s_cmp_eq_u32 s{w}, 1
    s_cbranch_scc0 CH_RED_NO
    s_and_b32 s{sT2}, s{sH}, 7
    s_cmp_eq_u32 s{sT2}, 0
    s_cbranch_scc0 CH_RED_NO
    s_lshr_b32 s{sT}, s{sH}, 3
    s_add_u32 s{sT}, s{sT}, 32
    s_mov_b32 s{sRED}, 1
    CH_RED_YES:
    s_add_u32 s{sRED}, s{sRED}, 1
    s_lshr_b32 s{sT2}, s{sT}, 1
    s_and_b32 s{sT}, s{sT}, 1
    s_lshl_b32 s{sRH1}, s{sT2}, 14
    s_lshl_b32 s{sT3}, s{sT}, 8
    s_add_u32 s{sRH1}, s{sRH1}, s{sT3}
    s_cmp_lt_u32 s{sT2}, 16
    s_cbranch_scc0 CH_RED_HI
    s_and_b32 s{sT3}, s{sT2}, 3
    s_min_u32 s{sLATE}, s{sT3}, 2
    s_lshl_b32 s{sT3}, s{sT3}, 3
    s_lshr_b32 s{sT2}, s{sT2}, 2
    s_add_u32 s{sT3}, s{sT3}, s{sT2}
    s_mov_b32 s{sWB}, 1024
    s_branch CH_RED_AB
    CH_RED_HI:
    s_sub_u32 s{sT3}, s{sT2}, 16
    s_lshl_b32 s{sT3}, s{sT3}, 1
    s_add_u32 s{sT3}, s{sT3}, 32
    s_mov_b32 s{sWB}, 256
    CH_RED_AB:
    s_lshl_b32 s{sRH2}, s{sT3}, 8
    s_lshl_b32 s{sT}, s{sT}, 7
    s_add_u32 s{sRH2}, s{sRH2}, s{sT}
    CH_RED_NO:
    v_and_b32 v12, 15, v0
    v_lshrrev_b32 v13, 4, v0
    v_lshlrev_b32 v13, 5, v13
    v_and_b32 v14, 1, v12
    v_lshl_or_b32 v13, v14, 4, v13
    v_bfe_u32 v14, v12, 2, 1
    v_lshl_or_b32 v13, v14, 3, v13
    v_bfe_u32 v14, v12, 1, 1
    v_mul_lo_u32 v14, v14, s{sWB}
    v_add_u32 v{vH2}, v13, v14
    """)
    a(f"""
    s_cmp_lt_u32 s{w}, 2
    s_cbranch_scc1 CH_W23_DONE
    v_lshlrev_b32 v{vH2}, 7, v0
    v_mov_b32 v{vRD}, 0
    CH_W23_DONE:
    """)
    for i in range(4):
        a(f"s_add_u32 s{sR[i]}, s{sRH1}, {i*4096}")
        a(f"s_add_u32 s{sH1P[i]}, s{sH1B}, {i*16384}")
    a(f"""
    s_lshl_b32 s{sOW}, s{w}, 9
    s_add_u32 s{sOW}, s{sOW}, {L_O}
    s_mov_b32 s{sCS}, {csb:#x}
    s_mov_b32 s{sCS+1}, {csb:#x}
    s_mov_b32 s{sKXS}, s{sKX}
    s_add_u32 s{sVXS}, s{sKX}, {QKV_SIZE}
    s_mov_b32 s{sKMS}, s{sKMO}
    s_add_u32 s{sVMS}, s{sKMO}, 4096
    s_lshl_b32 s{sFKM}, s{sH}, 8
    s_add_u32 s{sFKM}, s{sFKM}, {FL_KM}
    s_mov_b32 s{sONE}, 0x3f803f80
    s_lshl_b32 s{sSPARE}, s{sH}, 4
    s_lshl_b32 s{sT}, s{w}, 2
    s_add_u32 s{sSPARE}, s{sSPARE}, s{sT}
    s_add_u32 s{sSPARE}, s{sSPARE}, {FL_SPARE}
    s_lshl_b32 s{sWRM}, s{sH}, 13
    s_and_b32 s{sT}, s{w}, 1
    s_lshl_b32 s{sT}, s{sT}, 24
    s_add_u32 s{sWRM}, s{sWRM}, s{sT}
    s_add_u32 s{sWRMX}, s{sWRM}, {63*262144}
    s_add_u32 s{sWRM}, s{sWRM}, 262144
    s_add_u32 s{S_FLP}, s{S_WS}, {WS_FLAGS}
    s_addc_u32 s{S_FLP+1}, s{S_WS+1}, 0
    s_mov_b32 s{sSELC}, 0x3f80
    v_bfe_u32 v12, v0, 1, 3
    v_cmp_eq_u32 s[{sSELM}:{sSELM+1}], 0, v12
    v_cmp_eq_u32 s[{sSELM+2}:{sSELM+3}], 1, v12
    v_cmp_eq_u32 s[{sSELM+4}:{sSELM+5}], 2, v12
    v_cmp_eq_u32 s[{sSELM+6}:{sSELM+7}], 3, v12
    v_and_b32 v12, 8, v0
    v_cmp_eq_u32 vcc, 0, v12
    s_and_b64 s[{sSELM}:{sSELM+1}], s[{sSELM}:{sSELM+1}], vcc
    s_and_b64 s[{sSELM+2}:{sSELM+3}], s[{sSELM+2}:{sSELM+3}], vcc
    s_and_b64 s[{sSELM+4}:{sSELM+5}], s[{sSELM+4}:{sSELM+5}], vcc
    s_and_b64 s[{sSELM+6}:{sSELM+7}], s[{sSELM+6}:{sSELM+7}], vcc
    s_lshl_b32 s{sG[0]}, s{w}, 10
    s_add_u32 s{sG[1]}, s{sG[0]}, 4096
    s_lshl_b32 s{sG3}, s{w}, 8
    s_add_u32 s{sG[2]}, s{sG3}, 8192
    """)
    srdm = f"s[{SRD_T}:{SRD_T+3}]"
    a(f"""
    v_and_b32 v12, 15, v0
    v_lshrrev_b32 v13, 2, v12
    v_lshlrev_b32 v13, 1, v13
    v_and_b32 v14, 1, v12
    v_or_b32 v13, v13, v14
    v_mul_u32_u24 v13, 1152, v13
    v_bfe_u32 v12, v12, 1, 1
    v_lshl_add_u32 v13, v12, 4, v13
    v_lshrrev_b32 v12, 4, v0
    v_lshl_add_u32 v13, v12, 5, v13
    s_mov_b32 s4, 0x05040100
    s_mov_b32 s5, 0x07060302
    """)
    for i in range(3):
        if i == 2:
            a(f"s_cmp_eq_u32 s{w}, 0")
            a("s_cbranch_scc0 CH_M0_DONE")
        a(f"""
        s_add_u32 s{sT}, s{w}, {4*i}
        s_lshl_b32 s{sT2}, s{sT}, 7
        buffer_load_dwordx4 v[16:19], v13, {srdm}, s{sT2} offen
        s_lshl_b32 s{sT2}, s{sT}, 10
        v_add_u32 v14, s{sT2}, v{vL16}
        s_waitcnt vmcnt(0)
        v_perm_b32 v20, v17, v16, s4
        v_perm_b32 v21, v19, v18, s4
        v_perm_b32 v22, v17, v16, s5
        v_perm_b32 v23, v19, v18, s5
        ds_write_b128 v14, v[20:23] offset:{L_MEM}
        """)
    a("CH_M0_DONE:")
    a("s_waitcnt lgkmcnt(0)")


def lds_tile(c, tt, dst):
    off = LDS_SLOT[c] * 16384 + tt * 2048
    va = vW
    if off >= 131072: va, off = vT0, off - 131072
    elif off >= 65536: va, off = vT1, off - 65536
    return [f"ds_read_b128 v[{dst}:{dst+3}], v{va} offset:{off}", f"ds_read_b128 v[{dst+4}:{dst+7}], v{va} offset:{off+1024}"]

def smf(acc, abuf, wt):
    return f"v_smfmac_f32_16x16x64_bf16 v[{acc}:{acc+3}], v[{abuf}:{abuf+3}], {wt}, v{vIDX}"

def rt(c, tt): return tile_reg(REG_TILE[(c, tt)])[0]
def vt(b): return f"v[{b}:{b+7}]"

def zero(a, regs):
    regs = list(regs)
    for i in range(0, len(regs), 2):
        assert regs[i] % 2 == 0 and regs[i + 1] == regs[i] + 1
        a(f"v_mov_b64 v[{regs[i]}:{regs[i]+1}], 0")

S0, S1 = STG[0], STG[1]
PRE = [(('q', 0), 0, S0), (('q', 0), 1, S1), (('k', 0), 0, KX), (('k', 0), 1, VX), (('q', 2), 0, ACCV)]

def preload_next(a):
    for (c, tt, dst) in PRE:
        for o in lds_tile(c, tt, dst): a(o)
    zero(a, range(ACCQ, ACCK + 8))

def aread_txt(kt, i):
    b = A_BUF[i % 3]
    return f"ds_read_b128 v[{b}:{b+3}], v{vL16} offset:{L_MEM + kt*1024}"

KTV = list(range(9))

def emit_compute(a, cfg, st, par, sfx, lg, vm, tagop):
    w = S_WAVE
    DPPX = "quad_perm:[2,3,0,1] row_mask:0xf bank_mask:0xf"
    kmfl = '' if cfg.get('plain_km') else 'sc1'
    aseq = list(range(9)) + KTV
    lg.q = [('A', 0), ('A', 1), ('A', 2)]
    def anext(i):
        if i + 3 < 18: lg.issue(('A', i + 3), aread_txt(aseq[i + 3], i + 3))
    slot1 = {0: S0, 1: S1, 2: KX, 3: VX, 8: ACCV, 9: S0, 14: S1, 15: ACCV, 20: S0, 21: S1, 26: ACCV, 27: S0, 34: S1, 35: S0}
    refill = {0: (9, ('q', 2), 1), 1: (14, ('k', 3), 0), 8: (15, ('k', 3), 1), 9: (20, ('q', 5), 0), 14: (21, ('q', 5), 1),
              15: (26, ('k', 6), 0), 20: (27, ('k', 6), 1), 21: (34, ('k', 8), 0), 27: (35, ('k', 8), 1)}
    fo = []
    seq = [0]
    def add(dl, kind, x):
        seq[0] += 1; fo.append((dl, seq[0], kind, x)); fo.sort()
    add(1, 'v', f"v_add_u32 v{vT1}, 65536, v{vW}")
    def put(item):
        _, _, kind, x = item
        if kind == 'v': a(x)
        elif kind == 'l': lg.issue(x[0], x[1])
        elif kind == 'vm': vm.issue(x[0], x[1])
    for n in range(36):
        kt, j = n >> 2, n & 3
        ab = A_BUF[kt % 3]
        tags = [('A', kt)] if j == 0 else []
        if n in slot1 and n > 3 and n != 8:
            assert not any(it[2] == 'l' and it[3][0][:2] == ('W', n) for it in fo), n
            tags += [('W', n, 0), ('W', n, 1)]
        lg.wait(*tags)
        m = 'q' if j < 2 else 'k'
        wt = vt(slot1[n]) if n in slot1 else rt((m, kt), j & 1)
        a(smf((ACCQ if j < 2 else ACCK) + 4 * (j & 1), ab, wt))
        if n in refill:
            un, ch, tt = refill[n]
            for i_, o in enumerate(lds_tile(ch, tt, slot1[un])): add(un - 8 + i_, 'l', (('W', un, i_), o))
        if j == 3 and kt + 3 < 18: add(0, 'l', (('A', kt + 3), aread_txt(aseq[kt + 3], kt + 3)))
        if n == 3:
            add(9, 'vm', ('KX', f"buffer_load_dwordx4 v[{KX}:{KX+3}], v{vL16}, s[{SRD_KV}:{SRD_KV+3}], s{sKXS} offen sc1"))
            add(10, 'vm', ('KX', f"buffer_load_dwordx4 v[{KX+4}:{KX+7}], v{vL16}, s[{SRD_KV}:{SRD_KV+3}], s{sKXS} offen offset:1024 sc1"))
            add(11, 'vm', ('VX', f"buffer_load_dwordx4 v[{VX}:{VX+3}], v{vL16}, s[{SRD_KV}:{SRD_KV+3}], s{sVXS} offen sc1"))
            add(12, 'vm', ('VX', f"buffer_load_dwordx4 v[{VX+4}:{VX+7}], v{vL16}, s[{SRD_KV}:{SRD_KV+3}], s{sVXS} offen offset:1024 sc1"))
            WL = a.label("CH_WARM")
            add(13, 'vm', ('WARM', f"""s_cmp_lt_u32 s{w}, 2
            s_cbranch_scc1 {WL}_s
            buffer_load_dword v{vRD}, v{vWA}, s[{SRD_KV}:{SRD_KV+3}], s{sWRM} offen sc1
            s_branch {WL}
            {WL}_s:
            buffer_store_dword v{vL16}, off, s[{SRD_FL}:{SRD_FL+3}], s{sSPARE}
            {WL}:"""))
        if n == 26:
            for r in range(ACCV, ACCV + 8, 2): add(34, 'v', f"v_mov_b64 v[{r}:{r+1}], 0")
        if fo: put(fo.pop(0))
        while fo and fo[0][0] < n: put(fo.pop(0))
    while fo: put(fo.pop(0))
    stamp(a, cfg, 'p1')
    vs = {'i': 0}
    deferred = []
    def flush_deferred():
        for t, o in deferred: lg.issue(t, o)
        del deferred[:]
    def V(n, defer=False):
        iss = (lambda t, o: deferred.append((t, o))) if defer else lg.issue
        for _ in range(n):
            i = vs['i']
            if i >= 18: return
            kt = KTV[i >> 1]; tt = i & 1; ai = 9 + (i >> 1)
            if tt == 0: lg.wait(('A', ai))
            a(smf(ACCV + 4 * tt, A_BUF[ai % 3], rt(('v', kt), tt)))
            if tt == 1 and ai + 3 < 18: iss(('A', ai + 3), aread_txt(aseq[ai + 3], ai + 3))
            vs['i'] += 1
    V(2)
    a(f"""
    v_cvt_pk_bf16_f32 v24, v24, v25
    v_cvt_pk_bf16_f32 v25, v26, v27
    v_cvt_pk_bf16_f32 v26, v28, v29
    v_cvt_pk_bf16_f32 v27, v30, v31
    v_mfma_f32_16x16x16_bf16 v[28:31], v[24:25], v[{vF}:{vF+1}], 0
    v_cvt_pk_bf16_f32 v32, v32, v33
    v_cvt_pk_bf16_f32 v33, v34, v35
    v_cvt_pk_bf16_f32 v34, v36, v37
    v_cvt_pk_bf16_f32 v35, v38, v39
    v_mfma_f32_16x16x16_bf16 v[36:39], v[26:27], v[{vF}:{vF+1}], 0
    v_mfma_f32_16x16x16_bf16 v[48:51], v[32:33], v[{vF}:{vF+1}], 0
    v_mfma_f32_16x16x16_bf16 v[52:55], v[34:35], v[{vF}:{vF+1}], 0
    """)
    V(2)
    a(f"""
    v_cvt_pk_bf16_f32 v24, v28, v29
    v_cvt_pk_bf16_f32 v25, v30, v31
    v_cvt_pk_bf16_f32 v26, v36, v37
    v_cvt_pk_bf16_f32 v27, v38, v39
    """)
    vm.wait('KX')
    a(f"""
    v_mfma_f32_16x16x32_bf16 v[28:31], v[{KX}:{KX+3}], v[24:27], 0
    v_cvt_pk_bf16_f32 v32, v48, v49
    v_cvt_pk_bf16_f32 v33, v50, v51
    v_mfma_f32_16x16x32_bf16 v[36:39], v[{KX+4}:{KX+7}], v[24:27], 0
    v_cvt_pk_bf16_f32 v34, v52, v53
    v_cvt_pk_bf16_f32 v35, v54, v55
    """)
    a("v_mfma_f32_16x16x32_bf16 v[64:67], v[32:35], v[24:27], 0")
    vm.issue('KM', f"buffer_store_dwordx4 v[32:35], v{vL16}, s[{SRD_KM}:{SRD_KM+3}], s{sKMS} offen {kmfl}")
    V(2, defer=True)
    lg.issue('SW', f"ds_write2_b64 v{vSW}, v[28:29], v[30:31] offset0:0 offset1:4")
    lg.issue('SW', f"ds_write2_b64 v{vSW}, v[36:37], v[38:39] offset0:1 offset1:5")
    lg.issue('SW', f"ds_write2_b32 v{vSWm}, v64, v65 offset0:0 offset1:2")
    flush_deferred()
    for tt in range(2):
        for j, o in enumerate(lds_tile(('o', 1), tt, (S1, S0)[tt])): lg.issue(('W', f"o1{'ab'[tt]}", j), o)
    V(2)
    lg.wait('SW')
    a("s_barrier")
    stamp(a, cfg, 'b1')
    for wp in range(4):
        lg.issue('SR', f"ds_read_b128 v[{24+4*wp}:{27+4*wp}], v{vL16} offset:{L_S + wp*1024}")
    lg.issue('SR', f"ds_read2st64_b32 v[64:65], v{vL4b} offset0:0 offset1:1")
    lg.issue('SR', f"ds_read2st64_b32 v[66:67], v{vL4b} offset0:2 offset1:3")
    V(4)
    lg.wait('SR')
    FB = a.label("CH_FB")
    a(f"""
    v_pk_add_f32 v[24:25], v[24:25], v[28:29]
    v_pk_add_f32 v[26:27], v[26:27], v[30:31]
    v_pk_add_f32 v[32:33], v[32:33], v[36:37]
    v_pk_add_f32 v[34:35], v[34:35], v[38:39]
    v_pk_add_f32 v[64:65], v[64:65], v[66:67]
    v_pk_add_f32 v[24:25], v[24:25], v[32:33]
    v_pk_add_f32 v[26:27], v[26:27], v[34:35]
    v_add_f32 v64, v64, v65
    v_max3_f32 v{vT0}, |v24|, |v25|, |v26|
    v_exp_f32 v24, v24
    v_max3_f32 v{vT0}, v{vT0}, |v27|, |v64|
    v_exp_f32 v25, v25
    v_cmp_lt_f32 vcc, 0x42700000, v{vT0}
    v_exp_f32 v26, v26
    v_exp_f32 v27, v27
    v_exp_f32 v64, v64
    s_cbranch_vccnz {FB}
    v_cvt_pk_bf16_f32 v28, v24, v25
    v_cvt_pk_bf16_f32 v30, v26, v27
    v_mov_b32_dpp v65, v64 {DPPX}
    v_mov_b32_dpp v29, v28 {DPPX}
    v_mov_b32_dpp v31, v30 {DPPX}
    v_cvt_pk_bf16_f32 v66, v64, v65
    v_cvt_pk_bf16_f32 v67, v64, v65
    {FB}_join:
    """)
    stamp(a, cfg, 'sm')
    vm.wait('VX')
    a(f"""
    v_mfma_f32_16x16x32_bf16 v[32:35], v[{VX}:{VX+3}], v[28:31], 0
    v_mfma_f32_16x16x32_bf16 v[36:39], v[{VX+4}:{VX+7}], v[28:31], 0
    v_dot2_f32_bf16 v68, v28, s{sONE}, v64
    v_dot2_f32_bf16 v68, v30, s{sONE}, v68
    v_add_u32 v{vT0}, 131072, v{vW}
    """)
    V(2)
    a(f"v_add_f32_dpp v68, v68, v68 {DPPX}")
    for j, o in enumerate(lds_tile(('o', 3), 0, VX)): lg.issue(('W', 'o3a', j), o)
    a("v_mov_b32 v69, v68")
    for j, o in enumerate(lds_tile(('o', 3), 1, 24)): lg.issue(('W', 'o3b', j), o)
    a("v_permlane16_swap_b32 v68, v69")
    a("v_add_f32 v68, v68, v69")
    V(1)
    a("v_mov_b32 v69, v68")
    V(1)
    a("v_permlane32_swap_b32 v68, v69")
    a("v_add_f32 v68, v68, v69")
    V(18)
    a("v_rcp_f32 v68, v68")
    a(f"""
    v_cvt_pk_bf16_f32 v40, v40, v41
    v_cvt_pk_bf16_f32 v41, v42, v43
    v_cvt_pk_bf16_f32 v42, v44, v45
    v_cvt_pk_bf16_f32 v43, v46, v47
    v_lshrrev_b32 v{vT1}, 1, v{vL16}
    v_mfma_f32_16x16x16_bf16 v[32:35], v[40:41], v[66:67], v[32:35]
    v_mfma_f32_16x16x16_bf16 v[36:39], v[42:43], v[66:67], v[36:39]
    """)
    vm.issue('VM', f"buffer_store_dwordx4 v[40:43], v{vL16}, s[{SRD_KM}:{SRD_KM+3}], s{sVMS} offen {kmfl}")
    a(f"""
    v_mov_b64 v[20:21], 0
    v_mov_b64 v[22:23], 0
    v_mov_b64 v[44:45], 0
    v_mov_b64 v[46:47], 0
    v_add_u32 v{vT0}, s{sOW}, v{vT1}
    s_mov_b32 vcc_lo, 0x33333333
    s_mov_b32 vcc_hi, 0x33333333
    v_pk_mul_f32 v[32:33], v[32:33], v[68:69] op_sel_hi:[1,0]
    v_pk_mul_f32 v[34:35], v[34:35], v[68:69] op_sel_hi:[1,0]
    v_pk_mul_f32 v[36:37], v[36:37], v[68:69] op_sel_hi:[1,0]
    v_pk_mul_f32 v[38:39], v[38:39], v[68:69] op_sel_hi:[1,0]
    v_cvt_pk_bf16_f32 v32, v32, v33
    v_cvt_pk_bf16_f32 v33, v34, v35
    v_cvt_pk_bf16_f32 v34, v36, v37
    v_cvt_pk_bf16_f32 v35, v38, v39
    v_cndmask_b32_dpp v32, v34, v32, vcc quad_perm:[0,1,0,1] row_mask:0xf bank_mask:0xf
    v_cndmask_b32_dpp v33, v35, v33, vcc quad_perm:[0,1,0,1] row_mask:0xf bank_mask:0xf
    """)
    stamp(a, cfg, 'pv')
    if not cfg.get('fulllast'):
        a(f"s_cmp_eq_u32 s{sSTEP}, {cfg.get('nsteps', 64) - 1}")
        a("s_cbranch_scc1 CH_LAST")
    lg.issue('OW', f"ds_write_b64 v{vT0}, v[32:33]")
    zero(a, [40, 41, 42, 43, 64, 65, 66, 67, 68, 69, 70, 71, 36, 37, 38, 39])
    lg.wait('OW')
    a("s_barrier")
    lg.issue('OA', f"ds_read2st64_b64 v[12:15], v{vT1} offset0:{L_O//512} offset1:{L_O//512 + 1}")
    lg.issue('OA', f"ds_read2st64_b64 v[16:19], v{vT1} offset0:{L_O//512 + 2} offset1:{L_O//512 + 3}")
    zero(a, [32, 33, 34, 35])
    lg.wait('OA', *[('W', n, j) for n in ('o1a', 'o1b', 'o3a', 'o3b') for j in range(2)])
    stamp(a, cfg, 'wo')
    slots = {1: (S1, S0), 3: (VX, 24)}
    free = [20, 44, 40, 64, 68, 36, 32]
    acc_of = {}
    def post(cb, dst, tag):
        acc = acc_of[cb]
        r = [f"v_add_f32 v{acc}, v{acc}, v{acc+2}", f"v_add_f32 v{acc+1}, v{acc+1}, v{acc+3}",
             f"v_cvt_pk_bf16_f32 v{dst}, v{acc}, v{acc+1}"]
        if tag: r.append(tagop(dst))
        return r
    work = []
    def drainw(n=1):
        for _ in range(n):
            if work:
                kind, x = work.pop(0)
                if kind == 'v': a(x)
                elif kind == 'vm': vm.issue('H1', x)
                elif kind == 'free': free.append(x); drainw()
    def q_pair(pi, ca, cb_):
        d = acc_of[ca]
        for t in post(ca, d, True): work.append(('v', t))
        for t in post(cb_, d + 1, False): work.append(('v', t))
        work.append(('vm', f"buffer_store_dwordx2 v[{d}:{d+1}], v{vT1}, s[{SRD_H1}:{SRD_H1+3}], s{sH1P[pi]} offen {st}"))
    order = [8, 0, 1, 2, 3, 4, 5, 6, 7]
    nd = cfg.get('wodrain', 2)
    for idx, cb in enumerate(order):
        while not free: drainw()
        acc = free.pop(0)
        acc_of[cb] = acc
        oc = ('o', cb)
        w0, w1 = (vt(slots[cb][0]), vt(slots[cb][1])) if cb in slots else (rt(oc, 0), rt(oc, 1))
        a(smf(acc, 12, w0)); drainw(nd)
        a(smf(acc, 16, w1)); drainw(nd)
        if idx == 2:
            for t in post(8, acc_of[8], True): work.append(('v', t))
            work.append(('vm', f"buffer_store_dword v{acc_of[8]}, v{vT1}, s[{SRD_H1}:{SRD_H1+3}], s{sH1S} offen {st}"))
            work.append(('v', f"v_mov_b64 v[{acc_of[8]}:{acc_of[8]+1}], 0")); work.append(('v', f"v_mov_b64 v[{acc_of[8]+2}:{acc_of[8]+3}], 0"))
            work.append(('free', acc_of[8]))
        if idx == 4:
            q_pair(0, 0, 1)
            work.append(('v', f"v_mov_b64 v[{acc_of[1]}:{acc_of[1]+1}], 0")); work.append(('v', f"v_mov_b64 v[{acc_of[1]+2}:{acc_of[1]+3}], 0"))
            work.append(('free', acc_of[1]))
        if idx == 6:
            q_pair(1, 2, 3)
        if idx == 8:
            q_pair(2, 4, 5)
    q_pair(3, 6, 7)
    while work: drainw()
    return dict(label=FB)

def emit_fallback(a, cfg, fb):
    DPPX = "quad_perm:[2,3,0,1] row_mask:0xf bank_mask:0xf"
    FB = fb['label']
    a(f"{FB}:")
    a(f"""
    s_waitcnt lgkmcnt(0)
    ds_read_b128 v[24:27], v{vL16} offset:{L_S}
    ds_read_b128 v[28:31], v{vL16} offset:{L_S + 1024}
    ds_read_b128 v[32:35], v{vL16} offset:{L_S + 2048}
    ds_read_b128 v[36:39], v{vL16} offset:{L_S + 3072}
    ds_read2st64_b32 v[64:65], v{vL4b} offset0:0 offset1:1
    ds_read2st64_b32 v[66:67], v{vL4b} offset0:2 offset1:3
    s_waitcnt lgkmcnt(0)
    """)
    for r in range(4): a(f"v_add_f32 v{24+r}, v{24+r}, v{28+r}")
    for r in range(4): a(f"v_add_f32 v{32+r}, v{32+r}, v{36+r}")
    a("v_add_f32 v64, v64, v65")
    a("v_add_f32 v66, v66, v67")
    for r in range(4): a(f"v_add_f32 v{24+r}, v{24+r}, v{32+r}")
    a(f"""
    v_add_f32 v64, v64, v66
    v_max3_f32 v36, v24, v25, v26
    v_max3_f32 v36, v36, v27, v64
    v_max_f32_dpp v36, v36, v36 {DPPX}
    v_mov_b32 v37, v36
    v_permlane16_swap_b32 v36, v37
    v_max_f32 v36, v36, v37
    v_mov_b32 v37, v36
    v_permlane32_swap_b32 v36, v37
    v_max_f32 v36, v36, v37
    v_sub_f32 v24, v24, v36
    v_sub_f32 v25, v25, v36
    v_sub_f32 v26, v26, v36
    v_sub_f32 v27, v27, v36
    v_sub_f32 v64, v64, v36
    v_exp_f32 v24, v24
    v_exp_f32 v25, v25
    v_exp_f32 v26, v26
    v_exp_f32 v27, v27
    v_exp_f32 v64, v64
    v_cvt_pk_bf16_f32 v28, v24, v25
    v_cvt_pk_bf16_f32 v30, v26, v27
    v_mov_b32_dpp v65, v64 {DPPX}
    v_mov_b32_dpp v29, v28 {DPPX}
    v_mov_b32_dpp v31, v30 {DPPX}
    v_cvt_pk_bf16_f32 v66, v64, v65
    v_cvt_pk_bf16_f32 v67, v64, v65
    s_nop 1
    s_branch {FB}_join
    """)

fbs = []
def emit_step(a, cfg, slow, par, sfx, nxt):
    w = S_WAVE
    st = "sc1" if slow else ""
    FAIL = "CH_FAIL"
    lg = Cnt(a, "lgkmcnt", 15); vm = Cnt(a, "vmcnt", 63)
    a(f"CH_STEP{sfx}:")
    stamp(a, cfg, 'top')
    tagop = (lambda r: f"v_or_b32 v{r}, 1, v{r}") if par else (lambda r: f"v_and_b32 v{r}, -2, v{r}")
    if cfg.get('nocompute'):
        for _ in range(cfg.get('delay', 0)): a("s_nop 15")
        a(f"v_lshrrev_b32 v{vT1}, 1, v{vL16}")
        a(f"v_mov_b32 v24, {par}")
        a(f"v_mov_b32 v25, {par}")
        for pi in range(4):
            a(f"buffer_store_dwordx2 v[24:25], v{vT1}, s[{SRD_H1}:{SRD_H1+3}], s{sH1P[pi]} offen {st}")
        a(f"buffer_store_dword v24, v{vT1}, s[{SRD_H1}:{SRD_H1+3}], s{sH1S} offen {st}")
    else:
        fbs.append(emit_compute(a, cfg, st, par, sfx, lg, vm, tagop))
    stamp(a, cfg, 'post')
    a(f"s_load_dword s{sFLV}, s[{S_FLP}:{S_FLP+1}], s{sFLN} glc")
    chk = (0xF0 | (~0xCC & 0xFF) | (~0xAA & 0xFF)) if par else (0xF0 | 0xCC | 0xAA)
    RL = a.label("CH_RED")
    if not cfg.get('nohops'):
        a(f"s_cmp_eq_u32 s{sRED}, 0")
        a(f"s_cbranch_scc1 {RL}_skip")
        a(f"v_and_b32 v64, 16, v{vL16}")
        a(f"v_lshlrev_b32_e64 v64, v64, s{sSELC}")
        for jj in range(4):
            a(f"v_cndmask_b32 v{60+jj}, 0, v64, s[{sSELM+2*jj}:{sSELM+2*jj+1}]")
        if cfg.get('rsleep'):
            SL = a.label("CH_RS")
            a(f"s_cmp_eq_u32 s{sLATE}, 0")
            a(f"s_cbranch_scc1 {SL}")
            a(f"s_cmp_eq_u32 s{sLATE}, 1")
            a(f"s_cbranch_scc1 {SL}_1")
            a(f"s_sleep {cfg['rsleep']}")
            a(f"s_branch {SL}")
            a(f"{SL}_1:")
            a(f"s_sleep {max(cfg['rsleep'] - cfg.get('rs1', 1), 1)}")
            a(f"{SL}:")
        stamp(a, cfg, 'r_go')
        a(f"s_mov_b32 s{S_TO}, 0")
        LBS = [24, 28, 32, 36, 44, 48, 52, 56]
        for variant in range(2):
            R2 = f"{RL}_v{variant}"
            if variant == 0:
                a(f"s_cmp_eq_u32 s{sRED}, 2")
                a(f"s_cbranch_scc1 {RL}_v1")
            a(f"{R2}:")
            for cc in range(8):
                a(f"buffer_load_dwordx4 v[{LBS[cc]}:{LBS[cc]+3}], v{vRD}, s[{SRD_H1}:{SRD_H1+3}], s{sR[cc>>1]} offen offset:{(cc&1)*2048} sc1")
            a("v_mov_b32 v12, 0")
            for c2 in range(4):
                a(f"s_waitcnt vmcnt({6-2*c2})")
                for cc in (2 * c2, 2 * c2 + 1):
                    b = LBS[cc]
                    c_in = "0" if cc == 0 else "v[64:67]"
                    a(f"v_mfma_f32_16x16x32_bf16 v[64:67], v[{b}:{b+3}], v[60:63], {c_in}")
                    if variant == 0:
                        a(f"v_bitop3_b32 v12, v12, v{b}, v{b+2} bitop3:{chk:#x}")
                    else:
                        a(f"v_bitop3_b32 v12, v12, v{b}, v{b+1} bitop3:{chk:#x}")
                        a(f"v_bitop3_b32 v12, v12, v{b+2}, v{b+3} bitop3:{chk:#x}")
            a(f"""
            v_and_b32 v12, 1, v12
            v_cmp_ne_u32 vcc, 0, v12
            s_cbranch_vccz {RL}_ok
            s_add_u32 s{S_TO}, s{S_TO}, 1
            s_cmp_lt_u32 s{S_TO}, {TIMEOUT}
            s_cbranch_scc1 {R2}
            s_branch {FAIL}
            """)
        a(f"""
        {RL}_ok:
        {stamp_txt(cfg, 'r_ok')}
        {stamp_txt(cfg, 'cnt_r')}
        s_mov_b32 exec_lo, 0x00ff00ff
        s_mov_b32 exec_hi, 0x00ff00ff
        v_cvt_pk_bf16_f32 v60, v64, v65
        v_cvt_pk_bf16_f32 v61, v66, v67
        {tagop(60)}
        buffer_store_dwordx2 v[60:61], v{vH2}, s[{SRD_H2}:{SRD_H2+3}], s{sRH2} offen {st}
        s_mov_b64 exec, -1
        {RL}_skip:
        {stamp_txt(cfg, 'r_st')}
        """)
    else:
        a("s_waitcnt vmcnt(0)")
    a(f"v_add_u32 v{vT1}, 65536, v{vW}") if False else None
    preload_next(a)
    a(f"""
    s_add_u32 s{sKXS}, s{sKXS}, 262144
    s_add_u32 s{sVXS}, s{sVXS}, 262144
    s_add_u32 s{sKMS}, s{sKMS}, 262144
    s_add_u32 s{sVMS}, s{sVMS}, 262144
    s_add_u32 s{sWRM}, s{sWRM}, 262144
    s_min_u32 s{sWRM}, s{sWRM}, s{sWRMX}
    """)
    if not cfg.get('nohops'):
        a("s_waitcnt vmcnt(0)")
        a("s_barrier")
        if cfg.get('gsleep'): a(f"s_sleep {cfg['gsleep']}")
        stamp(a, cfg, 'gat')
        GL = a.label("CH_GAT")
        SETS = [12, 24]
        def gissue(b):
            a(f"v_mov_b32 v{b+8}, {par}")
            a(f"v_mov_b32 v{b+10}, {par}")
            a(f"buffer_load_dwordx4 v[{b}:{b+3}], v{vL16}, s[{SRD_H2}:{SRD_H2+3}], s{sG[0]} offen sc1")
            a(f"buffer_load_dwordx4 v[{b+4}:{b+7}], v{vL16}, s[{SRD_H2}:{SRD_H2+3}], s{sG[1]} offen sc1")
            a("s_mov_b64 exec, 0xffff")
            a(f"buffer_load_dwordx4 v[{b+8}:{b+11}], v{vL16}, s[{SRD_H2}:{SRD_H2+3}], s{sG[2]} offen sc1")
            a("s_mov_b64 exec, -1")
        def gcheck(b, ok, n):
            a(f"s_waitcnt vmcnt({n})")
            a(f"v_bitop3_b32 v{vT0}, 0, v{b}, v{b+2} bitop3:{chk:#x}")
            a(f"v_bitop3_b32 v{vT0}, v{vT0}, v{b+4}, v{b+6} bitop3:{chk:#x}")
            a(f"v_bitop3_b32 v{vT0}, v{vT0}, v{b+8}, v{b+10} bitop3:{chk:#x}")
            a(f"v_and_b32 v{vT0}, 1, v{vT0}")
            a(f"v_cmp_ne_u32 vcc, 0, v{vT0}")
            a(f"s_cbranch_vccz {ok}")
        def gwrite(b):
            a(f"ds_write_b128 v{vT1}, v[{b}:{b+3}] offset:{L_MEM}")
            a(f"ds_write_b128 v{vT1}, v[{b+4}:{b+7}] offset:{L_MEM + 4096}")
            a(f"v_add_u32 v{vT1}, s{sG3}, v{vL16}")
            a("s_mov_b64 exec, 0xffff")
            a(f"ds_write_b128 v{vT1}, v[{b+8}:{b+11}] offset:{L_MEM + 8192}")
            a("s_mov_b64 exec, -1")
        a(f"s_mov_b32 s{S_TO}, 0")
        a(f"v_add_u32 v{vT1}, s{sG[0]}, v{vL16}")
        a(f"{GL}:")
        gissue(SETS[0])
        gcheck(SETS[0], f"{GL}_okA", 0)
        a(f"""
        s_add_u32 s{S_TO}, s{S_TO}, 1
        s_cmp_lt_u32 s{S_TO}, {TIMEOUT}
        s_cbranch_scc1 {GL}
        s_branch {FAIL}
        {GL}_okA:
        {stamp_txt(cfg, 'gatok')}
        {stamp_txt(cfg, 'cnt_g')}
        """)
        gwrite(SETS[0])
        NF = a.label("CH_NF")
        a(f"""
        s_cmp_eq_u32 s{w}, 3
        s_cbranch_scc0 {NF}
        s_mov_b64 exec, 1
        v_mov_b32 v{vT0}, 1
        buffer_store_dword v{vT0}, off, s[{SRD_FL}:{SRD_FL+3}], s{sFKM} sc1
        s_mov_b64 exec, -1
        {NF}:
        """)
    a("s_waitcnt lgkmcnt(0)")
    FK = a.label("CH_FK")
    a(f"""
    s_cmp_eq_u32 s{sFLV}, 1
    s_cbranch_scc1 {FK}
    s_cmp_eq_u32 s{w}, 3
    s_cbranch_scc0 {FK}
    s_cmp_ge_u32 s{sSTEP}, {cfg.get('nsteps', 64) - 2}
    s_cbranch_scc1 {FK}
    v_mov_b32 v{vT1}, s{sFLN}
    """)
    poll_dword_eq(a, SRD_FL, vT1, vT0, 1, FAIL, "CH_FKV" + sfx, sleep=1)
    a(f"{FK}:")
    a(f"s_add_u32 s{sFLN}, s{sFLN}, 4")
    a("s_barrier")
    for i in range(3): a(aread_txt(i, i))
    a(f"""
    s_add_u32 s{sFKM}, s{sFKM}, 4
    {stamp_txt(cfg, 'end')}
    {prog_stamp(a, cfg)}
    {dump_stamps(a, cfg)}
    s_add_u32 s{sSTEP}, s{sSTEP}, 1
    s_cmp_lt_u32 s{sSTEP}, {cfg.get('nsteps', 64)}
    s_cbranch_scc0 CH_DONE
    """)
    if nxt: a(f"s_branch CH_STEP{nxt}")

def prog_stamp(a, cfg):
    if not cfg.get('prog'): return ""
    L = a.label("PST")
    return f"""
    {"s_cmp_lt_u32 s"+str(sSTEP)+", 8" if cfg['prog'] == 2 else "s_and_b32 s4, s"+str(sSTEP)+", 7" + chr(10) + "s_cmp_eq_u32 s4, 7"}
    s_cbranch_scc0 {L}
    s_cmp_eq_u32 s{S_ROLE}, 0
    s_cbranch_scc0 {L}
    s_cmp_eq_u32 s{S_WAVE}, 0
    s_cbranch_scc0 {L}
    s_memrealtime s[4:5]
    s_memtime s[6:7]
    s_waitcnt lgkmcnt(0)
    s_mov_b64 exec, 1
    v_mov_b32 v0, s4
    s_lshr_b32 s5, s{sSTEP}, {0 if cfg['prog'] == 2 else 3}
    s_lshl_b32 s5, s5, 2
    s_add_u32 s5, s5, 192
    v_mov_b32 v11, s5
    buffer_store_dword v0, v11, s[{SRD_DBG}:{SRD_DBG+3}], 0 offen
    v_mov_b32 v0, s6
    buffer_store_dword v0, v11, s[{SRD_DBG}:{SRD_DBG+3}], 0 offen offset:32
    s_mov_b64 exec, -1
    {L}:
    """

def cstamp(a, cfg, i):
    if cfg.get('call') and i in (1, 2):
        L = a.label("CSA")
        a(f"""
        s_cmp_eq_u32 s{S_WAVE}, 0
        s_cbranch_scc0 {L}
        s_memrealtime s[4:5]
        s_waitcnt lgkmcnt(0)
        s_lshl_b32 s5, s{S_ROLE}, 3
        s_add_u32 s5, s5, {FL_DBG + 4*(i-1)}
        s_mov_b64 exec, 1
        v_mov_b32 v0, s4
        buffer_store_dword v0, off, s[{SRD_FL}:{SRD_FL+3}], s5
        s_mov_b64 exec, -1
        {L}:
        """)
    if not cfg.get('ctime'): return
    L = a.label("CST")
    a(f"""
    s_cmp_eq_u32 s{S_ROLE}, 0
    s_cbranch_scc0 {L}
    s_cmp_eq_u32 s{S_WAVE}, 0
    s_cbranch_scc0 {L}
    s_memrealtime s[4:5]
    s_waitcnt lgkmcnt(0)
    s_mov_b64 exec, 1
    v_mov_b32 v0, s4
    v_mov_b32 v11, {DBG_STAMP + 32 + 4*i}
    buffer_store_dword v0, v11, s[{SRD_DBG}:{SRD_DBG+3}], 0 offen
    s_mov_b64 exec, -1
    v_mbcnt_lo_u32_b32 v0, -1, 0
    v_mbcnt_hi_u32_b32 v0, -1, v0
    {L}:
    """)

def emit_chain(a, cfg):
    a("ROLE_CHAIN:")
    cstamp(a, cfg, 0)
    emit_chain_setup(a, cfg)
    emit_chain_weights(a, cfg)
    emit_chain_consts(a, cfg)
    cstamp(a, cfg, 1)
    a(f"v_mov_b32 v{vT1}, {DBG_CINIT}")
    poll_dword_eq(a, SRD_DBG, vT1, vT0, 32, "CH_FAIL", "CH_CI")
    a(f"""
    v_mov_b32 v{vT1}, {DBG_SLOW}
    buffer_load_dword v{vT0}, v{vT1}, s[{SRD_DBG}:{SRD_DBG+3}], 0 offen sc1
    s_waitcnt vmcnt(0)
    v_readfirstlane_b32 s{sSLOW}, v{vT0}
    s_mov_b32 s{sSTEP}, 0
    s_lshl_b32 s{sFLN}, s{sH}, 8
    s_add_u32 s{sFLN}, s{sFLN}, {FL_KV}
    v_mov_b32 v{vT1}, s{sFLN}
    """)
    poll_dword_eq(a, SRD_FL, vT1, vT0, 1, "CH_FAIL", "CH_F0", sleep=1)
    a(f"s_add_u32 s{sFLN}, s{sFLN}, 4")
    a(f"v_mov_b32 v{vT1}, s{sFLN}")
    poll_dword_eq(a, SRD_FL, vT1, vT0, 1, "CH_FAIL", "CH_F1", sleep=1)
    a(f"s_add_u32 s{sFLN}, s{sFLN}, 4")
    preload_next(a)
    a("s_waitcnt lgkmcnt(0)")
    a("s_barrier")
    for i in range(3): a(aread_txt(i, i))
    cstamp(a, cfg, 2)
    if cfg.get('timing'):
        a("s_memtime s[4:5]\ns_waitcnt lgkmcnt(0)")
        a("s_mov_b32 s101, s4")
    if cfg.get('force_slow'):
        a(f"s_mov_b32 s{sSLOW}, 1")
    a(f"s_cmp_eq_u32 s{sSLOW}, 0")
    a("s_cbranch_scc0 CH_STEP_S1")
    emit_step(a, cfg, False, 1, "_F1", None)
    emit_step(a, cfg, False, 0, "_F0", "_F1")
    emit_step(a, cfg, True, 1, "_S1", None)
    emit_step(a, cfg, True, 0, "_S0", "_S1")
    for fb in fbs: emit_fallback(a, cfg, fb)
    del fbs[:]
    a("CH_FAIL:")
    a(f"""
    s_mov_b64 exec, 1
    v_mov_b32 v1, 0xdead
    v_mov_b32 v2, {DBG_FAIL}
    buffer_store_dword v1, v2, s[{SRD_DBG}:{SRD_DBG+3}], 0 offen
    s_waitcnt vmcnt(0)
    s_branch END
    """)
    a("CH_LAST:")
    a(f"""
    s_waitcnt vmcnt(0)
    s_barrier
    s_cmp_eq_u32 s{S_WAVE}, 3
    s_cbranch_scc0 CH_DONE
    s_mov_b64 exec, 1
    v_mov_b32 v{vT0}, 1
    buffer_store_dword v{vT0}, off, s[{SRD_FL}:{SRD_FL+3}], s{sFKM} sc1
    s_mov_b64 exec, -1
    """)
    a("CH_DONE:")
    cstamp(a, cfg, 3)
    if cfg.get('timing'):
        a(f"""
        s_memtime s[36:37]
        s_waitcnt lgkmcnt(0)
        s_sub_u32 s36, s36, s101
        s_cmp_eq_u32 s{sH}, {cfg.get('stamp_h', 0)}
        s_cbranch_scc0 END
        s_mov_b64 exec, 1
        v_mov_b32 v1, s36
        v_mov_b32 v2, {DBG_TIME}
        buffer_store_dword v1, v2, s[{SRD_DBG}:{SRD_DBG+3}], 0 offen
        s_waitcnt vmcnt(0)
        """)
    a("s_branch END")
```

```python
S, DM, H, DH, M, SEG = 2048, 576, 32, 128, 8, 32
NSEG = S // SEG
F = 4608

WS_H1    = 0x0000000
H1_SIZE  = 18 * 32 * 512
WS_H2    = 0x0050000
H2_SIZE  = 9216
WS_FLAGS = 0x0060000
FL_KV    = 0x0000
FL_KM    = 0x2000
FL_G3    = 0x4000
FL_SPARE = 0x5000
FL_DBG = 0x5200
FLAGS_SIZE = 0x5600
WS_XN    = 0x0100000
WS_HB    = 0x0400000
XN_SIZE  = S * DM * 2
WS_KX    = 0x0800000
WS_VX    = 0x1800000
WS_QX    = 0x2800000
QKV_SIZE = 0x1000000
WS_KM    = 0x3800000
KM_SIZE  = 0x1000000
WS_UT    = 0x4800000
UT_SIZE  = F * DM * 2
WS_P5    = 0x5000000
P5_SIZE  = 2 * S * DM * 4
WS_P3    = 0x6000000
P3_SIZE  = 64 * 16 * 36864

DBG_RANK, DBG_TICKET, DBG_SLOW, DBG_CINIT, DBG_UREADY, DBG_G5DONE = 0, 4, 8, 12, 16, 20
DBG_LN = 32
DBG_TIME, DBG_FAIL = 24, 28
DBG_XCNT = 96
DBG_OVF = 128
DBG_STAMP = 160

L_MEM = 0
L_S   = 9216
L_O   = 14336
L_W   = 16384

def mem_col(kt, ga, u, j):
    return 64 * kt + 16 * ga + 8 * u + 2 * (j & 3) + (j >> 2)

def logical_k(k):
    ga = k >> 4; pp = (k >> 2) & 3; u = (k >> 1) & 1; b = k & 1
    return ga, u, 2 * pp + b

def qkv_row(k):
    ga, u, j = logical_k(k)
    return mem_col(0, ga, u, j)

def wo_row(k):
    ga, u, j = logical_k(k)
    return 32 * (j >> 2) + 16 * u + 4 * ga + (j & 3)

def b_k(g, R, b):
    return (8 * g + 2 * R + b) if R < 4 else (32 + 8 * g + 2 * (R - 4) + b)

LDS_CHUNKS = [('q', 0), ('k', 0), ('q', 2), ('k', 3), ('q', 5), ('k', 6), ('k', 8), ('o', 1), ('o', 3)]
ALL_CHUNKS = [(m, i) for m in 'kvqo' for i in range(9)]
REG_CHUNKS = [c for c in ALL_CHUNKS if c not in LDS_CHUNKS]

def pu_tiles(pu):
    if pu < 16:
        w, pi = pu >> 2, pu & 3
        return 8 * pi + w, 8 * pi + 4 + w
    a = 32 + 2 * (pu - 16)
    return a, a + 1

def row_token(m):
    return 2 * (m >> 2) + (m & 1), (m >> 1) & 1
```

```python
from layout import *
from common import *
from asmlib import Cnt
import struct

def f32bits(x): return struct.unpack("<I", struct.pack("<f", x))[0]
CS = 128 ** -0.5 * 1.4426950408889634

sT, sT2, sT3, sT4 = 32, 33, 34, 35
SRD_A, SRD_B, SRD_C, SRD_D, SRD_FL = 8, 12, 16, 20, 24
sWK = S_ROLE
WFAIL = "W_FAIL"

def wstamp(a, cfg, i):
    if 'wtime' not in cfg: return
    L = a.label("WST")
    a(f"""
    s_cmp_eq_u32 s{sWK}, {cfg['wtime']}
    s_cbranch_scc0 {L}
    s_cmp_eq_u32 s{S_WAVE}, 0
    s_cbranch_scc0 {L}
    s_memrealtime s[4:5]
    s_waitcnt lgkmcnt(0)
    s_mov_b64 exec, 1
    v_mov_b32 v250, s4
    v_mov_b32 v251, {DBG_STAMP + 4*i}
    buffer_store_dword v250, v251, s[{SRD_DBG}:{SRD_DBG+3}], 0 offen
    s_mov_b64 exec, -1
    {L}:
    """)

def wall(a, cfg, i):
    if not cfg.get('call'): return
    L = a.label("WSA")
    srd(a, 52, S_WS, WS_FLAGS + 0x8000, 0x4000)
    a(f"""
    s_cmp_eq_u32 s{S_WAVE}, 0
    s_cbranch_scc0 {L}
    s_memrealtime s[4:5]
    s_waitcnt lgkmcnt(0)
    s_lshl_b32 s5, s{sWK}, 5
    s_add_u32 s5, s5, {4*i}
    s_mov_b64 exec, 1
    v_mov_b32 v250, s4
    buffer_store_dword v250, off, s[52:55], s5
    s_mov_b64 exec, -1
    {L}:
    """)

def dpp_sum8(a, v, t):
    a(f"v_add_f32_dpp v{v}, v{v}, v{v} quad_perm:[1,0,3,2] row_mask:0xf bank_mask:0xf")
    a(f"v_add_f32_dpp v{v}, v{v}, v{v} quad_perm:[2,3,0,1] row_mask:0xf bank_mask:0xf")
    a(f"v_add_f32_dpp v{v}, v{v}, v{v} row_half_mirror row_mask:0xf bank_mask:0xf")

def emit_ln(a, cfg):
    w = S_WAVE
    a(f"s_cmp_lt_u32 s{sWK}, 64")
    a("s_cbranch_scc0 W_LN_DONE")
    srd(a, SRD_A, S_X, 0, XN_SIZE)
    srd(a, SRD_B, S_WS, WS_XN, XN_SIZE)
    srd(a, SRD_C, S_WS, WS_HB, XN_SIZE)
    P = 16
    F = 64
    a(f"""
    v_lshrrev_b32 v1, 3, v0
    v_mul_u32_u24 v1, 1152, v1
    v_and_b32 v2, 7, v0
    v_lshl_add_u32 v1, v2, 4, v1
    s_lshl_b32 s{sT}, s{sWK}, 2
    s_add_u32 s{sT}, s{sT}, s{w}
    s_mul_i32 s{sT}, s{sT}, {8*1152}
    """)
    for i in range(9):
        a(f"buffer_load_dwordx4 v[{P+4*i}:{P+4*i+3}], v1, s[{SRD_A}:{SRD_A+3}], s{sT} offen offset:{128*i}")
    a("s_waitcnt vmcnt(0)")
    for rep in range(2):
        for i in range(36):
            a(f"v_lshlrev_b32 v{F+2*i}, 16, v{P+i}")
            a(f"v_and_b32 v{F+2*i+1}, 0xffff0000, v{P+i}")
        a(f"v_add_f32 v4, v{F}, v{F+1}")
        a(f"v_add_f32 v5, v{F+2}, v{F+3}")
        for i in range(4, 72, 2):
            a(f"v_add_f32 v4, v4, v{F+i}")
            a(f"v_add_f32 v5, v5, v{F+i+1}")
        a("v_add_f32 v4, v4, v5")
        dpp_sum8(a, 4, 5)
        a(f"v_mul_f32 v4, {f32bits(1.0/576):#x}, v4")
        for i in range(72):
            a(f"v_sub_f32 v{F+i}, v{F+i}, v4")
        a(f"v_mul_f32 v5, v{F}, v{F}")
        a(f"v_mul_f32 v6, v{F+1}, v{F+1}")
        for i in range(2, 72, 2):
            a(f"v_fmac_f32 v5, v{F+i}, v{F+i}")
            a(f"v_fmac_f32 v6, v{F+i+1}, v{F+i+1}")
        a("v_add_f32 v5, v5, v6")
        dpp_sum8(a, 5, 6)
        a(f"v_mov_b32 v6, {f32bits(1e-5):#x}")
        a(f"v_fmac_f32 v6, {f32bits(1.0/576):#x}, v5")
        a("v_rsq_f32 v6, v6")
        for i in range(36):
            a(f"v_mul_f32 v{F+2*i}, v{F+2*i}, v6")
            a(f"v_mul_f32 v{F+2*i+1}, v{F+2*i+1}, v6")
            a(f"v_cvt_pk_bf16_f32 v{P+i}, v{F+2*i}, v{F+2*i+1}")
        s_ = SRD_B if rep == 0 else SRD_C
        for i in range(9):
            a(f"buffer_store_dwordx4 v[{P+4*i}:{P+4*i+3}], v1, s[{s_}:{s_+3}], s{sT} offen offset:{128*i} sc1")
        if rep == 0: a("s_nop 1")
    a(f"""
    s_waitcnt vmcnt(0)
    s_barrier
    s_cmp_eq_u32 s{w}, 0
    s_cbranch_scc0 W_LN_DONE
    s_mov_b64 exec, 1
    v_mov_b32 v2, 1
    s_add_u32 s{sT}, s{sWK}, {DBG_LN}
    v_mov_b32 v3, s{sT}
    buffer_store_byte v2, v3, s[{SRD_DBG}:{SRD_DBG+3}], 0 offen sc1
    s_mov_b64 exec, -1
    """)
    a("W_LN_DONE:")

def poll_byte_flag(a, sidx, name):
    L = a.label(name)
    a(f"""
    s_and_b32 s{sT3}, s{sidx}, 3
    s_lshl_b32 s{sT3}, s{sT3}, 3
    s_and_b32 s{sT4}, s{sidx}, 0xfffffffc
    s_add_u32 s{sT4}, s{sT4}, {DBG_LN}
    v_mov_b32 v2, s{sT4}
    s_mov_b32 s{S_TO}, 0
    {L}:
    buffer_load_dword v3, v2, s[{SRD_DBG}:{SRD_DBG+3}], 0 offen sc1
    s_waitcnt vmcnt(0)
    v_readfirstlane_b32 s3, v3
    s_lshr_b32 s3, s3, s{sT3}
    s_and_b32 s3, s3, 0xff
    s_cmp_eq_u32 s3, 1
    s_cbranch_scc1 {L}_ok
    s_sleep 4
    s_add_u32 s{S_TO}, s{S_TO}, 1
    s_cmp_lt_u32 s{S_TO}, {TIMEOUT}
    s_cbranch_scc1 {L}
    s_branch {WFAIL}
    {L}_ok:
    """)

G1_XB = [0, 36864]
G1_STG = 0
G1_NSTG = 9

def emit_g1(a, cfg, mats, tag):
    w = S_WAVE
    nm = len(mats)
    sHd, sSeg, sXo = 36, 37, 38
    vDQ = [1, 2]; vTR = 3; vXD = [4, 5]; vXR = [6, 7, 8, 9]; vST = 10; vA = 11
    def wreg(mi, ks):
        i = mi * 36 + ks
        if i < 64: return ('a', 4 * i)
        return ('v', 64 + 4 * (i - 64))
    ACC = [[16 + 16 * mi] for mi in range(2)]
    XF = [48, 52, 56, 60]
    a(f"""
    s_mul_hi_u32 s{sHd}, s{sWK}, {(1 << 32) // 7 + 1}
    s_mul_i32 s{sSeg}, s{sHd}, 7
    s_sub_u32 s{sSeg}, s{sWK}, s{sSeg}
    v_lshrrev_b32 v12, 4, v0
    v_and_b32 v13, 15, v0
    v_lshlrev_b32 v14, 1, v12
    v_xor_b32 v14, v14, v13
    v_lshlrev_b32 v15, 13, v12
    v_lshl_add_u32 v{vDQ[0]}, v14, 4, v15
    v_xor_b32 v14, 8, v14
    v_lshl_add_u32 v{vDQ[1]}, v14, 4, v15
    v_lshrrev_b32 v14, 2, v13                 ; rho
    v_lshrrev_b32 v15, 1, v12                 ; g>>1
    v_lshl_or_b32 v16, v15, 3, v14
    v_lshl_or_b32 v17, v15, 2, v14
    v_and_b32 v18, 1, v12
    s_lshl_b32 s{sT}, s{w}, 1
    v_or_b32 v18, s{sT}, v18                  ; nt = 2w + (g&1)
    v_xor_b32 v18, v18, v17
    v_lshlrev_b32 v18, 5, v18
    v_lshl_add_u32 v18, v16, 8, v18
    v_and_b32 v19, 3, v0
    v_lshl_add_u32 v{vTR}, v19, 3, v18
    v_lshrrev_b32 v14, 3, v0
    v_mul_u32_u24 v15, 1152, v14
    v_lshrrev_b32 v14, 1, v14
    v_and_b32 v16, 7, v0
    v_xor_b32 v16, v16, v14
    v_lshl_add_u32 v{vXD[0]}, v16, 4, v15
    v_xor_b32 v16, 4, v16
    v_lshl_add_u32 v{vXD[1]}, v16, 4, v15
    v_and_b32 v14, 31, v0
    v_lshrrev_b32 v15, 5, v0
    v_bfe_u32 v16, v14, 1, 3
    v_lshlrev_b32 v14, 7, v14
    """)
    for k in range(4):
        a(f"v_or_b32 v17, {2*k}, v15")
        a(f"v_xor_b32 v17, v17, v16")
        a(f"v_lshl_add_u32 v{vXR[k]}, v17, 4, v14")
        a(f"v_add_u32 v{112+k}, {G1_XB[1]}, v{vXR[k]}")
    a(f"""
    v_bfe_u32 v14, v0, 4, 1
    v_lshlrev_b32 v14, 10, v14
    v_lshrrev_b32 v15, 5, v0
    v_lshl_add_u32 v14, v15, 8, v14
    v_and_b32 v15, 15, v0
    v_lshl_add_u32 v{vST}, v15, 4, v14
    """)
    wsz = DM * H * DH * 2
    chunks = [(mi, kt) for mi in range(nm) for kt in range(9)]
    for mi, (nme, sp, off, kind) in enumerate(mats):
        srd(a, SRD_A + 4 * mi, sp, 0, wsz)
    a(f"""
    s_lshl_b32 s{sT2}, s{sHd}, 8
    s_lshl_b32 s{sT}, s{w}, 17
    s_add_u32 s{sT2}, s{sT2}, s{sT}
    s_lshl_b32 s{sT3}, s{w}, 12
    s_add_u32 s{sT3}, s{sT3}, {G1_STG}
    """)
    def issue(ci):
        mi, kt = chunks[ci]; slot = ci % G1_NSTG
        for nl in range(4):
            a(f"s_add_u32 m0, s{sT3}, {slot*16384 + nl*1024}")
            a(f"s_add_u32 s{sT}, s{sT2}, {kt*524288 + nl*32768}")
            a(f"buffer_load_dwordx4 v{vDQ[nl>>1]}, s[{SRD_A+4*mi}:{SRD_A+4*mi+3}], s{sT} offen lds")
    a("s_barrier")
    npre = G1_NSTG
    for ci in range(min(npre, len(chunks))): issue(ci)
    for ci, (mi, kt) in enumerate(chunks):
        inflight = min(npre - 1 if ci == 0 else npre - 2, len(chunks) - 1 - ci)
        a(f"s_waitcnt vmcnt({4*inflight})")
        a("s_barrier")
        if ci >= 1 and ci + npre - 1 < len(chunks): issue(ci + npre - 1)
        a(f"v_add_u32 v{vA}, {G1_STG + (ci % G1_NSTG)*16384}, v{vTR}")
        for k4 in range(4):
            ks = 4 * kt + k4
            kind, rb = wreg(mi, ks)
            for p in range(2):
                a(f"ds_read_b64_tr_b16 {kind}[{rb+2*p}:{rb+2*p+1}], v{vA} offset:{(16*k4 + 4*p)*256}")
        a("s_waitcnt lgkmcnt(0)")
    a("s_barrier")
    if tag == "KV": wall(a, cfg, 1)
    srd(a, SRD_A, S_WS, WS_XN, XN_SIZE)
    for mi, (nme, sp, off, kind) in enumerate(mats):
        srd(a, SRD_C + 4 * mi, S_WS, off, QKV_SIZE)
    srd(a, SRD_FL, S_WS, WS_FLAGS, FLAGS_SIZE)
    flags = cfg.get('g1_flags', True) and tag == "KV"
    if flags:
        a(f"v_mov_b32 v12, {DBG_CINIT}")
        poll_dword_eq(a, SRD_DBG, 12, 13, 32, WFAIL, "W_CI", sleep=4)
    def xissue(buf, sseg):
        a(f"s_mul_i32 s{sXo}, s{sseg}, {32*1152}")
        a(f"s_mul_i32 s{sT}, s{w}, {8*1152}")
        a(f"s_add_u32 s{sXo}, s{sXo}, s{sT}")
        a(f"s_lshl_b32 s{sT2}, s{w}, 10")
        a(f"s_and_b32 s{sT3}, s{w}, 1")
        a(f"s_cmp_eq_u32 s{sT3}, 0")
        a(f"v_mov_b32 v12, v{vXD[1]}")
        a(f"s_cselect_b64 vcc, -1, 0")
        a(f"v_cndmask_b32 v12, v12, v{vXD[0]}, vcc")
        for cb in range(9):
            a(f"s_add_u32 m0, s{sT2}, {G1_XB[buf] + cb*4096 - cb*128}")
            a(f"buffer_load_dwordx4 v12, s[{SRD_A}:{SRD_A+3}], s{sXo} offen offset:{cb*128} sc1 lds")
    LP = a.label("G1" + tag)
    sNext, sPrev, sPrev2 = 39, 40, 41
    nst = 2 * nm
    if tag == "KV":
        wait_all_ln(a)
    xissue(0, sSeg)
    a(f"s_mov_b32 s{sPrev}, -1")
    a(f"s_mov_b32 s{sPrev2}, -1")
    a(f"{LP}:")
    for buf in range(2):
        a(f"s_cmp_lt_i32 s{sPrev}, 0")
        a(f"s_cbranch_scc1 {LP}_w0{buf}")
        a(f"s_waitcnt vmcnt({nst})")
        a(f"s_branch {LP}_w1{buf}")
        a(f"{LP}_w0{buf}:")
        a("s_waitcnt vmcnt(0)")
        a(f"{LP}_w1{buf}:")
        a("s_barrier")
        a(f"s_add_u32 s{sNext}, s{sSeg}, 7")
        a(f"s_cmp_lt_u32 s{sNext}, 64")
        a(f"s_cbranch_scc0 {LP}_go{buf}")
        xissue(1 - buf, sNext)
        a(f"{LP}_go{buf}:")
        if flags:
            a(f"""
            s_cmp_lt_i32 s{sPrev2}, 0
            s_cbranch_scc1 {LP}_nf{buf}
            s_cmp_eq_u32 s{w}, 0
            s_cbranch_scc0 {LP}_nf{buf}
            s_lshl_b32 s{sT}, s{sHd}, 8
            s_lshl_b32 s{sT2}, s{sPrev2}, 2
            s_add_u32 s{sT}, s{sT}, s{sT2}
            s_mov_b64 exec, 1
            v_mov_b32 v12, 1
            v_mov_b32 v13, 0
            buffer_store_dword v12, v13, s[{SRD_FL}:{SRD_FL+3}], s{sT} offen offset:{FL_KV} sc1
            s_mov_b64 exec, -1
            {LP}_nf{buf}:
            """)
        lg = Cnt(a, "lgkmcnt", 15)
        def xread(ks):
            va = vXR[ks & 3] if buf == 0 else 112 + (ks & 3)
            lg.issue(ks, f"ds_read_b128 v[{XF[ks%4]}:{XF[ks%4]+3}], v{va} offset:{(ks>>2)*4096}")
        for ks in range(3): xread(ks)
        for ks in range(36):
            if ks + 3 < 36: xread(ks + 3)
            lg.wait(ks)
            xf = f"v[{XF[ks%4]}:{XF[ks%4]+3}]"
            for mi, (nme, sp, off, kind) in enumerate(mats):
                k_, rb = wreg(mi, ks)
                wf = f"{k_}[{rb}:{rb+3}]"
                acc = f"v[{ACC[mi][0]}:{ACC[mi][0]+15}]"
                cin = "0" if ks == 0 else acc
                if kind == 'V': a(f"v_mfma_f32_32x32x16_bf16 {acc}, {xf}, {wf}, {cin}")
                else: a(f"v_mfma_f32_32x32x16_bf16 {acc}, {wf}, {xf}, {cin}")
        a(f"s_lshl_b32 s{sT}, s{sSeg}, 18")
        a(f"s_lshl_b32 s{sT2}, s{sHd}, 13")
        a(f"s_add_u32 s{sT}, s{sT}, s{sT2}")
        a(f"s_lshl_b32 s{sT2}, s{w}, 11")
        a(f"s_add_u32 s{sT}, s{sT}, s{sT2}")
        for mi, (nme, sp, off, kind) in enumerate(mats):
            b = ACC[mi][0]
            if nme == 'q':
                a(f"s_mov_b32 s{sT2}, {f32bits(CS):#x}")
                for r in range(16): a(f"v_mul_f32 v{b+r}, s{sT2}, v{b+r}")
            o = 96 + 8 * mi
            a(f"v_cvt_pk_bf16_f32 v{o}, v{b}, v{b+1}")
            a(f"v_cvt_pk_bf16_f32 v{o+1}, v{b+2}, v{b+3}")
            a(f"v_cvt_pk_bf16_f32 v{o+2}, v{b+8}, v{b+9}")
            a(f"v_cvt_pk_bf16_f32 v{o+3}, v{b+10}, v{b+11}")
            a(f"v_cvt_pk_bf16_f32 v{o+4}, v{b+4}, v{b+5}")
            a(f"v_cvt_pk_bf16_f32 v{o+5}, v{b+6}, v{b+7}")
            a(f"v_cvt_pk_bf16_f32 v{o+6}, v{b+12}, v{b+13}")
            a(f"v_cvt_pk_bf16_f32 v{o+7}, v{b+14}, v{b+15}")
            sr = SRD_C + 4 * mi
            a(f"buffer_store_dwordx4 v[{o}:{o+3}], v{vST}, s[{sr}:{sr+3}], s{sT} offen sc1")
            a(f"buffer_store_dwordx4 v[{o+4}:{o+7}], v{vST}, s[{sr}:{sr+3}], s{sT} offen offset:512 sc1")
        a(f"s_mov_b32 s{sPrev2}, s{sPrev}")
        a(f"s_mov_b32 s{sPrev}, s{sSeg}")
        a(f"s_mov_b32 s{sSeg}, s{sNext}")
        a(f"s_cmp_lt_u32 s{sSeg}, 64")
        a(f"s_cbranch_scc0 {LP}_end")
    a(f"s_branch {LP}")
    a(f"{LP}_end:")
    a("s_waitcnt vmcnt(0)")
    a("s_barrier")
    if flags:
        a(f"""
        s_cmp_eq_u32 s{w}, 0
        s_cbranch_scc0 {LP}_nfe
        s_mov_b64 exec, 1
        v_mov_b32 v12, 1
        v_mov_b32 v13, 0
        s_lshl_b32 s{sT}, s{sHd}, 8
        s_lshl_b32 s{sT2}, s{sPrev}, 2
        s_add_u32 s{sT}, s{sT}, s{sT2}
        buffer_store_dword v12, v13, s[{SRD_FL}:{SRD_FL+3}], s{sT} offen offset:{FL_KV} sc1
        s_cmp_lt_i32 s{sPrev2}, 0
        s_cbranch_scc1 {LP}_nf2
        s_lshl_b32 s{sT}, s{sHd}, 8
        s_lshl_b32 s{sT2}, s{sPrev2}, 2
        s_add_u32 s{sT}, s{sT}, s{sT2}
        buffer_store_dword v12, v13, s[{SRD_FL}:{SRD_FL+3}], s{sT} offen offset:{FL_KV} sc1
        {LP}_nf2:
        s_mov_b64 exec, -1
        {LP}_nfe:
        """)

def wait_all_ln(a):
    L = a.label("LNW")
    a(f"""
    v_and_b32 v12, 15, v0
    v_lshlrev_b32 v12, 2, v12
    v_add_u32 v12, {DBG_LN}, v12
    s_mov_b32 s{S_TO}, 0
    {L}:
    buffer_load_dword v13, v12, s[{SRD_DBG}:{SRD_DBG+3}], 0 offen sc1
    s_waitcnt vmcnt(0)
    v_cmp_ne_u32 vcc, 0x01010101, v13
    s_cbranch_vccz {L}_ok
    s_sleep 2
    s_add_u32 s{S_TO}, s{S_TO}, 1
    s_cmp_lt_u32 s{S_TO}, {TIMEOUT}
    s_cbranch_scc1 {L}
    s_branch {WFAIL}
    {L}_ok:
    """)

GS_A, GS_B = 12288, 16384
GS = GS_A + GS_B
GNS = 4

def emit_gemm(a, cfg, which):
    w = S_WAVE
    g4 = which == 4
    ntask = 216 if g4 else 192
    strideB = 9216 if g4 else 4096
    nst = 32 if g4 else 36
    tag = f"G{which}"
    sM0, sN0, sK0, sAo, sBo, sIt = 36, 37, 38, 39, 40, 41
    vDA = [1, 2, 3]; vDB = 4; vRA = 5; vRB = 6; vCA = 7; vCB = 8
    ACC = [16, 32, 48]; FA = [[64, 68, 72], [80, 84, 88]]; FB = [76, 92]
    a(f"s_cmp_lt_u32 s{sWK}, {ntask}")
    a(f"s_cbranch_scc0 {tag}_DONE")
    if g4:
        srd(a, SRD_A, S_WS, WS_HB, XN_SIZE); srd(a, SRD_B, S_W1, 0, 2048 * 4608 * 2)
        srd(a, SRD_C, S_WS, WS_UT, UT_SIZE); srd(a, SRD_D, S_B1, 0, 4608 * 2)
        a(f"""
        s_mul_hi_u32 s{sN0}, s{sWK}, {(1 << 32) // 6 + 1}
        s_mul_i32 s{sT}, s{sN0}, 6
        s_sub_u32 s{sM0}, s{sWK}, s{sT}
        s_mov_b32 s{sK0}, 0
        """)
    else:
        srd(a, SRD_A, S_WS, WS_UT, UT_SIZE); srd(a, SRD_B, S_W2, 0, 4608 * 2048 * 2)
        srd(a, SRD_C, S_WS, WS_P5, P5_SIZE)
        a(f"""
        s_mul_hi_u32 s{sT2}, s{sWK}, {(1 << 32) // 6 + 1}
        s_mul_i32 s{sT}, s{sT2}, 6
        s_sub_u32 s{sM0}, s{sWK}, s{sT}
        s_and_b32 s{sN0}, s{sT2}, 15
        s_lshr_b32 s{sK0}, s{sT2}, 4
        s_mov_b32 s42, s{sK0}
        s_mul_i32 s{sK0}, s{sK0}, 2304
        """)
    a(f"""
    s_mul_i32 s{sM0}, s{sM0}, 96
    s_lshl_b32 s{sN0}, s{sN0}, 7
    ; A DMA offsets: gamma = 64 i + l -> row = gamma / 12, col = gamma % 12
    """)
    for i in range(3):
        a(f"""
        v_add_u32 v10, {64*i}, v0
        v_mul_u32_u24 v11, 43691, v10
        v_lshrrev_b32 v11, 19, v11
        v_mul_u32_u24 v12, 12, v11
        v_sub_u32 v12, v10, v12
        v_mul_u32_u24 v11, 1152, v11
        v_lshl_add_u32 v{vDA[i]}, v12, 4, v11
        """)
    a(f"""
    v_lshrrev_b32 v10, 4, v0                 ; g
    v_and_b32 v11, 15, v0
    v_lshlrev_b32 v12, 2, v10
    v_xor_b32 v12, v12, v11
    v_mul_u32_u24 v13, {strideB}, v10
    v_lshl_add_u32 v{vDB}, v12, 4, v13
    v_lshrrev_b32 v12, 2, v11                ; rho
    v_lshrrev_b32 v13, 1, v10                ; g>>1
    v_lshl_or_b32 v13, v13, 3, v12
    v_and_b32 v14, 1, v10                    ; g&1
    v_and_b32 v15, 3, v0                     ; c'
    v_mul_u32_u24 v16, 192, v13
    v_lshl_add_u32 v16, v14, 5, v16
    v_lshl_add_u32 v{vRA}, v15, 3, v16
    s_lshl_b32 s{sT}, s{w}, 2
    v_lshlrev_b32 v16, 1, v14
    v_or_b32 v16, s{sT}, v16                 ; 4w + 2(g&1)
    v_lshrrev_b32 v17, 1, v15
    v_or_b32 v16, v16, v17                   ; q16
    v_lshlrev_b32 v17, 2, v12
    v_xor_b32 v16, v16, v17
    v_lshlrev_b32 v16, 4, v16
    v_lshl_add_u32 v16, v13, 8, v16
    v_and_b32 v17, 1, v15
    v_lshl_add_u32 v16, v17, 3, v16
    v_add_u32 v{vRB}, {GS_A}, v16
    s_lshl_b32 s{sT}, s{w}, 4
    s_add_u32 s{sT}, s{sT}, s{sK0}
    s_mul_i32 s{sAo}, s{sT}, 1152
    s_lshl_b32 s{sT2}, s{sM0}, 1
    s_add_u32 s{sAo}, s{sAo}, s{sT2}          ; (k0 + 16w)*1152 + m0*2
    s_mul_i32 s{sBo}, s{sT}, {strideB}
    s_lshl_b32 s{sT2}, s{sN0}, 1
    s_add_u32 s{sBo}, s{sBo}, s{sT2}          ; (k0 + 16w)*strideB + n0*2
    s_mul_i32 s43, s{w}, 3072
    s_lshl_b32 s44, s{w}, 12
    s_add_u32 s44, s44, {GS_A}
    """)
    if g4:
        L = a.label("G4W")
        a(f"""
        v_and_b32 v10, 15, v0
        v_lshlrev_b32 v10, 2, v10
        v_add_u32 v10, {DBG_LN}, v10
        s_mov_b32 s{S_TO}, 0
        {L}:
        buffer_load_dword v11, v10, s[{SRD_DBG}:{SRD_DBG+3}], 0 offen sc1
        s_waitcnt vmcnt(0)
        v_cmp_ne_u32 vcc, 0x01010101, v11
        s_cbranch_vccz {L}_ok
        s_sleep 4
        s_add_u32 s{S_TO}, s{S_TO}, 1
        s_cmp_lt_u32 s{S_TO}, {TIMEOUT}
        s_cbranch_scc1 {L}
        s_branch {WFAIL}
        {L}_ok:
        """)
    def issue(slot):
        fl = "sc1"
        for i in range(3):
            a(f"s_add_u32 m0, s43, {slot*GS + i*1024}")
            a(f"buffer_load_dwordx4 v{vDA[i]}, s[{SRD_A}:{SRD_A+3}], s{sAo} offen {fl} lds")
        for i in range(4):
            a(f"s_add_u32 m0, s44, {slot*GS + i*1024}")
            if i: a(f"s_add_u32 s{sT}, s{sBo}, {4*i*strideB}")
            a(f"buffer_load_dwordx4 v{vDB}, s[{SRD_B}:{SRD_B+3}], s{sT if i else sBo} offen lds")
        a(f"s_add_u32 s{sAo}, s{sAo}, {64*1152}")
        a(f"s_add_u32 s{sBo}, s{sBo}, {64*strideB}")
    a("s_barrier")
    for s_ in range(GNS - 1): issue(s_)
    for acc in ACC:
        for r in range(0, 16, 2): a(f"v_mov_b64 v[{acc+r}:{acc+r+1}], 0")
    LP = a.label(tag + "L")
    a(f"s_mov_b32 s{sIt}, 0")
    a(f"{LP}:")
    for slot in range(GNS):
        a(f"s_add_u32 s{sT2}, s{sIt}, {slot + GNS - 1}")
        a(f"s_cmp_lt_u32 s{sT2}, {nst}")
        a(f"s_cbranch_scc0 {LP}_t{slot}")
        a(f"s_waitcnt vmcnt({7*(GNS-2)})")
        a("s_barrier")
        issue((slot + GNS - 1) % GNS)
        a(f"s_branch {LP}_c{slot}")
        a(f"{LP}_t{slot}:")
        a("s_waitcnt vmcnt(0)")
        a("s_barrier")
        a(f"{LP}_c{slot}:")
        a(f"v_add_u32 v{vCA}, {slot*GS}, v{vRA}")
        a(f"v_add_u32 v{vCB}, {slot*GS}, v{vRB}")
        lg = Cnt(a, "lgkmcnt", 15)
        def rd(ks):
            b = ks & 1
            for p in range(2):
                lg.issue(('B', ks), f"ds_read_b64_tr_b16 v[{FB[b]+2*p}:{FB[b]+2*p+1}], v{vCB} offset:{(16*ks + 4*p)*256}")
            for mt in range(3):
                for p in range(2):
                    lg.issue(('A', ks, mt), f"ds_read_b64_tr_b16 v[{FA[b][mt]+2*p}:{FA[b][mt]+2*p+1}], v{vCA} offset:{(16*ks + 4*p)*192 + mt*64}")
        rd(0)
        for ks in range(4):
            b = ks & 1
            for mt in range(3):
                if mt == 0 and ks + 1 < 4:
                    lg.wait(('B', ks), ('A', ks, 0))
                    rd(ks + 1)
                lg.wait(('B', ks), ('A', ks, mt))
                a(f"v_mfma_f32_32x32x16_bf16 v[{ACC[mt]}:{ACC[mt]+15}], v[{FA[b][mt]}:{FA[b][mt]+3}], v[{FB[b]}:{FB[b]+3}], v[{ACC[mt]}:{ACC[mt]+15}]")
    a(f"s_add_u32 s{sIt}, s{sIt}, {GNS}")
    a(f"s_cmp_lt_u32 s{sIt}, {nst}")
    a(f"s_cbranch_scc1 {LP}")
    if g4:
        a(f"""
        v_and_b32 v10, 31, v0
        s_lshl_b32 s{sT}, s{w}, 5
        s_add_u32 s{sT}, s{sT}, s{sN0}
        v_add_u32 v10, s{sT}, v10                 ; f
        v_lshlrev_b32 v11, 1, v10
        buffer_load_ushort v12, v11, s[{SRD_D}:{SRD_D+3}], 0 offen
        v_mul_u32_u24 v13, 1152, v10
        v_lshrrev_b32 v14, 5, v0
        v_lshl_add_u32 v13, v14, 4, v13
        s_lshl_b32 s{sT}, s{sM0}, 1
        s_mov_b32 s{sT2}, {f32bits(0.044715):#x}
        s_mov_b32 s{sT3}, {f32bits(-2.0*0.7978845608028654*1.4426950408889634):#x}
        s_waitcnt vmcnt(0)
        v_lshlrev_b32 v12, 16, v12
        """)
        for mt in range(3):
            b = ACC[mt]
            for r in range(16):
                x = b + r
                a(f"v_add_f32 v{x}, v{x}, v12")
                a(f"v_mul_f32 v64, v{x}, v{x}")
                a(f"v_fma_f32 v64, v64, s{sT2}, 1.0")
                a(f"v_mul_f32 v64, v64, v{x}")
                a(f"v_mul_f32 v64, s{sT3}, v64")
                a(f"v_exp_f32 v64, v64")
                a(f"v_add_f32 v64, 1.0, v64")
                a(f"v_rcp_f32 v64, v64")
                a(f"v_mul_f32 v{x}, v{x}, v64")
            for pr in range(2):
                o = 68 + 4 * pr
                q0, q1 = b + 8 * pr, b + 8 * pr + 4
                a(f"v_cvt_pk_bf16_f32 v{o}, v{q0}, v{q0+1}")
                a(f"v_cvt_pk_bf16_f32 v{o+1}, v{q0+2}, v{q0+3}")
                a(f"v_cvt_pk_bf16_f32 v{o+2}, v{q1}, v{q1+1}")
                a(f"v_cvt_pk_bf16_f32 v{o+3}, v{q1+2}, v{q1+3}")
                a(f"v_permlane32_swap_b32 v{o}, v{o+2}")
                a(f"v_permlane32_swap_b32 v{o+1}, v{o+3}")
                a(f"buffer_store_dwordx4 v[{o}:{o+3}], v13, s[{SRD_C}:{SRD_C+3}], s{sT} offen offset:{mt*64 + pr*32} sc1")
    else:
        a(f"""
        v_and_b32 v10, 31, v0
        s_lshl_b32 s{sT}, s{w}, 5
        s_add_u32 s{sT}, s{sT}, s{sN0}
        v_add_u32 v10, s{sT}, v10                 ; token
        v_mul_u32_u24 v13, 2304, v10
        v_lshrrev_b32 v14, 5, v0
        v_lshl_add_u32 v13, v14, 4, v13
        s_mul_i32 s{sT}, s42, {2048*576*4}
        s_lshl_b32 s{sT2}, s{sM0}, 2
        s_add_u32 s{sT}, s{sT}, s{sT2}
        """)
        for mt in range(3):
            for q in range(4):
                b = ACC[mt] + 4 * q
                a(f"buffer_store_dwordx4 v[{b}:{b+3}], v13, s[{SRD_C}:{SRD_C+3}], s{sT} offen offset:{mt*128 + q*32} sc1")
    a(f"{tag}_DONE:")
    cnt = DBG_UREADY if g4 else DBG_G5DONE
    a(f"""
    s_waitcnt vmcnt(0)
    s_barrier
    s_cmp_eq_u32 s{w}, 0
    s_cbranch_scc0 {tag}_ANN
    s_mov_b64 exec, 1
    v_mov_b32 v10, 1
    v_mov_b32 v11, {cnt}
    buffer_atomic_add v10, v11, s[{SRD_DBG}:{SRD_DBG+3}], 0 offen
    s_mov_b64 exec, -1
    {tag}_ANN:
    """)

def emit_g4(a, cfg): emit_gemm(a, cfg, 4)

def emit_g5(a, cfg):
    a(f"v_mov_b32 v10, {DBG_UREADY}")
    poll_dword_eq(a, SRD_DBG, 10, 11, 224, WFAIL, "G5W", sleep=8)
    emit_gemm(a, cfg, 5)

def emit_g23(a, cfg):
    w = S_WAVE
    sHP, sGR, sSeg, sPrev, sHH, sQT, sKo, sNx = 36, 37, 38, 39, 40, 41, 42, 43
    SM = [44, 46, 48, 50]
    SRD_O, SRD_QKV, SRD_KM2, SRD_P3, SRD_X, SRD_P5, SRD_OUT = 8, 12, 16, 20, 52, 56, 60
    vL16, vT = 1, [2, 3, 4, 5]
    Q, K, V, KM, VM = 16, 32, 64, 96, 112
    SMm, SX0, SX1, PX, PM, O = 128, 132, 136, 140, 144, 148
    ACC, BF = 128, [200, 204, 208, 212]
    L_OI = 0
    STG0 = 16384
    NS = 8
    def wfrag(nti, kap):
        i = nti * 8 + kap
        if i < 64: return ('a', 4 * i)
        return ('v', 224 + 4 * (i - 64))
    srd(a, SRD_O, S_WO, 0, DM * H * DH * 2)
    a(f"""
    s_mul_hi_u32 s{sHP}, s{sWK}, {(1 << 32) // 14 + 1}
    s_mul_i32 s{sGR}, s{sHP}, 14
    s_sub_u32 s{sGR}, s{sWK}, s{sGR}
    s_lshr_b32 s{sHH}, s{w}, 1
    s_and_b32 s{sQT}, s{w}, 1
    v_lshlrev_b32 v{vL16}, 4, v0
    v_lshrrev_b32 v10, 3, v0
    v_mul_u32_u24 v11, 1152, v10
    v_and_b32 v10, 7, v0
    s_lshl_b32 s{sT}, s{w}, 1
    s_and_b32 s{sT}, s{sT}, 3
    s_lshl_b32 s{sT}, s{sT}, 1
    v_xor_b32 v12, s{sT}, v10
    v_lshl_add_u32 v6, v12, 4, v11
    s_lshl_b32 s{sT}, s{w}, 1
    s_add_u32 s{sT}, s{sT}, 1
    s_and_b32 s{sT}, s{sT}, 3
    s_lshl_b32 s{sT}, s{sT}, 1
    v_xor_b32 v12, s{sT}, v10
    v_lshl_add_u32 v7, v12, 4, v11
    v_lshrrev_b32 v10, 4, v0
    v_bfe_u32 v11, v0, 2, 2
    v_lshl_or_b32 v10, v10, 2, v11
    v_lshlrev_b32 v10, 7, v10
    v_and_b32 v11, 3, v0
    v_lshl_add_u32 v10, v11, 3, v10
    """)
    for sw in range(4):
        a(f"s_xor_b32 s{sT}, s{w}, {sw}")
        a(f"s_lshl_b32 s{sT}, s{sT}, 5")
        a(f"v_add_u32 v{vT[sw]}, s{sT}, v10")
    chunks = [(hh, cb) for hh in range(2) for cb in range(9)]
    a(f"""
    s_lshl_b32 s{sT2}, s{sHP}, 8
    s_lshl_b32 s{sT}, s{w}, 5
    s_add_u32 s{sT2}, s{sT2}, s{sT}
    s_mul_i32 s{sT2}, s{sT2}, 1152              ; (256hp + 32w)*1152
    s_lshl_b32 s{sT3}, s{w}, 12
    s_add_u32 s{sT3}, s{sT3}, {STG0}
    """)
    def issue(ci):
        hh, cb = chunks[ci]; slot = ci % NS
        for nl in range(4):
            a(f"s_add_u32 m0, s{sT3}, {slot*16384 + nl*1024}")
            a(f"s_add_u32 s{sT}, s{sT2}, {hh*128*1152 + cb*128 + nl*8*1152}")
            a(f"buffer_load_dwordx4 v{6 + (nl>>1)}, s[{SRD_O}:{SRD_O+3}], s{sT} offen lds")
    a("s_barrier")
    for ci in range(NS): issue(ci)
    for ci, (hh, cb) in enumerate(chunks):
        inflight = min(NS - 1 if ci == 0 else NS - 2, len(chunks) - 1 - ci)
        a(f"s_waitcnt vmcnt({4*inflight})")
        a("s_barrier")
        if ci >= 1 and ci + NS - 1 < len(chunks): issue(ci + NS - 1)
        base = STG0 + (ci % NS) * 16384
        for sw in range(4): a(f"v_add_u32 v{8+sw}, {base}, v{vT[sw]}")
        for wp in range(4):
            kind, rb = wfrag(cb, 4 * hh + wp)
            for p in range(2):
                sw = (2 * wp + p) & 3
                a(f"ds_read_b64_tr_b16 {kind}[{rb+2*p}:{rb+2*p+1}], v{8+sw} offset:{(32*wp + 16*p)*128}")
        a("s_waitcnt lgkmcnt(0)")
    a("s_barrier")
    srd(a, SRD_QKV, S_WS, WS_KX, 3 * QKV_SIZE)
    srd(a, SRD_KM2, S_WS, WS_KM, KM_SIZE)
    srd(a, SRD_P3, S_WS, WS_P3, P3_SIZE)
    srd(a, SRD_FL, S_WS, WS_FLAGS, FLAGS_SIZE)
    srd(a, SRD_X, S_X, 0, XN_SIZE)
    srd(a, SRD_P5, S_WS, WS_P5, P5_SIZE)
    srd(a, SRD_OUT, S_OUT, 0, XN_SIZE)
    srd(a, SRD_O, S_B2, 0, 2048 * 2)
    a(f"""
    v_and_b32 v10, 15, v0
    v_lshrrev_b32 v11, 4, v0
    v_lshlrev_b32 v11, 2, v11
    """)
    for r in range(4):
        a(f"v_add_u32 v12, {r}, v11")
        a(f"v_cmp_le_u32 s[{SM[r]}:{SM[r]+1}], v12, v10")
    a(f"""
    s_lshl_b32 s{sKo}, s{sHP}, 1
    s_add_u32 s{sKo}, s{sKo}, s{sHH}
    s_lshl_b32 s{sKo}, s{sKo}, 13               ; head*8192
    """)
    def qkv_issue(sseg):
        a(f"s_lshl_b32 s{sT}, s{sseg}, 18")
        a(f"s_add_u32 s{sT}, s{sT}, s{sKo}")
        for wp in range(4):
            for t in range(2):
                o = wp * 2048 + t * 1024
                a(f"s_add_u32 s{sT2}, s{sT}, {o}")
                a(f"buffer_load_dwordx4 v[{K+4*(2*wp+t)}:{K+4*(2*wp+t)+3}], v{vL16}, s[{SRD_QKV}:{SRD_QKV+3}], s{sT2} offen sc1")
                a(f"s_add_u32 s{sT2}, s{sT2}, {QKV_SIZE}")
                a(f"buffer_load_dwordx4 v[{V+4*(2*wp+t)}:{V+4*(2*wp+t)+3}], v{vL16}, s[{SRD_QKV}:{SRD_QKV+3}], s{sT2} offen sc1")
        a(f"s_lshl_b32 s{sT3}, s{sQT}, 10")
        a(f"s_add_u32 s{sT}, s{sT}, s{sT3}")
        a(f"s_add_u32 s{sT}, s{sT}, {2*QKV_SIZE}")
        for wp in range(4):
            a(f"s_add_u32 s{sT2}, s{sT}, {wp*2048}")
            a(f"buffer_load_dwordx4 v[{Q+4*wp}:{Q+4*wp+3}], v{vL16}, s[{SRD_QKV}:{SRD_QKV+3}], s{sT2} offen sc1")

    def reduce_final(sseg, name):
        L = a.label(name)
        a(f"s_cmp_lt_u32 s{sHP}, 9")
        a(f"s_cbranch_scc0 {L}_skip")
        a(f"""
        v_and_b32 v10, 15, v0
        v_lshlrev_b32 v10, 2, v10
        s_lshl_b32 s{sT}, s{sseg}, 6
        s_add_u32 s{sT}, s{sT}, {FL_G3}
        s_mov_b32 s{S_TO}, 0
        {L}:
        buffer_load_dword v11, v10, s[{SRD_FL}:{SRD_FL+3}], s{sT} offen sc1
        s_waitcnt vmcnt(0)
        v_cmp_ne_u32 vcc, 1, v11
        s_cbranch_vccz {L}_ok
        s_sleep 1
        s_add_u32 s{S_TO}, s{S_TO}, 1
        s_cmp_lt_u32 s{S_TO}, {TIMEOUT}
        s_cbranch_scc1 {L}
        s_branch {WFAIL}
        {L}_ok:
        s_lshl_b32 s{sT}, s{sHP}, 2
        s_add_u32 s{sT}, s{sT}, s{w}                 ; chunk
        s_mul_i32 s{sT2}, s{sseg}, {16*36864}
        s_lshl_b32 s{sT3}, s{sT}, 10
        s_add_u32 s{sT2}, s{sT2}, s{sT3}
        """)
        R = 128
        for p in range(16):
            a(f"buffer_load_dwordx4 v[{R+4*p}:{R+4*p+3}], v{vL16}, s[{SRD_P3}:{SRD_P3+3}], s{sT2} offen sc1")
            if p < 15: a(f"s_add_u32 s{sT2}, s{sT2}, 36864")
        a(f"""
        s_mul_hi_u32 s{sT2}, s{sT}, {(1 << 32) // 9 + 1}
        s_mul_i32 s{sT3}, s{sT2}, 9
        s_sub_u32 s{sT3}, s{sT}, s{sT3}
        s_lshl_b32 s{sT3}, s{sT3}, 2
        s_add_u32 s{sT3}, s{sT3}, s{sT2}              ; nt
        s_lshl_b32 s{sT3}, s{sT3}, 4                  ; 16 nt
        v_lshrrev_b32 v10, 4, v0
        v_lshlrev_b32 v10, 2, v10
        v_add_u32 v10, s{sT3}, v10                    ; n0
        v_and_b32 v11, 15, v0
        s_lshl_b32 s{sT}, s{sseg}, 5
        v_add_u32 v11, s{sT}, v11
        v_mul_u32_u24 v12, 576, v11
        v_add_u32 v12, v12, v10
        v_lshlrev_b32 v13, 1, v12
        v_lshlrev_b32 v14, 2, v12
        v_lshlrev_b32 v15, 1, v11
        s_mov_b32 s{sT}, {16*576*2}
        s_mov_b32 s{sT2}, {16*576*4}
        s_mov_b32 s{sT3}, {2048*576*4}
        s_add_u32 s{sT4}, s{sT3}, s{sT2}
        buffer_load_dwordx2 v[200:201], v13, s[{SRD_X}:{SRD_X+3}], 0 offen
        buffer_load_dwordx2 v[202:203], v13, s[{SRD_X}:{SRD_X+3}], s{sT} offen
        buffer_load_dwordx4 v[204:207], v14, s[{SRD_P5}:{SRD_P5+3}], 0 offen sc1
        buffer_load_dwordx4 v[208:211], v14, s[{SRD_P5}:{SRD_P5+3}], s{sT2} offen sc1
        buffer_load_dwordx4 v[212:215], v14, s[{SRD_P5}:{SRD_P5+3}], s{sT3} offen sc1
        buffer_load_dwordx4 v[216:219], v14, s[{SRD_P5}:{SRD_P5+3}], s{sT4} offen sc1
        buffer_load_ushort v220, v15, s[{SRD_O}:{SRD_O+3}], 0 offen
        buffer_load_ushort v221, v15, s[{SRD_O}:{SRD_O+3}], 0 offen offset:32
        s_mov_b32 s{sT2}, 0x00003f80
        s_mov_b32 s{sT3}, 0x3f800000
        s_waitcnt vmcnt(0)
        v_lshlrev_b32 v220, 16, v220
        v_lshlrev_b32 v221, 16, v221
        """)
        for t in range(2):
            for r in range(4):
                d = 96 + 4 * t + r
                a(f"v_add_f32 v{d}, v{204+4*t+r}, v{212+4*t+r}")
                a(f"v_add_f32 v{d}, v{d}, v{220+t}")
            for h2 in range(2):
                a(f"v_dot2_f32_bf16 v{96+4*t+2*h2}, v{200+2*t+h2}, s{sT2}, v{96+4*t+2*h2}")
                a(f"v_dot2_f32_bf16 v{96+4*t+2*h2+1}, v{200+2*t+h2}, s{sT3}, v{96+4*t+2*h2+1}")
        for p in range(16):
            for dd in range(4):
                a(f"v_dot2_f32_bf16 v{96+2*dd}, v{R+4*p+dd}, s{sT2}, v{96+2*dd}")
                a(f"v_dot2_f32_bf16 v{96+2*dd+1}, v{R+4*p+dd}, s{sT3}, v{96+2*dd+1}")
        a(f"""
        v_cvt_pk_bf16_f32 v104, v96, v97
        v_cvt_pk_bf16_f32 v105, v98, v99
        v_cvt_pk_bf16_f32 v106, v100, v101
        v_cvt_pk_bf16_f32 v107, v102, v103
        buffer_store_dwordx2 v[104:105], v13, s[{SRD_OUT}:{SRD_OUT+3}], 0 offen
        buffer_store_dwordx2 v[106:107], v13, s[{SRD_OUT}:{SRD_OUT+3}], s{sT} offen
        {L}_skip:
        """)

    a(f"v_mov_b32 v10, {DBG_G5DONE}")
    poll_dword_eq(a, SRD_DBG, 10, 11, 224, WFAIL, "G3W", sleep=8)
    LP = a.label("G23")
    a(f"s_mov_b32 s{sSeg}, s{sGR}")
    a(f"s_mov_b32 s{sPrev}, -1")
    qkv_issue(sSeg)
    a(f"{LP}:")
    a(f"s_cmp_lt_i32 s{sPrev}, 0")
    a(f"s_cbranch_scc1 {LP}_nr")
    reduce_final(sPrev, "G3R")
    a(f"{LP}_nr:")
    a(f"""
    s_lshr_b32 s{sT}, s{sKo}, 5                  ; head*256
    s_lshl_b32 s{sT2}, s{sSeg}, 2
    s_add_u32 s{sT}, s{sT}, s{sT2}
    s_add_u32 s{sT}, s{sT}, {FL_KM}
    v_mov_b32 v10, s{sT}
    """)
    poll_dword_eq(a, SRD_FL, 10, 11, 1, WFAIL, "G2W", sleep=1)
    a(f"s_lshl_b32 s{sT}, s{sSeg}, 18")
    a(f"s_add_u32 s{sT}, s{sT}, s{sKo}")
    for wp in range(4):
        a(f"s_add_u32 s{sT2}, s{sT}, {wp*1024}")
        a(f"buffer_load_dwordx4 v[{KM+4*wp}:{KM+4*wp+3}], v{vL16}, s[{SRD_KM2}:{SRD_KM2+3}], s{sT2} offen sc1")
        a(f"s_add_u32 s{sT2}, s{sT2}, 4096")
        a(f"buffer_load_dwordx4 v[{VM+4*wp}:{VM+4*wp+3}], v{vL16}, s[{SRD_KM2}:{SRD_KM2+3}], s{sT2} offen sc1")
    a("s_waitcnt vmcnt(0)")
    for wp in range(4):
        qf = f"v[{Q+4*wp}:{Q+4*wp+3}]"
        for (D, A) in ((SMm, KM + 4 * wp), (SX0, K + 8 * wp), (SX1, K + 8 * wp + 4)):
            c = "0" if wp == 0 else f"v[{D}:{D+3}]"
            a(f"v_mfma_f32_16x16x32_bf16 v[{D}:{D+3}], v[{A}:{A+3}], {qf}, {c}")
    a(f"v_mov_b32 v10, 0xff800000")
    a(f"s_cmp_eq_u32 s{sQT}, 0")
    a(f"s_cbranch_scc0 {LP}_q1")
    for r in range(4):
        a(f"v_cndmask_b32 v{SX0+r}, v10, v{SX0+r}, s[{SM[r]}:{SM[r]+1}]")
        a(f"v_mov_b32 v{SX1+r}, v10")
    a(f"s_branch {LP}_qd")
    a(f"{LP}_q1:")
    for r in range(4):
        a(f"v_cndmask_b32 v{SX1+r}, v10, v{SX1+r}, s[{SM[r]}:{SM[r]+1}]")
    a(f"{LP}_qd:")
    a(f"""
    v_max3_f32 v11, v{SMm}, v{SMm+1}, v{SX0}
    v_max3_f32 v11, v11, v{SX0+1}, v{SX0+2}
    v_max3_f32 v11, v11, v{SX0+3}, v{SX1}
    v_max3_f32 v11, v11, v{SX1+1}, v{SX1+2}
    v_max_f32 v11, v11, v{SX1+3}
    v_mov_b32 v12, v11
    v_permlane16_swap_b32 v11, v12
    v_max_f32 v11, v11, v12
    v_mov_b32 v12, v11
    v_permlane32_swap_b32 v11, v12
    v_max_f32 v11, v11, v12
    """)
    vals = [SMm, SMm + 1] + [SX0 + r for r in range(4)] + [SX1 + r for r in range(4)]
    for x in vals:
        a(f"v_sub_f32 v{x}, v{x}, v11")
    for x in vals:
        a(f"v_exp_f32 v{x}, v{x}")
    a(f"""
    v_cvt_pk_bf16_f32 v{PX}, v{SX0}, v{SX0+1}
    v_cvt_pk_bf16_f32 v{PX+1}, v{SX0+2}, v{SX0+3}
    v_cvt_pk_bf16_f32 v{PX+2}, v{SX1}, v{SX1+1}
    v_cvt_pk_bf16_f32 v{PX+3}, v{SX1+2}, v{SX1+3}
    v_cvt_pk_bf16_f32 v{PM}, v{SMm}, v{SMm+1}
    v_cvt_pk_bf16_f32 v{PM+1}, v{SMm}, v{SMm+1}
    s_mov_b32 s{sT}, 0x3f803f80
    v_mov_b32 v12, 0
    v_dot2_f32_bf16 v12, v{PX}, s{sT}, v12
    v_dot2_f32_bf16 v12, v{PX+1}, s{sT}, v12
    v_dot2_f32_bf16 v12, v{PX+2}, s{sT}, v12
    v_dot2_f32_bf16 v12, v{PX+3}, s{sT}, v12
    v_dot2_f32_bf16 v12, v{PM}, s{sT}, v12
    """)
    for wp in range(4):
        for t in range(2):
            D = O + 4 * (2 * wp + t)
            a(f"v_mfma_f32_16x16x32_bf16 v[{D}:{D+3}], v[{V+4*(2*wp+t)}:{V+4*(2*wp+t)+3}], v[{PX}:{PX+3}], 0")
    for wp in range(4):
        for t in range(2):
            D = O + 4 * (2 * wp + t)
            a(f"v_mfma_f32_16x16x16_bf16 v[{D}:{D+3}], v[{VM+4*wp+2*t}:{VM+4*wp+2*t+1}], v[{PM}:{PM+1}], v[{D}:{D+3}]")
    a(f"""
    v_mov_b32 v13, v12
    v_permlane16_swap_b32 v12, v13
    v_add_f32 v12, v12, v13
    v_mov_b32 v13, v12
    v_permlane32_swap_b32 v12, v13
    v_add_f32 v12, v12, v13
    v_rcp_f32 v12, v12
    s_lshl_b32 s{sT}, s{sHH}, 13
    s_lshl_b32 s{sT2}, s{sQT}, 10
    s_add_u32 s{sT}, s{sT}, s{sT2}
    v_add_u32 v13, s{sT}, v{vL16}
    """)
    for wp in range(4):
        for t in range(2):
            D = O + 4 * (2 * wp + t)
            for r in range(4): a(f"v_mul_f32 v{D+r}, v{D+r}, v12")
        D0 = O + 8 * wp
        a(f"v_cvt_pk_bf16_f32 v{D0}, v{D0}, v{D0+1}")
        a(f"v_cvt_pk_bf16_f32 v{D0+1}, v{D0+2}, v{D0+3}")
        a(f"v_cvt_pk_bf16_f32 v{D0+2}, v{D0+4}, v{D0+5}")
        a(f"v_cvt_pk_bf16_f32 v{D0+3}, v{D0+6}, v{D0+7}")
        a(f"ds_write_b128 v13, v[{D0}:{D0+3}] offset:{L_OI + wp*2048}")
    a("s_waitcnt lgkmcnt(0)")
    a("s_barrier")
    a(f"s_add_u32 s{sNx}, s{sSeg}, 14")
    a(f"s_cmp_lt_u32 s{sNx}, 64")
    a(f"s_cbranch_scc0 {LP}_np")
    qkv_issue(sNx)
    a(f"{LP}_np:")
    lg = Cnt(a, "lgkmcnt", 15)
    seq = [(kap, qt) for kap in range(8) for qt in range(2)]
    def bread(n):
        kap, qt = seq[n]
        lg.issue(n, f"ds_read_b128 v[{BF[n%4]}:{BF[n%4]+3}], v{vL16} offset:{L_OI + kap*2048 + qt*1024}")
    for n in range(3): bread(n)
    for n, (kap, qt) in enumerate(seq):
        if n + 3 < len(seq): bread(n + 3)
        lg.wait(n)
        for i in range(9):
            kind, rb = wfrag(i, kap)
            D = ACC + 8 * i + 4 * qt
            c = "0" if kap == 0 else f"v[{D}:{D+3}]"
            a(f"v_mfma_f32_16x16x32_bf16 v[{D}:{D+3}], {kind}[{rb}:{rb+3}], v[{BF[n%4]}:{BF[n%4]+3}], {c}")
    a(f"""
    s_lshl_b32 s{sT}, s{sSeg}, 4
    s_add_u32 s{sT}, s{sT}, s{sHP}
    s_mul_i32 s{sT}, s{sT}, 36864
    s_mul_i32 s{sT2}, s{w}, 9216
    s_add_u32 s{sT}, s{sT}, s{sT2}
    """)
    for i in range(9):
        D = ACC + 8 * i
        a(f"v_cvt_pk_bf16_f32 v{D}, v{D}, v{D+1}")
        a(f"v_cvt_pk_bf16_f32 v{D+1}, v{D+2}, v{D+3}")
        a(f"v_cvt_pk_bf16_f32 v{D+2}, v{D+4}, v{D+5}")
        a(f"v_cvt_pk_bf16_f32 v{D+3}, v{D+6}, v{D+7}")
        a(f"buffer_store_dwordx4 v[{D}:{D+3}], v{vL16}, s[{SRD_P3}:{SRD_P3+3}], s{sT} offen sc1")
        if i < 8: a(f"s_add_u32 s{sT}, s{sT}, 1024")
    a("s_waitcnt vmcnt(0)")
    a("s_barrier")
    a(f"""
    s_cmp_eq_u32 s{w}, 0
    s_cbranch_scc0 {LP}_nf
    s_lshl_b32 s{sT}, s{sSeg}, 4
    s_add_u32 s{sT}, s{sT}, s{sHP}
    s_lshl_b32 s{sT}, s{sT}, 2
    s_mov_b64 exec, 1
    v_mov_b32 v10, 1
    v_mov_b32 v11, 0
    buffer_store_dword v10, v11, s[{SRD_FL}:{SRD_FL+3}], s{sT} offen offset:0 sc1
    s_mov_b64 exec, -1
    {LP}_nf:
    """.replace("s{sT} offen offset:0 sc1", "s{sT} offen sc1").replace("{sT}", str(sT)) if False else f"""
    s_cmp_eq_u32 s{w}, 0
    s_cbranch_scc0 {LP}_nf
    s_lshl_b32 s{sT}, s{sSeg}, 4
    s_add_u32 s{sT}, s{sT}, s{sHP}
    s_lshl_b32 s{sT}, s{sT}, 2
    s_add_u32 s{sT}, s{sT}, {FL_G3}
    s_mov_b64 exec, 1
    v_mov_b32 v10, 1
    v_mov_b32 v11, 0
    buffer_store_dword v10, v11, s[{SRD_FL}:{SRD_FL+3}], s{sT} offen sc1
    s_mov_b64 exec, -1
    {LP}_nf:
    """)
    a(f"s_mov_b32 s{sPrev}, s{sSeg}")
    a(f"s_mov_b32 s{sSeg}, s{sNx}")
    a(f"s_cmp_lt_u32 s{sSeg}, 64")
    a(f"s_cbranch_scc1 {LP}")
    reduce_final(sPrev, "G3E")
    a("s_waitcnt vmcnt(0)")


def emit_pretouch(a, cfg):
    wsz = DM * H * DH * 2
    for i, sp in enumerate((S_WQ, S_WO)):
        srd(a, SRD_A + 4 * i, sp, 0, wsz)
    a(f"""
    s_lshl_b32 s{sT}, s{sWK}, 2
    s_add_u32 s{sT}, s{sT}, s{S_WAVE}
    s_lshl_b32 s{sT}, s{sT}, 13
    s_cmp_lt_u32 s{sT}, {wsz}
    s_cbranch_scc0 W_PRE_DONE
    v_lshlrev_b32 v200, 7, v0
    buffer_load_dword v201, v200, s[{SRD_A}:{SRD_A+3}], s{sT} offen
    buffer_load_dword v202, v200, s[{SRD_B}:{SRD_B+3}], s{sT} offen
    W_PRE_DONE:
    """)
```

```python
import sys
from asmlib import Asm
from layout import *
from common import *
import chain, worker

NAME = "parallel_sum__memory_aug_recurrent_mem_tr__mixer_token_mlp__prompt_kernel"

def build(cfg, name=NAME, header=True):
    a = Asm()
    if header:
        a.raw("; memory-augmented recurrent attention + token-mixer MLP in one persistent launch (256 workgroups, one per CU)")
        a.raw("; @launch grid=(256,1,1) block=(256,1,1) lds=163840")
        a.raw(";")
    a.raw('.amdgcn_target "amdgcn-amd-amdhsa--gfx950"')
    a.raw(".text")
    a.raw(f".globl {name}")
    a.raw(".p2align 8")
    a.raw(f".type {name},@function")
    a(f"{name}:")
    emit_entry(a, fake=cfg.get('fake', 0))
    a("ROLE_WORKER:")
    ph = cfg.get('phases', 'ln,kv,q,g4,g5,g23').split(',') if isinstance(cfg.get('phases', ''), str) else cfg['phases']
    worker.wall(a, cfg, 0)
    worker.wstamp(a, cfg, 0)
    if not cfg.get('nopre'): worker.emit_pretouch(a, cfg)
    if 'ln' in ph: worker.emit_ln(a, cfg)
    worker.wstamp(a, cfg, 1)
    if 'kv' in ph: worker.emit_g1(a, cfg, [('k', S_WK, WS_KX, 'K'), ('v', S_WV, WS_VX, 'V')], "KV")
    worker.wall(a, cfg, 2)
    worker.wstamp(a, cfg, 2)
    if 'q' in ph: worker.emit_g1(a, cfg, [('q', S_WQ, WS_QX, 'K')], "Q")
    worker.wstamp(a, cfg, 3)
    if 'g4' in ph: worker.emit_g4(a, cfg)
    worker.wall(a, cfg, 3)
    worker.wstamp(a, cfg, 4)
    if 'g5' in ph: worker.emit_g5(a, cfg)
    worker.wall(a, cfg, 4)
    worker.wstamp(a, cfg, 5)
    if 'g23' in ph: worker.emit_g23(a, cfg)
    worker.wall(a, cfg, 5)
    worker.wstamp(a, cfg, 6)
    a("s_branch END")
    a("W_FAIL:")
    a(f"""
    s_mov_b64 exec, 1
    v_mov_b32 v1, 0xbad
    v_mov_b32 v2, {DBG_FAIL}
    buffer_store_dword v1, v2, s[{SRD_DBG}:{SRD_DBG+3}], 0 offen
    s_waitcnt vmcnt(0)
    s_branch END
    """)
    if cfg.get('nochain'):
        a("ROLE_CHAIN:")
        a(f"""
        s_cmp_eq_u32 s{S_WAVE}, 0
        s_cbranch_scc0 END
        s_mov_b64 exec, 1
        v_mov_b32 v1, 1
        v_mov_b32 v2, {DBG_CINIT}
        buffer_atomic_add v1, v2, s[{SRD_DBG}:{SRD_DBG+3}], 0 offen
        s_waitcnt vmcnt(0)
        s_branch END
        """)
    else:
        chain.emit_chain(a, cfg)
    a("END:")
    a("s_endpgm")
    a.raw('.section .rodata,"a"')
    a.raw(".p2align 6")
    a.raw(f""".amdhsa_kernel {name}
  .amdhsa_next_free_vgpr 512
  .amdhsa_next_free_sgpr 102
  .amdhsa_accum_offset 256
  .amdhsa_group_segment_fixed_size 0
  .amdhsa_kernarg_size 120
  .amdhsa_user_sgpr_count 2
  .amdhsa_user_sgpr_kernarg_segment_ptr 1
  .amdhsa_system_sgpr_workgroup_id_x 1
.end_amdhsa_kernel""")
    return a.text()

if __name__ == "__main__":
    cfg = {}
    for arg in sys.argv[2:]:
        k, v = arg.split("=")
        if k == "stamps": cfg[k] = v.split(",")
        elif k == "phases": cfg[k] = v
        else: cfg[k] = int(v)
    open(sys.argv[1], "w").write(build(cfg))
```

```python
from layout import *
from common import *
from asmlib import Cnt
import struct

SRD_H1, SRD_H2, SRD_KV, SRD_KM, SRD_FL = 8, 12, 16, 20, 24
SRD_W = {'q': 36, 'k': 40, 'v': 44, 'o': 48}
SRD_T = 52
sH, sSTEP, sT = 32, 33, 35
sKX, sKMO, sH1B, sRH1, sRH2, sRED, sH1S, sWB = 56, 57, 58, 59, 60, 61, 62, 63
sT2, sT3, sSLOW = 98, 99, 97
sR = [36, 37, 38, 39]
sH1P = [40, 41, 42, 43]
sOW = 44
sCS = 46
sG = [48, 49, 50]
sFLN = 51
sKXS, sVXS, sKMS, sVMS, sFKM, sONE, sSELC = 64, 65, 66, 67, 68, 69, 70
sFLV, sWRM, sWRMX, sG3 = 80, 81, 82, 83
sLATE = 45
sSPARE = 71
S_FLP = 84
sSELM = 72

vT0, vIDX, vF, vL16, vSW, vSWm, vL4b, vW, vRD, vH2, vT1 = 0, 1, 2, 4, 5, 6, 7, 8, 9, 10, 11
vWA = vH2
A_BUF = [12, 16, 20]
ACCQ, ACCK, ACCV = 24, 32, 40
STG = [48, 56]
KX, VX = 64, 72
WV0 = 80

def tile_reg(i):
    if i < 32: return f"a[{8*i}:{8*i+7}]", ('a', 8 * i)
    b = WV0 + 8 * (i - 32)
    return f"v[{b}:{b+7}]", ('v', b)

REG_TILE = {}
for ci, c in enumerate(REG_CHUNKS):
    for tt in range(2):
        REG_TILE[(c, tt)] = 2 * ci + tt
LDS_SLOT = {c: i for i, c in enumerate(LDS_CHUNKS)}

def stamp_txt(cfg, name):
    st = cfg.get('stamps')
    if st and name in st:
        i = st.index(name)
        if name.startswith("cnt_"): return f"s_mov_b32 s{STAMP_REGS[i]}, s{S_TO}"
        if cfg.get('rt'): return f"s_memrealtime s[{STAMP_REGS[i]}:{STAMP_REGS[i]+1}]"
        return f"s_memtime s[{STAMP_REGS[i]}:{STAMP_REGS[i]+1}]"
    return ""
STAMP_REGS = [4, 6, 52, 54, 86, 88, 90, 92, 46]

def stamp(a, cfg, name):
    t = stamp_txt(cfg, name)
    if t: a(t)

def dump_stamps(a, cfg):
    if not cfg.get('stamps'): return ""
    L = a.label("CH_DS")
    if cfg.get('stamp_all'):
        t = [f"s_cmp_eq_u32 s{sSTEP}, {cfg.get('stamp_step', 32)}", f"s_cbranch_scc0 {L}",
             f"s_cmp_lt_u32 s{S_WAVE}, 2", f"s_cbranch_scc0 {L}",
             "s_waitcnt lgkmcnt(0)", f"s_mul_i32 s{sT}, s{S_WAVE}, 40", f"s_mul_i32 s{sT2}, s{sH}, 80", f"s_add_u32 s{sT}, s{sT}, s{sT2}",
             f"s_add_u32 s{sT}, s{sT}, {FL_G3}", "s_mov_b64 exec, 1"]
        for i in range(len(cfg['stamps'])):
            t += [f"v_mov_b32 v0, s{STAMP_REGS[i]}", f"v_mov_b32 v11, {4*i}",
                  f"buffer_store_dword v0, v11, s[{SRD_FL}:{SRD_FL+3}], s{sT} offen"]
        t += ["s_mov_b64 exec, -1", f"{L}:"]
        return "\n".join(t)
    t = [f"s_cmp_eq_u32 s{sSTEP}, {cfg.get('stamp_step', 32)}", f"s_cbranch_scc0 {L}",
         f"s_cmp_eq_u32 s{sH}, {cfg.get('stamp_h', 0)}", f"s_cbranch_scc0 {L}",
         "s_waitcnt lgkmcnt(0)", f"s_mul_i32 s{sT}, s{S_WAVE}, 40", f"s_add_u32 s{sT}, s{sT}, 96", "s_mov_b64 exec, 1"]
    for i in range(len(cfg['stamps'])):
        t += [(f"s_mov_b32 s{sT2}, s{STAMP_REGS[i]}" if cfg["stamps"][i].startswith("cnt_") else f"s_sub_u32 s{sT2}, s{STAMP_REGS[i]}, s{STAMP_REGS[0]}"), f"v_mov_b32 v0, s{sT2}", f"v_mov_b32 v11, {4*i}",
              f"buffer_store_dword v0, v11, s[{SRD_DBG}:{SRD_DBG+3}], s{sT} offen"]
    t += ["s_mov_b64 exec, -1", f"{L}:"]
    return "\n".join(t)

def emit_chain_setup(a, cfg):
    a(f"s_mov_b32 s{sH}, s{S_ROLE}")
    if cfg.get('hxor'): a(f"s_xor_b32 s{sH}, s{sH}, {cfg['hxor']}")
    srd(a, SRD_H1, S_WS, WS_H1, H1_SIZE)
    srd(a, SRD_H2, S_WS, WS_H2, H2_SIZE)
    srd(a, SRD_KV, S_WS, WS_KX, 2 * QKV_SIZE)
    srd(a, SRD_KM, S_WS, WS_KM, KM_SIZE)
    srd(a, SRD_FL, S_WS, WS_FLAGS, FLAGS_SIZE)
    wsz = DM * H * DH * 2
    srd(a, SRD_W['q'], S_WQ, 0, wsz)
    srd(a, SRD_W['k'], S_WK, 0, wsz)
    srd(a, SRD_W['v'], S_WV, 0, wsz)
    srd(a, SRD_W['o'], S_WO, 0, wsz)
    srd(a, SRD_T, S_MEM0, 0, M * DM * 2)
    w = S_WAVE
    srdm = f"s[{SRD_T}:{SRD_T+3}]"
    a(f"""
    v_and_b32 v12, 15, v0
    v_lshrrev_b32 v13, 2, v12
    v_lshlrev_b32 v13, 1, v13
    v_and_b32 v14, 1, v12
    v_or_b32 v13, v13, v14
    v_mul_u32_u24 v13, 1152, v13
    v_bfe_u32 v12, v12, 1, 1
    v_lshl_add_u32 v13, v12, 4, v13
    v_lshrrev_b32 v12, 4, v0
    v_lshl_add_u32 v13, v12, 5, v13
    s_lshl_b32 s{sT2}, s{w}, 7
    buffer_load_dwordx4 v[64:67], v13, {srdm}, s{sT2} offen
    buffer_load_dwordx4 v[68:71], v13, {srdm}, s{sT2} offen offset:512
    s_mov_b32 s{sT2}, 1024
    buffer_load_dwordx4 v[72:75], v13, {srdm}, s{sT2} offen
    """)
    a(f"""
    v_lshlrev_b32 v{vL16}, 4, v0
    v_lshlrev_b32 v{vL4b}, 2, v0
    v_mov_b32 v12, 0
    v_mov_b32 v13, 0
    v_mov_b32 v14, 0
    v_mov_b32 v15, 0
    v_and_b32 v16, 31, v0
    v_lshlrev_b32 v16, 4, v16
    v_lshrrev_b32 v17, 5, v0
    v_lshlrev_b32 v17, 14, v17          ; (lane>>5)*16384
    v_add_u32 v16, v16, v17
    s_lshl_b32 s{sT}, s{sH}, 9
    s_lshl_b32 s{sT2}, s{w}, 15         ; w*2*16384
    s_add_u32 s{sT}, s{sT}, s{sT2}
    """)
    for i in range(3):
        if i == 2:
            a(f"s_cmp_eq_u32 s{w}, 0")
            a("s_cbranch_scc0 CH_INIT_H1_DONE")
        a(f"buffer_store_dwordx4 v[12:15], v16, s[{SRD_H1}:{SRD_H1+3}], s{sT} offen sc1")
        a(f"s_add_u32 s{sT}, s{sT}, {4*2*16384}")
    a("CH_INIT_H1_DONE:")
    a(f"""
    s_cmp_eq_u32 s{w}, 0
    s_cbranch_scc0 CH_INIT_W1
    s_mul_i32 s{sT}, s{sH}, 288
    s_mov_b32 exec_lo, 0x3ffff
    s_mov_b32 exec_hi, 0
    buffer_store_dwordx4 v[12:15], v{vL16}, s[{SRD_H2}:{SRD_H2+3}], s{sT} offen sc1
    s_mov_b64 exec, -1
    s_branch CH_INIT_DONE
    CH_INIT_W1:
    s_lshl_b32 s{sT}, s{sH}, 8
    s_cmp_eq_u32 s{w}, 3
    s_cbranch_scc1 CH_INIT_W3
    s_cmp_eq_u32 s{w}, 2
    s_cselect_b32 s{sT2}, {FL_KM}, {FL_KV}
    s_add_u32 s{sT}, s{sT}, s{sT2}
    buffer_store_dword v12, v{vL4b}, s[{SRD_FL}:{SRD_FL+3}], s{sT} offen sc1
    s_branch CH_INIT_DONE
    CH_INIT_W3:
    s_lshl_b32 s{sT}, s{sH}, 7
    s_add_u32 s{sT}, s{sT}, {FL_G3}
    s_mov_b32 exec_hi, 0
    buffer_store_dword v12, v{vL4b}, s[{SRD_FL}:{SRD_FL+3}], s{sT} offen sc1
    s_mov_b64 exec, -1
    CH_INIT_DONE:
    """)

def emit_dma_issue(a, c, slot, regs):
    m, i = c
    sB, sM0 = regs['sQB'] if m != 'o' else regs['sOB'], regs['sM0']
    for nl in range(4):
        if m != 'o':
            off = i * 524288 + nl * 32768
            vo = regs['vDQ'][nl >> 1]
        else:
            off = i * 128 + nl * 8 * 1152
            vo = regs['vDO'][nl >> 1]
        a(f"s_add_u32 m0, s{sM0}, {slot*16384 + nl*1024}")
        a(f"s_add_u32 s{sT}, s{sB}, {off}")
        a(f"buffer_load_dwordx4 v{vo}, s[{SRD_W[m]}:{SRD_W[m]+3}], s{sT} offen {'nt ' if regs.get('nt') else ''}lds")

def emit_chain_weights(a, cfg):
    w = S_WAVE
    vDQ = [12, 13]; vDO = [14, 15]; vTQ = [16, 17]; vTO = 18; vX = 19; vY = 20; vC = 21; vG = 22; vR = 23
    regs = dict(sQB=sT2, sOB=sT3, sM0=100, vDQ=vDQ, vDO=vDO, nt=cfg.get('wnt'))
    a(f"""
    v_lshrrev_b32 v{vG}, 4, v0
    v_and_b32 v{vC}, 15, v0
    v_lshlrev_b32 v{vX}, 1, v{vG}
    v_xor_b32 v{vX}, v{vX}, v{vC}
    v_lshlrev_b32 v{vY}, 13, v{vG}
    v_lshl_add_u32 v{vDQ[0]}, v{vX}, 4, v{vY}
    v_xor_b32 v{vX}, 8, v{vX}
    v_lshl_add_u32 v{vDQ[1]}, v{vX}, 4, v{vY}
    v_lshrrev_b32 v{vX}, 3, v0
    v_mul_u32_u24 v{vY}, 1152, v{vX}
    v_and_b32 v{vX}, 7, v0
    s_lshl_b32 s{sT}, s{w}, 1
    s_and_b32 s{sT}, s{sT}, 3
    s_lshl_b32 s{sT}, s{sT}, 1
    v_xor_b32 v{vR}, s{sT}, v{vX}
    v_lshl_add_u32 v{vDO[0]}, v{vR}, 4, v{vY}
    s_lshl_b32 s{sT}, s{w}, 1
    s_add_u32 s{sT}, s{sT}, 1
    s_and_b32 s{sT}, s{sT}, 3
    s_lshl_b32 s{sT}, s{sT}, 1
    v_xor_b32 v{vR}, s{sT}, v{vX}
    v_lshl_add_u32 v{vDO[1]}, v{vR}, 4, v{vY}
    s_lshl_b32 s{sT2}, s{sH}, 8
    s_lshl_b32 s{sT}, s{w}, 17
    s_add_u32 s{sT2}, s{sT2}, s{sT}
    s_lshl_b32 s{sT3}, s{sH}, 7
    s_lshl_b32 s{sT}, s{w}, 5
    s_add_u32 s{sT3}, s{sT3}, s{sT}
    s_mul_i32 s{sT3}, s{sT3}, 1152
    s_lshl_b32 s100, s{w}, 12
    s_add_u32 s100, s100, {L_W}
    """)
    order = REG_CHUNKS + LDS_CHUNKS
    for c in range(9):
        emit_dma_issue(a, order[c], c, regs)
    a(f"""
    v_lshrrev_b32 v{vR}, 2, v{vC}
    v_and_b32 v{vX}, 1, v{vR}
    v_lshlrev_b32 v{vX}, 1, v{vX}
    v_and_b32 v{vY}, 1, v{vG}
    v_or_b32 v{vX}, v{vX}, v{vY}
    v_lshrrev_b32 v{vY}, 1, v{vR}
    v_lshl_or_b32 v24, v{vY}, 2, v{vX}
    v_lshl_or_b32 v25, v{vY}, 3, v{vX}
    v_lshrrev_b32 v26, 1, v{vG}
    v_lshl_or_b32 v25, v26, 4, v25
    v_lshlrev_b32 v25, 8, v25
    v_and_b32 v26, 3, v0
    v_lshlrev_b32 v26, 3, v26
    v_add_u32 v25, v25, v26
    s_lshl_b32 s{sT}, s{w}, 1
    v_xor_b32 v27, s{sT}, v24
    v_lshl_add_u32 v{vTQ[0]}, v27, 5, v25
    v_xor_b32 v27, 1, v27
    v_lshl_add_u32 v{vTQ[1]}, v27, 5, v25
    v_and_b32 v24, 1, v{vG}
    v_lshlrev_b32 v25, 5, v24
    v_lshl_or_b32 v25, v{vY}, 4, v25
    v_lshrrev_b32 v27, 1, v{vG}
    v_lshl_or_b32 v25, v27, 2, v25
    v_and_b32 v27, 1, v{vR}
    v_or_b32 v25, v25, v27
    v_lshlrev_b32 v25, 7, v25
    v_add_u32 v25, v25, v26
    v_lshl_or_b32 v24, v24, 1, v{vY}
    v_xor_b32 v24, s{w}, v24
    v_lshl_add_u32 v{vTO}, v24, 5, v25
    """)
    vA0, vA1 = 24, 25
    for ci, c in enumerate(order):
        m, i = c
        slot = ci % 9
        a(f"s_waitcnt vmcnt({4*min(8 if ci==0 else 7, len(order)-1-ci)})")
        a("s_barrier")
        if ci == 0:
            a(f"""
            s_cmp_eq_u32 s{w}, 0
            s_cbranch_scc0 CH_CINIT_SKIP
            s_mov_b64 exec, 1
            v_mov_b32 v26, 1
            v_mov_b32 v27, {DBG_CINIT}
            buffer_atomic_add v26, v27, s[{SRD_DBG}:{SRD_DBG+3}], 0 offen
            s_mov_b64 exec, -1
            CH_CINIT_SKIP:
            """)
        if ci >= 1 and ci + 8 < len(order):
            emit_dma_issue(a, order[ci + 8], (ci + 8) % 9, regs)
        base = L_W + slot * 16384
        a(f"s_mov_b32 s{sT}, {base}")
        if m != 'o':
            a(f"v_add_u32 v{vA0}, s{sT}, v{vTQ[0]}")
            a(f"v_add_u32 v{vA1}, s{sT}, v{vTQ[1]}")
        else:
            a(f"v_add_u32 v{vA0}, s{sT}, v{vTO}")
        for tt in range(2):
            if c in LDS_SLOT or m == 'q':
                kind, rb = 'v', STG[tt]
            else:
                kind, rb = tile_reg(REG_TILE[(c, tt)])[1]
            for p in range(4):
                if m != 'o':
                    off = (32 * (p >> 1) + 4 * (p & 1)) * 256; va = (vA0, vA1)[tt]
                else:
                    off = (8 * (p >> 1) + 2 * (p & 1) + 64 * tt) * 128; va = vA0
                a(f"ds_read_b64_tr_b16 {kind}[{rb+2*p}:{rb+2*p+1}], v{va} offset:{off}")
        a("s_waitcnt lgkmcnt(0)")
        if m == 'q':
            csb = struct.unpack("<I", struct.pack("<f", 128 ** -0.5 * 1.4426950408889634))[0]
            a(f"s_mov_b32 s{sT}, {csb:#x}")
            for tt in range(2):
                for r in range(8):
                    x = STG[tt] + r
                    a(f"v_lshlrev_b32 v26, 16, v{x}")
                    a(f"v_and_b32 v27, 0xffff0000, v{x}")
                    a(f"v_mul_f32 v26, s{sT}, v26")
                    a(f"v_mul_f32 v27, s{sT}, v27")
                    a(f"v_cvt_pk_bf16_f32 v{x}, v26, v27")
                    if c not in LDS_SLOT:
                        kind, rb = tile_reg(REG_TILE[(c, tt)])[1]
                        if kind == 'a': a(f"v_accvgpr_write_b32 a{rb+r}, v{x}")
                        else: a(f"v_mov_b32 v{rb+r}, v{x}")
        if c in LDS_SLOT:
            assert LDS_SLOT[c] == slot
            a("s_barrier")
            a(f"s_lshl_b32 s{sT}, s{w}, 12")
            a(f"s_add_u32 s{sT}, s{sT}, {base}")
            a(f"v_add_u32 v{vA0}, s{sT}, v{vL16}")
            for tt in range(2):
                for hf in range(2):
                    rb = STG[tt] + 4 * hf
                    a(f"ds_write_b128 v{vA0}, v[{rb}:{rb+3}] offset:{tt*2048 + hf*1024}")
            a("s_waitcnt lgkmcnt(0)")

def emit_chain_consts(a, cfg):
    w = S_WAVE
    cs = 128 ** -0.5 * 1.4426950408889634
    csb = struct.unpack("<I", struct.pack("<f", cs))[0]
    a(f"""
    v_and_b32 v12, 2, v0
    v_mov_b32 v13, 0x4444
    v_mov_b32 v14, 0xeeee
    v_cmp_eq_u32 vcc, 2, v12
    v_cndmask_b32 v{vIDX}, v13, v14, vcc
    v_and_b32 v12, 15, v0
    v_lshrrev_b32 v13, 2, v12
    v_lshlrev_b32 v13, 1, v13
    v_and_b32 v12, 1, v12
    v_or_b32 v12, v12, v13               ; token(n)
    v_lshrrev_b32 v13, 4, v0
    v_lshlrev_b32 v13, 1, v13            ; 2G
    v_sub_u32 v12, v12, v13
    v_mov_b32 v13, 0
    v_mov_b32 v14, 0x3f80
    v_cmp_eq_u32 vcc, 0, v12
    v_cndmask_b32 v13, v13, v14, vcc
    v_mov_b32 v14, 0x3f800000
    v_cmp_eq_u32 vcc, 1, v12
    v_cndmask_b32 v{vF}, v13, v14, vcc
    v_mov_b32 v{vF+1}, v{vF}
    s_lshl_b32 s{sT}, s{w}, 12
    s_add_u32 s{sT}, s{sT}, {L_W}
    v_add_u32 v{vW}, s{sT}, v{vL16}
    v_and_b32 v12, 0xffffffdf, v{vL16}          ; lane*16 & ~32
    s_lshl_b32 s{sT}, s{w}, 10
    s_add_u32 s{sT}, s{sT}, {L_S}
    v_add_u32 v{vSW}, s{sT}, v12
    v_and_b32 v12, 0xfffffff7, v{vL4b}          ; lane*4 & ~8
    s_lshl_b32 s{sT}, s{w}, 8
    s_add_u32 s{sT}, s{sT}, {L_S + 4096}
    v_add_u32 v{vSWm}, s{sT}, v12
    v_add_u32 v{vL4b}, {L_S + 4096}, v{vL4b}
    v_lshrrev_b32 v12, 4, v0
    v_and_b32 v13, 15, v0
    v_lshlrev_b32 v13, 4, v13
    v_lshl_add_u32 v{vRD}, v12, 9, v13
    s_lshl_b32 s{sKX}, s{sH}, 13
    s_lshl_b32 s{sT}, s{w}, 11
    s_add_u32 s{sKX}, s{sKX}, s{sT}
    s_lshl_b32 s{sKMO}, s{sH}, 13
    s_lshl_b32 s{sT}, s{w}, 10
    s_add_u32 s{sKMO}, s{sKMO}, s{sT}
    s_lshl_b32 s{sH1B}, s{w}, 16
    s_lshl_b32 s{sT}, s{sH}, 9
    s_add_u32 s{sH1B}, s{sH1B}, s{sT}
    s_lshr_b32 s{sH1S}, s{w}, 1
    s_add_u32 s{sH1S}, s{sH1S}, 16
    s_lshl_b32 s{sH1S}, s{sH1S}, 14
    s_add_u32 s{sH1S}, s{sH1S}, s{sT}
    s_and_b32 s{sT}, s{w}, 1
    s_lshl_b32 s{sT}, s{sT}, 2
    s_add_u32 s{sH1S}, s{sH1S}, s{sT}
    s_mov_b32 s{sRED}, 0
    s_mov_b32 s{sLATE}, 0
    s_mov_b32 s{sRH1}, 0
    s_mov_b32 s{sRH2}, 0
    s_mov_b32 s{sWB}, 0
    s_mov_b32 s{sT}, s{sH}
    s_cmp_eq_u32 s{w}, 0
    s_cbranch_scc1 CH_RED_YES
    s_cmp_eq_u32 s{w}, 1
    s_cbranch_scc0 CH_RED_NO
    s_and_b32 s{sT2}, s{sH}, 7
    s_cmp_eq_u32 s{sT2}, 0
    s_cbranch_scc0 CH_RED_NO
    s_lshr_b32 s{sT}, s{sH}, 3
    s_add_u32 s{sT}, s{sT}, 32
    s_mov_b32 s{sRED}, 1
    CH_RED_YES:
    s_add_u32 s{sRED}, s{sRED}, 1
    s_lshr_b32 s{sT2}, s{sT}, 1
    s_and_b32 s{sT}, s{sT}, 1
    s_lshl_b32 s{sRH1}, s{sT2}, 14
    s_lshl_b32 s{sT3}, s{sT}, 8
    s_add_u32 s{sRH1}, s{sRH1}, s{sT3}
    s_cmp_lt_u32 s{sT2}, 16
    s_cbranch_scc0 CH_RED_HI
    s_and_b32 s{sT3}, s{sT2}, 3
    s_min_u32 s{sLATE}, s{sT3}, 2
    s_lshl_b32 s{sT3}, s{sT3}, 3
    s_lshr_b32 s{sT2}, s{sT2}, 2
    s_add_u32 s{sT3}, s{sT3}, s{sT2}
    s_mov_b32 s{sWB}, 1024
    s_branch CH_RED_AB
    CH_RED_HI:
    s_sub_u32 s{sT3}, s{sT2}, 16
    s_lshl_b32 s{sT3}, s{sT3}, 1
    s_add_u32 s{sT3}, s{sT3}, 32
    s_mov_b32 s{sWB}, 256
    CH_RED_AB:
    s_lshl_b32 s{sRH2}, s{sT3}, 8
    s_lshl_b32 s{sT}, s{sT}, 7
    s_add_u32 s{sRH2}, s{sRH2}, s{sT}
    CH_RED_NO:
    v_and_b32 v12, 15, v0
    v_lshrrev_b32 v13, 4, v0
    v_lshlrev_b32 v13, 5, v13
    v_and_b32 v14, 1, v12
    v_lshl_or_b32 v13, v14, 4, v13
    v_bfe_u32 v14, v12, 2, 1
    v_lshl_or_b32 v13, v14, 3, v13
    v_bfe_u32 v14, v12, 1, 1
    v_mul_lo_u32 v14, v14, s{sWB}
    v_add_u32 v{vH2}, v13, v14
    """)
    a(f"""
    s_cmp_lt_u32 s{w}, 2
    s_cbranch_scc1 CH_W23_DONE
    v_lshlrev_b32 v{vH2}, 7, v0
    v_mov_b32 v{vRD}, 0
    CH_W23_DONE:
    """)
    for i in range(4):
        a(f"s_add_u32 s{sR[i]}, s{sRH1}, {i*4096}")
        a(f"s_add_u32 s{sH1P[i]}, s{sH1B}, {i*16384}")
    a(f"""
    s_lshl_b32 s{sOW}, s{w}, 9
    s_add_u32 s{sOW}, s{sOW}, {L_O}
    s_mov_b32 s{sCS}, {csb:#x}
    s_mov_b32 s{sCS+1}, {csb:#x}
    s_mov_b32 s{sKXS}, s{sKX}
    s_add_u32 s{sVXS}, s{sKX}, {QKV_SIZE}
    s_mov_b32 s{sKMS}, s{sKMO}
    s_add_u32 s{sVMS}, s{sKMO}, 4096
    s_lshl_b32 s{sFKM}, s{sH}, 8
    s_add_u32 s{sFKM}, s{sFKM}, {FL_KM}
    s_mov_b32 s{sONE}, 0x3f803f80
    s_lshl_b32 s{sSPARE}, s{sH}, 4
    s_lshl_b32 s{sT}, s{w}, 2
    s_add_u32 s{sSPARE}, s{sSPARE}, s{sT}
    s_add_u32 s{sSPARE}, s{sSPARE}, {FL_SPARE}
    s_lshl_b32 s{sWRM}, s{sH}, 13
    s_and_b32 s{sT}, s{w}, 1
    s_lshl_b32 s{sT}, s{sT}, 24
    s_add_u32 s{sWRM}, s{sWRM}, s{sT}
    s_add_u32 s{sWRMX}, s{sWRM}, {63*262144}
    s_add_u32 s{sWRM}, s{sWRM}, 262144
    s_add_u32 s{S_FLP}, s{S_WS}, {WS_FLAGS}
    s_addc_u32 s{S_FLP+1}, s{S_WS+1}, 0
    s_mov_b32 s{sSELC}, 0x3f80
    v_bfe_u32 v12, v0, 1, 3
    v_cmp_eq_u32 s[{sSELM}:{sSELM+1}], 0, v12
    v_cmp_eq_u32 s[{sSELM+2}:{sSELM+3}], 1, v12
    v_cmp_eq_u32 s[{sSELM+4}:{sSELM+5}], 2, v12
    v_cmp_eq_u32 s[{sSELM+6}:{sSELM+7}], 3, v12
    v_and_b32 v12, 8, v0
    v_cmp_eq_u32 vcc, 0, v12
    s_and_b64 s[{sSELM}:{sSELM+1}], s[{sSELM}:{sSELM+1}], vcc
    s_and_b64 s[{sSELM+2}:{sSELM+3}], s[{sSELM+2}:{sSELM+3}], vcc
    s_and_b64 s[{sSELM+4}:{sSELM+5}], s[{sSELM+4}:{sSELM+5}], vcc
    s_and_b64 s[{sSELM+6}:{sSELM+7}], s[{sSELM+6}:{sSELM+7}], vcc
    s_lshl_b32 s{sG[0]}, s{w}, 10
    s_add_u32 s{sG[1]}, s{sG[0]}, 4096
    s_lshl_b32 s{sG3}, s{w}, 8
    s_add_u32 s{sG[2]}, s{sG3}, 8192
    """)
    a(f"""
    s_mov_b32 s4, 0x05040100
    s_mov_b32 s5, 0x07060302
    """)
    for i in range(3):
        if i == 2:
            a(f"s_cmp_eq_u32 s{w}, 0")
            a("s_cbranch_scc0 CH_M0_DONE")
        b = 64 + 4 * i
        a(f"""
        s_add_u32 s{sT}, s{w}, {4*i}
        s_lshl_b32 s{sT2}, s{sT}, 10
        v_add_u32 v14, s{sT2}, v{vL16}
        v_perm_b32 v20, v{b+1}, v{b}, s4
        v_perm_b32 v21, v{b+3}, v{b+2}, s4
        v_perm_b32 v22, v{b+1}, v{b}, s5
        v_perm_b32 v23, v{b+3}, v{b+2}, s5
        ds_write_b128 v14, v[20:23] offset:{L_MEM}
        s_nop 1
        """)
    a("CH_M0_DONE:")
    a("s_waitcnt lgkmcnt(0)")


def lds_tile(c, tt, dst):
    off = LDS_SLOT[c] * 16384 + tt * 2048
    va = vW
    if off >= 131072: va, off = vT0, off - 131072
    elif off >= 65536: va, off = vT1, off - 65536
    return [f"ds_read_b128 v[{dst}:{dst+3}], v{va} offset:{off}", f"ds_read_b128 v[{dst+4}:{dst+7}], v{va} offset:{off+1024}"]

def smf(acc, abuf, wt):
    return f"v_smfmac_f32_16x16x64_bf16 v[{acc}:{acc+3}], v[{abuf}:{abuf+3}], {wt}, v{vIDX}"

def rt(c, tt): return tile_reg(REG_TILE[(c, tt)])[0]
def vt(b): return f"v[{b}:{b+7}]"

def zero(a, regs):
    regs = list(regs)
    for i in range(0, len(regs), 2):
        assert regs[i] % 2 == 0 and regs[i + 1] == regs[i] + 1
        a(f"v_mov_b64 v[{regs[i]}:{regs[i]+1}], 0")

S0, S1 = STG[0], STG[1]
PRE = [(('q', 0), 0, S0), (('q', 0), 1, S1), (('k', 0), 0, KX), (('k', 0), 1, VX), (('q', 2), 0, ACCV)]

def preload_next(a):
    for (c, tt, dst) in PRE:
        for o in lds_tile(c, tt, dst): a(o)
    zero(a, range(ACCQ, ACCK + 8))

def aread_txt(kt, i):
    b = A_BUF[i % 3]
    return f"ds_read_b128 v[{b}:{b+3}], v{vL16} offset:{L_MEM + kt*1024}"

KTV = list(range(9))

def emit_compute(a, cfg, st, par, sfx, lg, vm, tagop):
    w = S_WAVE
    DPPX = "quad_perm:[2,3,0,1] row_mask:0xf bank_mask:0xf"
    kmfl = '' if cfg.get('plain_km') else 'sc1'
    aseq = list(range(9)) + KTV
    lg.q = [('A', 0), ('A', 1), ('A', 2)]
    def anext(i):
        if i + 3 < 18: lg.issue(('A', i + 3), aread_txt(aseq[i + 3], i + 3))
    slot1 = {0: S0, 1: S1, 2: KX, 3: VX, 8: ACCV, 9: S0, 14: S1, 15: ACCV, 20: S0, 21: S1, 26: ACCV, 27: S0, 34: S1, 35: S0}
    refill = {0: (9, ('q', 2), 1), 1: (14, ('k', 3), 0), 8: (15, ('k', 3), 1), 9: (20, ('q', 5), 0), 14: (21, ('q', 5), 1),
              15: (26, ('k', 6), 0), 20: (27, ('k', 6), 1), 21: (34, ('k', 8), 0), 27: (35, ('k', 8), 1)}
    fo = []
    seq = [0]
    def add(dl, kind, x):
        seq[0] += 1; fo.append((dl, seq[0], kind, x)); fo.sort()
    add(1, 'v', f"v_add_u32 v{vT1}, 65536, v{vW}")
    def put(item):
        _, _, kind, x = item
        if kind == 'v': a(x)
        elif kind == 'l': lg.issue(x[0], x[1])
        elif kind == 'vm': vm.issue(x[0], x[1])
    for n in range(36):
        kt, j = n >> 2, n & 3
        ab = A_BUF[kt % 3]
        tags = [('A', kt)] if j == 0 else []
        if n in slot1 and n > 3 and n != 8:
            assert not any(it[2] == 'l' and it[3][0][:2] == ('W', n) for it in fo), n
            tags += [('W', n, 0), ('W', n, 1)]
        lg.wait(*tags)
        m = 'q' if j < 2 else 'k'
        wt = vt(slot1[n]) if n in slot1 else rt((m, kt), j & 1)
        a(smf((ACCQ if j < 2 else ACCK) + 4 * (j & 1), ab, wt))
        if n in refill:
            un, ch, tt = refill[n]
            for i_, o in enumerate(lds_tile(ch, tt, slot1[un])): add(un - 8 + i_, 'l', (('W', un, i_), o))
        if j == 3 and kt + 3 < 18: add(0, 'l', (('A', kt + 3), aread_txt(aseq[kt + 3], kt + 3)))
        if n == 3:
            add(9, 'vm', ('KX', f"buffer_load_dwordx4 v[{KX}:{KX+3}], v{vL16}, s[{SRD_KV}:{SRD_KV+3}], s{sKXS} offen sc1"))
            add(10, 'vm', ('KX', f"buffer_load_dwordx4 v[{KX+4}:{KX+7}], v{vL16}, s[{SRD_KV}:{SRD_KV+3}], s{sKXS} offen offset:1024 sc1"))
            add(11, 'vm', ('VX', f"buffer_load_dwordx4 v[{VX}:{VX+3}], v{vL16}, s[{SRD_KV}:{SRD_KV+3}], s{sVXS} offen sc1"))
            add(12, 'vm', ('VX', f"buffer_load_dwordx4 v[{VX+4}:{VX+7}], v{vL16}, s[{SRD_KV}:{SRD_KV+3}], s{sVXS} offen offset:1024 sc1"))
            WL = a.label("CH_WARM")
            add(13, 'vm', ('WARM', f"""s_cmp_lt_u32 s{w}, 2
            s_cbranch_scc1 {WL}_s
            buffer_load_dword v{vRD}, v{vWA}, s[{SRD_KV}:{SRD_KV+3}], s{sWRM} offen sc1
            s_branch {WL}
            {WL}_s:
            buffer_store_dword v{vL16}, off, s[{SRD_FL}:{SRD_FL+3}], s{sSPARE}
            {WL}:"""))
        if n == 26:
            for r in range(ACCV, ACCV + 8, 2): add(34, 'v', f"v_mov_b64 v[{r}:{r+1}], 0")
        if fo: put(fo.pop(0))
        while fo and fo[0][0] < n: put(fo.pop(0))
    while fo: put(fo.pop(0))
    stamp(a, cfg, 'p1')
    vs = {'i': 0}
    deferred = []
    def flush_deferred():
        for t, o in deferred: lg.issue(t, o)
        del deferred[:]
    def V(n, defer=False):
        iss = (lambda t, o: deferred.append((t, o))) if defer else lg.issue
        for _ in range(n):
            i = vs['i']
            if i >= 18: return
            kt = KTV[i >> 1]; tt = i & 1; ai = 9 + (i >> 1)
            if tt == 0: lg.wait(('A', ai))
            a(smf(ACCV + 4 * tt, A_BUF[ai % 3], rt(('v', kt), tt)))
            if tt == 1 and ai + 3 < 18: iss(('A', ai + 3), aread_txt(aseq[ai + 3], ai + 3))
            vs['i'] += 1
    V(2)
    a(f"""
    v_cvt_pk_bf16_f32 v24, v24, v25
    v_cvt_pk_bf16_f32 v25, v26, v27
    v_cvt_pk_bf16_f32 v26, v28, v29
    v_cvt_pk_bf16_f32 v27, v30, v31
    v_mfma_f32_16x16x16_bf16 v[28:31], v[24:25], v[{vF}:{vF+1}], 0
    v_cvt_pk_bf16_f32 v32, v32, v33
    v_cvt_pk_bf16_f32 v33, v34, v35
    v_cvt_pk_bf16_f32 v34, v36, v37
    v_cvt_pk_bf16_f32 v35, v38, v39
    v_mfma_f32_16x16x16_bf16 v[36:39], v[26:27], v[{vF}:{vF+1}], 0
    v_mfma_f32_16x16x16_bf16 v[48:51], v[32:33], v[{vF}:{vF+1}], 0
    v_mfma_f32_16x16x16_bf16 v[52:55], v[34:35], v[{vF}:{vF+1}], 0
    """)
    V(2)
    a(f"""
    v_cvt_pk_bf16_f32 v24, v28, v29
    v_cvt_pk_bf16_f32 v25, v30, v31
    v_cvt_pk_bf16_f32 v26, v36, v37
    v_cvt_pk_bf16_f32 v27, v38, v39
    """)
    vm.wait('KX')
    a(f"""
    v_mfma_f32_16x16x32_bf16 v[28:31], v[{KX}:{KX+3}], v[24:27], 0
    v_cvt_pk_bf16_f32 v32, v48, v49
    v_cvt_pk_bf16_f32 v33, v50, v51
    v_mfma_f32_16x16x32_bf16 v[36:39], v[{KX+4}:{KX+7}], v[24:27], 0
    v_cvt_pk_bf16_f32 v34, v52, v53
    v_cvt_pk_bf16_f32 v35, v54, v55
    """)
    a("v_mfma_f32_16x16x32_bf16 v[64:67], v[32:35], v[24:27], 0")
    vm.issue('KM', f"buffer_store_dwordx4 v[32:35], v{vL16}, s[{SRD_KM}:{SRD_KM+3}], s{sKMS} offen {kmfl}")
    V(2, defer=True)
    lg.issue('SW', f"ds_write2_b64 v{vSW}, v[28:29], v[30:31] offset0:0 offset1:4")
    lg.issue('SW', f"ds_write2_b64 v{vSW}, v[36:37], v[38:39] offset0:1 offset1:5")
    lg.issue('SW', f"ds_write2_b32 v{vSWm}, v64, v65 offset0:0 offset1:2")
    flush_deferred()
    for tt in range(2):
        for j, o in enumerate(lds_tile(('o', 1), tt, (S1, S0)[tt])): lg.issue(('W', f"o1{'ab'[tt]}", j), o)
    V(2)
    lg.wait('SW')
    a("s_barrier")
    stamp(a, cfg, 'b1')
    for wp in range(4):
        lg.issue('SR', f"ds_read_b128 v[{24+4*wp}:{27+4*wp}], v{vL16} offset:{L_S + wp*1024}")
    lg.issue('SR', f"ds_read2st64_b32 v[64:65], v{vL4b} offset0:0 offset1:1")
    lg.issue('SR', f"ds_read2st64_b32 v[66:67], v{vL4b} offset0:2 offset1:3")
    V(4)
    lg.wait('SR')
    FB = a.label("CH_FB")
    a(f"""
    v_pk_add_f32 v[24:25], v[24:25], v[28:29]
    v_pk_add_f32 v[26:27], v[26:27], v[30:31]
    v_pk_add_f32 v[32:33], v[32:33], v[36:37]
    v_pk_add_f32 v[34:35], v[34:35], v[38:39]
    v_pk_add_f32 v[64:65], v[64:65], v[66:67]
    v_pk_add_f32 v[24:25], v[24:25], v[32:33]
    v_pk_add_f32 v[26:27], v[26:27], v[34:35]
    v_add_f32 v64, v64, v65
    v_max3_f32 v{vT0}, |v24|, |v25|, |v26|
    v_exp_f32 v24, v24
    v_max3_f32 v{vT0}, v{vT0}, |v27|, |v64|
    v_exp_f32 v25, v25
    v_cmp_lt_f32 vcc, {cfg.get('smthr', 0x42700000):#x}, v{vT0}
    v_exp_f32 v26, v26
    v_exp_f32 v27, v27
    v_exp_f32 v64, v64
    s_cbranch_vccnz {FB}
    v_cvt_pk_bf16_f32 v28, v24, v25
    v_cvt_pk_bf16_f32 v30, v26, v27
    v_mov_b32_dpp v65, v64 {DPPX}
    v_mov_b32_dpp v29, v28 {DPPX}
    v_mov_b32_dpp v31, v30 {DPPX}
    v_cvt_pk_bf16_f32 v66, v64, v65
    v_cvt_pk_bf16_f32 v67, v64, v65
    {FB}_join:
    """)
    stamp(a, cfg, 'sm')
    vm.wait('VX')
    a(f"""
    v_mfma_f32_16x16x32_bf16 v[32:35], v[{VX}:{VX+3}], v[28:31], 0
    v_mfma_f32_16x16x32_bf16 v[36:39], v[{VX+4}:{VX+7}], v[28:31], 0
    v_dot2_f32_bf16 v68, v28, s{sONE}, v64
    v_dot2_f32_bf16 v68, v30, s{sONE}, v68
    v_add_u32 v{vT0}, 131072, v{vW}
    """)
    V(2)
    a(f"v_add_f32_dpp v68, v68, v68 {DPPX}")
    for j, o in enumerate(lds_tile(('o', 3), 0, VX)): lg.issue(('W', 'o3a', j), o)
    a("v_mov_b32 v69, v68")
    for j, o in enumerate(lds_tile(('o', 3), 1, 24)): lg.issue(('W', 'o3b', j), o)
    a("v_permlane16_swap_b32 v68, v69")
    a("v_add_f32 v68, v68, v69")
    V(1)
    a("v_mov_b32 v69, v68")
    V(1)
    a("v_permlane32_swap_b32 v68, v69")
    a("v_add_f32 v68, v68, v69")
    V(18)
    a("v_rcp_f32 v68, v68")
    a(f"""
    v_cvt_pk_bf16_f32 v40, v40, v41
    v_cvt_pk_bf16_f32 v41, v42, v43
    v_cvt_pk_bf16_f32 v42, v44, v45
    v_cvt_pk_bf16_f32 v43, v46, v47
    v_lshrrev_b32 v{vT1}, 1, v{vL16}
    v_mfma_f32_16x16x16_bf16 v[32:35], v[40:41], v[66:67], v[32:35]
    v_mfma_f32_16x16x16_bf16 v[36:39], v[42:43], v[66:67], v[36:39]
    """)
    vm.issue('VM', f"buffer_store_dwordx4 v[40:43], v{vL16}, s[{SRD_KM}:{SRD_KM+3}], s{sVMS} offen {kmfl}")
    a(f"""
    v_mov_b64 v[20:21], 0
    v_mov_b64 v[22:23], 0
    v_mov_b64 v[44:45], 0
    v_mov_b64 v[46:47], 0
    v_add_u32 v{vT0}, s{sOW}, v{vT1}
    s_mov_b32 vcc_lo, 0x33333333
    s_mov_b32 vcc_hi, 0x33333333
    v_pk_mul_f32 v[32:33], v[32:33], v[68:69] op_sel_hi:[1,0]
    v_pk_mul_f32 v[34:35], v[34:35], v[68:69] op_sel_hi:[1,0]
    v_pk_mul_f32 v[36:37], v[36:37], v[68:69] op_sel_hi:[1,0]
    v_pk_mul_f32 v[38:39], v[38:39], v[68:69] op_sel_hi:[1,0]
    v_cvt_pk_bf16_f32 v32, v32, v33
    v_cvt_pk_bf16_f32 v33, v34, v35
    v_cvt_pk_bf16_f32 v34, v36, v37
    v_cvt_pk_bf16_f32 v35, v38, v39
    v_cndmask_b32_dpp v32, v34, v32, vcc quad_perm:[0,1,0,1] row_mask:0xf bank_mask:0xf
    v_cndmask_b32_dpp v33, v35, v33, vcc quad_perm:[0,1,0,1] row_mask:0xf bank_mask:0xf
    """)
    stamp(a, cfg, 'pv')
    if not cfg.get('fulllast'):
        a(f"s_cmp_eq_u32 s{sSTEP}, {cfg.get('nsteps', 64) - 1}")
        a("s_cbranch_scc1 CH_LAST")
    lg.issue('OW', f"ds_write_b64 v{vT0}, v[32:33]")
    zero(a, [40, 41, 42, 43, 64, 65, 66, 67, 68, 69, 70, 71, 36, 37, 38, 39])
    lg.wait('OW')
    a("s_barrier")
    lg.issue('OA', f"ds_read2st64_b64 v[12:15], v{vT1} offset0:{L_O//512} offset1:{L_O//512 + 1}")
    lg.issue('OA', f"ds_read2st64_b64 v[16:19], v{vT1} offset0:{L_O//512 + 2} offset1:{L_O//512 + 3}")
    zero(a, [32, 33, 34, 35])
    lg.wait('OA', *[('W', n, j) for n in ('o1a', 'o1b', 'o3a', 'o3b') for j in range(2)])
    stamp(a, cfg, 'wo')
    slots = {1: (S1, S0), 3: (VX, 24)}
    free = [20, 44, 40, 64, 68, 36, 32]
    acc_of = {}
    def post(cb, dst, tag):
        acc = acc_of[cb]
        r = [f"v_add_f32 v{acc}, v{acc}, v{acc+2}", f"v_add_f32 v{acc+1}, v{acc+1}, v{acc+3}",
             f"v_cvt_pk_bf16_f32 v{dst}, v{acc}, v{acc+1}"]
        if tag: r.append(tagop(dst))
        return r
    work = []
    def drainw(n=1):
        for _ in range(n):
            if work:
                kind, x = work.pop(0)
                if kind == 'v': a(x)
                elif kind == 'vm': vm.issue('H1', x)
                elif kind == 'free': free.append(x); drainw()
    def q_pair(pi, ca, cb_):
        d = acc_of[ca]
        for t in post(ca, d, True): work.append(('v', t))
        for t in post(cb_, d + 1, False): work.append(('v', t))
        work.append(('vm', f"buffer_store_dwordx2 v[{d}:{d+1}], v{vT1}, s[{SRD_H1}:{SRD_H1+3}], s{sH1P[pi]} offen {st}"))
    order = [8, 0, 1, 2, 3, 4, 5, 6, 7]
    nd = cfg.get('wodrain', 2)
    for idx, cb in enumerate(order):
        while not free: drainw()
        acc = free.pop(0)
        acc_of[cb] = acc
        oc = ('o', cb)
        w0, w1 = (vt(slots[cb][0]), vt(slots[cb][1])) if cb in slots else (rt(oc, 0), rt(oc, 1))
        a(smf(acc, 12, w0)); drainw(nd)
        a(smf(acc, 16, w1)); drainw(nd)
        if idx == 2:
            for t in post(8, acc_of[8], True): work.append(('v', t))
            work.append(('vm', f"buffer_store_dword v{acc_of[8]}, v{vT1}, s[{SRD_H1}:{SRD_H1+3}], s{sH1S} offen {st}"))
            work.append(('v', f"v_mov_b64 v[{acc_of[8]}:{acc_of[8]+1}], 0")); work.append(('v', f"v_mov_b64 v[{acc_of[8]+2}:{acc_of[8]+3}], 0"))
            work.append(('free', acc_of[8]))
        if idx == 4:
            q_pair(0, 0, 1)
            work.append(('v', f"v_mov_b64 v[{acc_of[1]}:{acc_of[1]+1}], 0")); work.append(('v', f"v_mov_b64 v[{acc_of[1]+2}:{acc_of[1]+3}], 0"))
            work.append(('free', acc_of[1]))
        if idx == 6:
            q_pair(1, 2, 3)
        if idx == 8:
            q_pair(2, 4, 5)
    q_pair(3, 6, 7)
    while work: drainw()
    return dict(label=FB)

def emit_fallback(a, cfg, fb):
    DPPX = "quad_perm:[2,3,0,1] row_mask:0xf bank_mask:0xf"
    FB = fb['label']
    a(f"{FB}:")
    a(f"""
    s_waitcnt lgkmcnt(0)
    ds_read_b128 v[24:27], v{vL16} offset:{L_S}
    ds_read_b128 v[28:31], v{vL16} offset:{L_S + 1024}
    ds_read_b128 v[32:35], v{vL16} offset:{L_S + 2048}
    ds_read_b128 v[36:39], v{vL16} offset:{L_S + 3072}
    ds_read2st64_b32 v[64:65], v{vL4b} offset0:0 offset1:1
    ds_read2st64_b32 v[66:67], v{vL4b} offset0:2 offset1:3
    s_waitcnt lgkmcnt(0)
    """)
    for r in range(4): a(f"v_add_f32 v{24+r}, v{24+r}, v{28+r}")
    for r in range(4): a(f"v_add_f32 v{32+r}, v{32+r}, v{36+r}")
    a("v_add_f32 v64, v64, v65")
    a("v_add_f32 v66, v66, v67")
    for r in range(4): a(f"v_add_f32 v{24+r}, v{24+r}, v{32+r}")
    a(f"""
    v_add_f32 v64, v64, v66
    v_max3_f32 v36, v24, v25, v26
    v_max3_f32 v36, v36, v27, v64
    v_max_f32_dpp v36, v36, v36 {DPPX}
    v_mov_b32 v37, v36
    v_permlane16_swap_b32 v36, v37
    v_max_f32 v36, v36, v37
    v_mov_b32 v37, v36
    v_permlane32_swap_b32 v36, v37
    v_max_f32 v36, v36, v37
    v_sub_f32 v24, v24, v36
    v_sub_f32 v25, v25, v36
    v_sub_f32 v26, v26, v36
    v_sub_f32 v27, v27, v36
    v_sub_f32 v64, v64, v36
    v_exp_f32 v24, v24
    v_exp_f32 v25, v25
    v_exp_f32 v26, v26
    v_exp_f32 v27, v27
    v_exp_f32 v64, v64
    v_cvt_pk_bf16_f32 v28, v24, v25
    v_cvt_pk_bf16_f32 v30, v26, v27
    v_mov_b32_dpp v65, v64 {DPPX}
    v_mov_b32_dpp v29, v28 {DPPX}
    v_mov_b32_dpp v31, v30 {DPPX}
    v_cvt_pk_bf16_f32 v66, v64, v65
    v_cvt_pk_bf16_f32 v67, v64, v65
    s_nop 1
    s_branch {FB}_join
    """)

fbs = []
def emit_step(a, cfg, slow, par, sfx, nxt):
    w = S_WAVE
    st = "sc1" if slow else ""
    FAIL = "CH_FAIL"
    lg = Cnt(a, "lgkmcnt", 15); vm = Cnt(a, "vmcnt", 63)
    a(f"CH_STEP{sfx}:")
    stamp(a, cfg, 'top')
    tagop = (lambda r: f"v_or_b32 v{r}, 1, v{r}") if par else (lambda r: f"v_and_b32 v{r}, -2, v{r}")
    if cfg.get('nocompute'):
        for _ in range(cfg.get('delay', 0)): a("s_nop 15")
        a(f"v_lshrrev_b32 v{vT1}, 1, v{vL16}")
        a(f"v_mov_b32 v24, {par}")
        a(f"v_mov_b32 v25, {par}")
        for pi in range(4):
            a(f"buffer_store_dwordx2 v[24:25], v{vT1}, s[{SRD_H1}:{SRD_H1+3}], s{sH1P[pi]} offen {st}")
        a(f"buffer_store_dword v24, v{vT1}, s[{SRD_H1}:{SRD_H1+3}], s{sH1S} offen {st}")
    else:
        fbs.append(emit_compute(a, cfg, st, par, sfx, lg, vm, tagop))
    stamp(a, cfg, 'post')
    a(f"s_load_dword s{sFLV}, s[{S_FLP}:{S_FLP+1}], s{sFLN} glc")
    chk = (0xF0 | (~0xCC & 0xFF) | (~0xAA & 0xFF)) if par else (0xF0 | 0xCC | 0xAA)
    RL = a.label("CH_RED")
    if not cfg.get('nohops'):
        a(f"s_cmp_eq_u32 s{sRED}, 0")
        a(f"s_cbranch_scc1 {RL}_skip")
        a(f"v_and_b32 v64, 16, v{vL16}")
        a(f"v_lshlrev_b32_e64 v64, v64, s{sSELC}")
        for jj in range(4):
            a(f"v_cndmask_b32 v{60+jj}, 0, v64, s[{sSELM+2*jj}:{sSELM+2*jj+1}]")
        if cfg.get('rsleep'):
            a("; back-off before the first look at hand-off words that other workgroups are still writing (units stored last wait longest)")
            SL = a.label("CH_RS")
            a(f"s_cmp_eq_u32 s{sLATE}, 0")
            a(f"s_cbranch_scc1 {SL}")
            a(f"s_cmp_eq_u32 s{sLATE}, 1")
            a(f"s_cbranch_scc1 {SL}_1")
            a(f"s_sleep {cfg['rsleep']}")
            a(f"s_branch {SL}")
            a(f"{SL}_1:")
            a(f"s_sleep {max(cfg['rsleep'] - cfg.get('rs1', 1), 1)}")
            a(f"{SL}:")
        stamp(a, cfg, 'r_go')
        a(f"s_mov_b32 s{S_TO}, 0")
        LBS = [24, 28, 32, 36, 44, 48, 52, 56]
        for variant in range(2):
            R2 = f"{RL}_v{variant}"
            if variant == 0:
                a(f"s_cmp_eq_u32 s{sRED}, 2")
                a(f"s_cbranch_scc1 {RL}_v1")
            a(f"{R2}:")
            for cc in range(8):
                a(f"buffer_load_dwordx4 v[{LBS[cc]}:{LBS[cc]+3}], v{vRD}, s[{SRD_H1}:{SRD_H1+3}], s{sR[cc>>1]} offen offset:{(cc&1)*2048} sc1")
            a("v_mov_b32 v12, 0")
            for c2 in range(4):
                a(f"s_waitcnt vmcnt({6-2*c2})")
                for cc in (2 * c2, 2 * c2 + 1):
                    b = LBS[cc]
                    c_in = "0" if cc == 0 else "v[64:67]"
                    a(f"v_mfma_f32_16x16x32_bf16 v[64:67], v[{b}:{b+3}], v[60:63], {c_in}")
                    if variant == 0:
                        a(f"v_bitop3_b32 v12, v12, v{b}, v{b+2} bitop3:{chk:#x}")
                    else:
                        a(f"v_bitop3_b32 v12, v12, v{b}, v{b+1} bitop3:{chk:#x}")
                        a(f"v_bitop3_b32 v12, v12, v{b+2}, v{b+3} bitop3:{chk:#x}")
            a(f"""
            v_and_b32 v12, 1, v12
            v_cmp_ne_u32 vcc, 0, v12
            s_cbranch_vccz {RL}_ok
            s_add_u32 s{S_TO}, s{S_TO}, 1
            s_cmp_lt_u32 s{S_TO}, {TIMEOUT}
            s_cbranch_scc1 {R2}
            s_branch {FAIL}
            """)
        a(f"""
        {RL}_ok:
        {stamp_txt(cfg, 'r_ok')}
        {stamp_txt(cfg, 'cnt_r')}
        s_mov_b32 exec_lo, 0x00ff00ff
        s_mov_b32 exec_hi, 0x00ff00ff
        v_cvt_pk_bf16_f32 v60, v64, v65
        v_cvt_pk_bf16_f32 v61, v66, v67
        {tagop(60)}
        buffer_store_dwordx2 v[60:61], v{vH2}, s[{SRD_H2}:{SRD_H2+3}], s{sRH2} offen {st}
        s_mov_b64 exec, -1
        {RL}_skip:
        {stamp_txt(cfg, 'r_st')}
        """)
    else:
        a("s_waitcnt vmcnt(0)")
    a(f"v_add_u32 v{vT1}, 65536, v{vW}") if False else None
    preload_next(a)
    a(f"""
    s_add_u32 s{sKXS}, s{sKXS}, 262144
    s_add_u32 s{sVXS}, s{sVXS}, 262144
    s_add_u32 s{sKMS}, s{sKMS}, 262144
    s_add_u32 s{sVMS}, s{sVMS}, 262144
    s_add_u32 s{sWRM}, s{sWRM}, 262144
    s_min_u32 s{sWRM}, s{sWRM}, s{sWRMX}
    """)
    if not cfg.get('nohops'):
        NW = a.label("CH_NW")
        a(f"s_cmp_eq_u32 s{sRED}, 0")
        a(f"s_cbranch_scc0 {NW}")
        a("s_waitcnt vmcnt(0)")
        a(f"{NW}:")
        a("s_barrier")
        if cfg.get('gsleep'): a(f"s_sleep {cfg['gsleep']}")
        stamp(a, cfg, 'gat')
        GL = a.label("CH_GAT")
        SETS = [12, 24]
        def gissue(b):
            a(f"v_mov_b32 v{b+8}, {par}")
            a(f"v_mov_b32 v{b+10}, {par}")
            a(f"buffer_load_dwordx4 v[{b}:{b+3}], v{vL16}, s[{SRD_H2}:{SRD_H2+3}], s{sG[0]} offen sc1")
            a(f"buffer_load_dwordx4 v[{b+4}:{b+7}], v{vL16}, s[{SRD_H2}:{SRD_H2+3}], s{sG[1]} offen sc1")
            a("s_mov_b64 exec, 0xffff")
            a(f"buffer_load_dwordx4 v[{b+8}:{b+11}], v{vL16}, s[{SRD_H2}:{SRD_H2+3}], s{sG[2]} offen sc1")
            a("s_mov_b64 exec, -1")
        def gcheck(b, ok, n):
            a(f"s_waitcnt vmcnt({n})")
            a(f"v_bitop3_b32 v{vT0}, 0, v{b}, v{b+2} bitop3:{chk:#x}")
            a(f"v_bitop3_b32 v{vT0}, v{vT0}, v{b+4}, v{b+6} bitop3:{chk:#x}")
            a(f"v_bitop3_b32 v{vT0}, v{vT0}, v{b+8}, v{b+10} bitop3:{chk:#x}")
            a(f"v_and_b32 v{vT0}, 1, v{vT0}")
            a(f"v_cmp_ne_u32 vcc, 0, v{vT0}")
            a(f"s_cbranch_vccz {ok}")
        def gwrite(b):
            a(f"ds_write_b128 v{vT1}, v[{b}:{b+3}] offset:{L_MEM}")
            a(f"ds_write_b128 v{vT1}, v[{b+4}:{b+7}] offset:{L_MEM + 4096}")
            a(f"v_add_u32 v{vT1}, s{sG3}, v{vL16}")
            a("s_mov_b64 exec, 0xffff")
            a(f"ds_write_b128 v{vT1}, v[{b+8}:{b+11}] offset:{L_MEM + 8192}")
            a("s_mov_b64 exec, -1")
        a(f"s_mov_b32 s{S_TO}, 0")
        a(f"v_add_u32 v{vT1}, s{sG[0]}, v{vL16}")
        a(f"{GL}:")
        gissue(SETS[0])
        gcheck(SETS[0], f"{GL}_okA", 0)
        a(f"""
        s_add_u32 s{S_TO}, s{S_TO}, 1
        s_cmp_lt_u32 s{S_TO}, {TIMEOUT}
        s_cbranch_scc1 {GL}
        s_branch {FAIL}
        {GL}_okA:
        {stamp_txt(cfg, 'gatok')}
        {stamp_txt(cfg, 'cnt_g')}
        """)
        gwrite(SETS[0])
        NF = a.label("CH_NF")
        a(f"""
        s_cmp_eq_u32 s{w}, 3
        s_cbranch_scc0 {NF}
        s_mov_b64 exec, 1
        v_mov_b32 v{vT0}, 1
        buffer_store_dword v{vT0}, off, s[{SRD_FL}:{SRD_FL+3}], s{sFKM} sc1
        s_mov_b64 exec, -1
        {NF}:
        """)
    a("s_waitcnt lgkmcnt(0)")
    FK = a.label("CH_FK")
    a(f"""
    s_cmp_eq_u32 s{sFLV}, 1
    s_cbranch_scc1 {FK}
    s_cmp_eq_u32 s{w}, 3
    s_cbranch_scc0 {FK}
    s_cmp_ge_u32 s{sSTEP}, {cfg.get('nsteps', 64) - 2}
    s_cbranch_scc1 {FK}
    v_mov_b32 v{vT1}, s{sFLN}
    """)
    poll_dword_eq(a, SRD_FL, vT1, vT0, 1, FAIL, "CH_FKV" + sfx, sleep=1)
    a(f"{FK}:")
    a(f"s_add_u32 s{sFLN}, s{sFLN}, 4")
    a("s_barrier")
    for i in range(3): a(aread_txt(i, i))
    a(f"""
    s_add_u32 s{sFKM}, s{sFKM}, 4
    {stamp_txt(cfg, 'end')}
    {prog_stamp(a, cfg)}
    {dump_stamps(a, cfg)}
    s_add_u32 s{sSTEP}, s{sSTEP}, 1
    s_cmp_lt_u32 s{sSTEP}, {cfg.get('nsteps', 64)}
    s_cbranch_scc0 CH_DONE
    """)
    if nxt: a(f"s_branch CH_STEP{nxt}")

def prog_stamp(a, cfg):
    if not cfg.get('prog'): return ""
    L = a.label("PST")
    return f"""
    {"s_cmp_lt_u32 s"+str(sSTEP)+", 8" if cfg['prog'] == 2 else "s_and_b32 s4, s"+str(sSTEP)+", 7" + chr(10) + "s_cmp_eq_u32 s4, 7"}
    s_cbranch_scc0 {L}
    s_cmp_eq_u32 s{S_ROLE}, 0
    s_cbranch_scc0 {L}
    s_cmp_eq_u32 s{S_WAVE}, 0
    s_cbranch_scc0 {L}
    s_memrealtime s[4:5]
    s_memtime s[6:7]
    s_waitcnt lgkmcnt(0)
    s_mov_b64 exec, 1
    v_mov_b32 v0, s4
    s_lshr_b32 s5, s{sSTEP}, {0 if cfg['prog'] == 2 else 3}
    s_lshl_b32 s5, s5, 2
    s_add_u32 s5, s5, 192
    v_mov_b32 v11, s5
    buffer_store_dword v0, v11, s[{SRD_DBG}:{SRD_DBG+3}], 0 offen
    v_mov_b32 v0, s6
    buffer_store_dword v0, v11, s[{SRD_DBG}:{SRD_DBG+3}], 0 offen offset:32
    s_mov_b64 exec, -1
    {L}:
    """

def cstamp(a, cfg, i):
    if cfg.get('call') and i in (1, 3):
        L = a.label("CSA")
        a(f"""
        s_cmp_eq_u32 s{S_WAVE}, 0
        s_cbranch_scc0 {L}
        s_memrealtime s[4:5]
        s_waitcnt lgkmcnt(0)
        s_lshl_b32 s5, s{S_ROLE}, 3
        s_add_u32 s5, s5, {FL_DBG + 4*(i>>1)}
        s_mov_b64 exec, 1
        v_mov_b32 v0, s4
        buffer_store_dword v0, off, s[{SRD_FL}:{SRD_FL+3}], s5
        s_mov_b64 exec, -1
        {L}:
        """)
    if not cfg.get('ctime'): return
    L = a.label("CST")
    a(f"""
    s_cmp_eq_u32 s{S_ROLE}, 0
    s_cbranch_scc0 {L}
    s_cmp_eq_u32 s{S_WAVE}, 0
    s_cbranch_scc0 {L}
    s_memrealtime s[4:5]
    s_waitcnt lgkmcnt(0)
    s_mov_b64 exec, 1
    v_mov_b32 v0, s4
    v_mov_b32 v11, {DBG_STAMP + 32 + 4*i}
    buffer_store_dword v0, v11, s[{SRD_DBG}:{SRD_DBG+3}], 0 offen
    s_mov_b64 exec, -1
    v_mbcnt_lo_u32_b32 v0, -1, 0
    v_mbcnt_hi_u32_b32 v0, -1, v0
    {L}:
    """)

def emit_chain(a, cfg):
    a("ROLE_CHAIN:")
    cstamp(a, cfg, 0)
    emit_chain_setup(a, cfg)
    emit_chain_weights(a, cfg)
    emit_chain_consts(a, cfg)
    cstamp(a, cfg, 1)
    a(f"v_mov_b32 v{vT1}, {DBG_CINIT}")
    poll_dword_eq(a, SRD_DBG, vT1, vT0, 32, "CH_FAIL", "CH_CI")
    a(f"""
    v_mov_b32 v{vT1}, {DBG_SLOW}
    buffer_load_dword v{vT0}, v{vT1}, s[{SRD_DBG}:{SRD_DBG+3}], 0 offen sc1
    s_waitcnt vmcnt(0)
    v_readfirstlane_b32 s{sSLOW}, v{vT0}
    s_mov_b32 s{sSTEP}, 0
    s_lshl_b32 s{sFLN}, s{sH}, 8
    s_add_u32 s{sFLN}, s{sFLN}, {FL_KV}
    v_mov_b32 v{vT1}, s{sFLN}
    """)
    poll_dword_eq(a, SRD_FL, vT1, vT0, 1, "CH_FAIL", "CH_F0", sleep=1)
    a(f"s_add_u32 s{sFLN}, s{sFLN}, 4")
    a(f"v_mov_b32 v{vT1}, s{sFLN}")
    poll_dword_eq(a, SRD_FL, vT1, vT0, 1, "CH_FAIL", "CH_F1", sleep=1)
    a(f"s_add_u32 s{sFLN}, s{sFLN}, 4")
    preload_next(a)
    a("s_waitcnt lgkmcnt(0)")
    a("s_barrier")
    for i in range(3): a(aread_txt(i, i))
    cstamp(a, cfg, 2)
    if cfg.get('timing'):
        a("s_memtime s[4:5]\ns_waitcnt lgkmcnt(0)")
        a("s_mov_b32 s101, s4")
    if cfg.get('force_slow'):
        a(f"s_mov_b32 s{sSLOW}, 1")
    a(f"s_cmp_eq_u32 s{sSLOW}, 0")
    a("s_cbranch_scc0 CH_STEP_S1")
    emit_step(a, cfg, False, 1, "_F1", None)
    emit_step(a, cfg, False, 0, "_F0", "_F1")
    emit_step(a, cfg, True, 1, "_S1", None)
    emit_step(a, cfg, True, 0, "_S0", "_S1")
    for fb in fbs: emit_fallback(a, cfg, fb)
    del fbs[:]
    a("CH_FAIL:")
    a(f"""
    s_mov_b64 exec, 1
    v_mov_b32 v1, 0xdead
    v_mov_b32 v2, {DBG_FAIL}
    buffer_store_dword v1, v2, s[{SRD_DBG}:{SRD_DBG+3}], 0 offen
    s_waitcnt vmcnt(0)
    s_branch END
    """)
    a("CH_LAST:")
    a(f"""
    s_waitcnt vmcnt(0)
    s_barrier
    s_cmp_eq_u32 s{S_WAVE}, 3
    s_cbranch_scc0 CH_DONE
    s_mov_b64 exec, 1
    v_mov_b32 v{vT0}, 1
    buffer_store_dword v{vT0}, off, s[{SRD_FL}:{SRD_FL+3}], s{sFKM} sc1
    s_mov_b64 exec, -1
    """)
    a("CH_DONE:")
    cstamp(a, cfg, 3)
    if cfg.get('timing'):
        a(f"""
        s_memtime s[36:37]
        s_waitcnt lgkmcnt(0)
        s_sub_u32 s36, s36, s101
        s_cmp_eq_u32 s{sH}, {cfg.get('stamp_h', 0)}
        s_cbranch_scc0 END
        s_mov_b64 exec, 1
        v_mov_b32 v1, s36
        v_mov_b32 v2, {DBG_TIME}
        buffer_store_dword v1, v2, s[{SRD_DBG}:{SRD_DBG+3}], 0 offen
        s_waitcnt vmcnt(0)
        """)
    a("s_branch END")
```

```python
from layout import *
from common import *
from asmlib import Cnt
import struct

def f32bits(x): return struct.unpack("<I", struct.pack("<f", x))[0]
CS = 128 ** -0.5 * 1.4426950408889634

sT, sT2, sT3, sT4 = 32, 33, 34, 35
SRD_A, SRD_B, SRD_C, SRD_D, SRD_FL = 8, 12, 16, 20, 24
sWK = S_ROLE
WFAIL = "W_FAIL"

def wstamp(a, cfg, i):
    if 'wtime' not in cfg: return
    L = a.label("WST")
    a(f"""
    s_cmp_eq_u32 s{sWK}, {cfg['wtime']}
    s_cbranch_scc0 {L}
    s_cmp_eq_u32 s{S_WAVE}, 0
    s_cbranch_scc0 {L}
    s_memrealtime s[4:5]
    s_waitcnt lgkmcnt(0)
    s_mov_b64 exec, 1
    v_mov_b32 v250, s4
    v_mov_b32 v251, {DBG_STAMP + 4*i}
    buffer_store_dword v250, v251, s[{SRD_DBG}:{SRD_DBG+3}], 0 offen
    s_mov_b64 exec, -1
    {L}:
    """)

def wall(a, cfg, i):
    if not cfg.get('call'): return
    L = a.label("WSA")
    srd(a, 52, S_WS, WS_FLAGS + 0x8000, 0x4000)
    a(f"""
    s_cmp_eq_u32 s{S_WAVE}, 0
    s_cbranch_scc0 {L}
    s_memrealtime s[4:5]
    s_waitcnt lgkmcnt(0)
    s_lshl_b32 s5, s{sWK}, 5
    s_add_u32 s5, s5, {4*i}
    s_mov_b64 exec, 1
    v_mov_b32 v250, s4
    buffer_store_dword v250, off, s[52:55], s5
    s_mov_b64 exec, -1
    {L}:
    """)

def wall2(a, cfg, i):
    if not cfg.get('call'): return
    L = a.label("WSB")
    srd(a, 4, S_WS, WS_FLAGS + 0x8000, 0x4000)
    a(f"""
    s_cmp_eq_u32 s{S_WAVE}, 0
    s_cbranch_scc0 {L}
    s_memrealtime s[0:1]
    s_waitcnt lgkmcnt(0)
    s_lshl_b32 s1, s{sWK}, 5
    s_add_u32 s1, s1, {4*i}
    s_mov_b64 exec, 1
    v_mov_b32 v9, s0
    buffer_store_dword v9, off, s[4:7], s1
    s_mov_b64 exec, -1
    {L}:
    """)

def dpp_sum8(a, v, t):
    a(f"v_add_f32_dpp v{v}, v{v}, v{v} quad_perm:[1,0,3,2] row_mask:0xf bank_mask:0xf")
    a(f"v_add_f32_dpp v{v}, v{v}, v{v} quad_perm:[2,3,0,1] row_mask:0xf bank_mask:0xf")
    a(f"v_add_f32_dpp v{v}, v{v}, v{v} row_half_mirror row_mask:0xf bank_mask:0xf")

def emit_ln(a, cfg):
    w = S_WAVE
    a(f"s_cmp_lt_u32 s{sWK}, 64")
    a("s_cbranch_scc0 W_LN_DONE")
    srd(a, SRD_A, S_X, 0, XN_SIZE)
    srd(a, SRD_B, S_WS, WS_XN, XN_SIZE)
    srd(a, SRD_C, S_WS, WS_HB, XN_SIZE)
    P = 16
    F = 64
    a(f"""
    v_lshrrev_b32 v1, 3, v0
    v_mul_u32_u24 v1, 1152, v1
    v_and_b32 v2, 7, v0
    v_lshl_add_u32 v1, v2, 4, v1
    s_lshl_b32 s{sT}, s{sWK}, 2
    s_add_u32 s{sT}, s{sT}, s{w}
    s_mul_i32 s{sT}, s{sT}, {8*1152}
    """)
    for i in range(9):
        a(f"buffer_load_dwordx4 v[{P+4*i}:{P+4*i+3}], v1, s[{SRD_A}:{SRD_A+3}], s{sT} offen offset:{128*i}")
    a("s_waitcnt vmcnt(0)")
    for rep in range(2):
        for i in range(36):
            a(f"v_lshlrev_b32 v{F+2*i}, 16, v{P+i}")
            a(f"v_and_b32 v{F+2*i+1}, 0xffff0000, v{P+i}")
        a(f"v_add_f32 v4, v{F}, v{F+1}")
        a(f"v_add_f32 v5, v{F+2}, v{F+3}")
        for i in range(4, 72, 2):
            a(f"v_add_f32 v4, v4, v{F+i}")
            a(f"v_add_f32 v5, v5, v{F+i+1}")
        a("v_add_f32 v4, v4, v5")
        dpp_sum8(a, 4, 5)
        a(f"v_mul_f32 v4, {f32bits(1.0/576):#x}, v4")
        for i in range(72):
            a(f"v_sub_f32 v{F+i}, v{F+i}, v4")
        a(f"v_mul_f32 v5, v{F}, v{F}")
        a(f"v_mul_f32 v6, v{F+1}, v{F+1}")
        for i in range(2, 72, 2):
            a(f"v_fmac_f32 v5, v{F+i}, v{F+i}")
            a(f"v_fmac_f32 v6, v{F+i+1}, v{F+i+1}")
        a("v_add_f32 v5, v5, v6")
        dpp_sum8(a, 5, 6)
        a(f"v_mov_b32 v6, {f32bits(1e-5):#x}")
        a(f"v_fmac_f32 v6, {f32bits(1.0/576):#x}, v5")
        a("v_rsq_f32 v6, v6")
        for i in range(36):
            a(f"v_mul_f32 v{F+2*i}, v{F+2*i}, v6")
            a(f"v_mul_f32 v{F+2*i+1}, v{F+2*i+1}, v6")
            a(f"v_cvt_pk_bf16_f32 v{P+i}, v{F+2*i}, v{F+2*i+1}")
        s_ = SRD_B if rep == 0 else SRD_C
        for i in range(9):
            a(f"buffer_store_dwordx4 v[{P+4*i}:{P+4*i+3}], v1, s[{s_}:{s_+3}], s{sT} offen offset:{128*i} sc1")
        if rep == 0: a("s_nop 1")
    a(f"""
    s_waitcnt vmcnt(0)
    s_barrier
    s_cmp_eq_u32 s{w}, 0
    s_cbranch_scc0 W_LN_DONE
    s_mov_b64 exec, 1
    v_mov_b32 v2, 1
    s_add_u32 s{sT}, s{sWK}, {DBG_LN}
    v_mov_b32 v3, s{sT}
    buffer_store_byte v2, v3, s[{SRD_DBG}:{SRD_DBG+3}], 0 offen sc1
    s_mov_b64 exec, -1
    """)
    a("W_LN_DONE:")

def poll_byte_flag(a, sidx, name):
    L = a.label(name)
    a(f"""
    s_and_b32 s{sT3}, s{sidx}, 3
    s_lshl_b32 s{sT3}, s{sT3}, 3
    s_and_b32 s{sT4}, s{sidx}, 0xfffffffc
    s_add_u32 s{sT4}, s{sT4}, {DBG_LN}
    v_mov_b32 v2, s{sT4}
    s_mov_b32 s{S_TO}, 0
    {L}:
    buffer_load_dword v3, v2, s[{SRD_DBG}:{SRD_DBG+3}], 0 offen sc1
    s_waitcnt vmcnt(0)
    v_readfirstlane_b32 s3, v3
    s_lshr_b32 s3, s3, s{sT3}
    s_and_b32 s3, s3, 0xff
    s_cmp_eq_u32 s3, 1
    s_cbranch_scc1 {L}_ok
    s_sleep 4
    s_add_u32 s{S_TO}, s{S_TO}, 1
    s_cmp_lt_u32 s{S_TO}, {TIMEOUT}
    s_cbranch_scc1 {L}
    s_branch {WFAIL}
    {L}_ok:
    """)

G1_XB = [0, 36864]
G1_STG = 0
G1_NSTG = 9

def emit_g1(a, cfg, mats, tag):
    w = S_WAVE
    nm = len(mats)
    sHd, sSeg, sXo = 36, 37, 38
    vDQ = [1, 2]; vTR = 3; vXD = [4, 5]; vXR = [6, 7, 8, 9]; vST = 10; vA = 11
    def wreg(mi, ks):
        i = mi * 36 + ks
        if i < 64: return ('a', 4 * i)
        return ('v', 64 + 4 * (i - 64))
    ACC = [[16 + 16 * mi] for mi in range(2)]
    XF = [48, 52, 56, 60]
    a(f"""
    s_mul_hi_u32 s{sHd}, s{sWK}, {(1 << 32) // 7 + 1}
    s_mul_i32 s{sSeg}, s{sHd}, 7
    s_sub_u32 s{sSeg}, s{sWK}, s{sSeg}
    v_lshrrev_b32 v12, 4, v0
    v_and_b32 v13, 15, v0
    v_lshlrev_b32 v14, 1, v12
    v_xor_b32 v14, v14, v13
    v_lshlrev_b32 v15, 13, v12
    v_lshl_add_u32 v{vDQ[0]}, v14, 4, v15
    v_xor_b32 v14, 8, v14
    v_lshl_add_u32 v{vDQ[1]}, v14, 4, v15
    v_lshrrev_b32 v14, 2, v13                 ; rho
    v_lshrrev_b32 v15, 1, v12                 ; g>>1
    v_lshl_or_b32 v16, v15, 3, v14
    v_lshl_or_b32 v17, v15, 2, v14
    v_and_b32 v18, 1, v12
    s_lshl_b32 s{sT}, s{w}, 1
    v_or_b32 v18, s{sT}, v18                  ; nt = 2w + (g&1)
    v_xor_b32 v18, v18, v17
    v_lshlrev_b32 v18, 5, v18
    v_lshl_add_u32 v18, v16, 8, v18
    v_and_b32 v19, 3, v0
    v_lshl_add_u32 v{vTR}, v19, 3, v18
    v_lshrrev_b32 v14, 3, v0
    v_mul_u32_u24 v15, 1152, v14
    v_lshrrev_b32 v14, 1, v14
    v_and_b32 v16, 7, v0
    v_xor_b32 v16, v16, v14
    v_lshl_add_u32 v{vXD[0]}, v16, 4, v15
    v_xor_b32 v16, 4, v16
    v_lshl_add_u32 v{vXD[1]}, v16, 4, v15
    v_and_b32 v14, 31, v0
    v_lshrrev_b32 v15, 5, v0
    v_bfe_u32 v16, v14, 1, 3
    v_lshlrev_b32 v14, 7, v14
    """)
    for k in range(4):
        a(f"v_or_b32 v17, {2*k}, v15")
        a(f"v_xor_b32 v17, v17, v16")
        a(f"v_lshl_add_u32 v{vXR[k]}, v17, 4, v14")
        a(f"v_add_u32 v{112+k}, {G1_XB[1]}, v{vXR[k]}")
    a(f"""
    v_bfe_u32 v14, v0, 4, 1
    v_lshlrev_b32 v14, 10, v14
    v_lshrrev_b32 v15, 5, v0
    v_lshl_add_u32 v14, v15, 8, v14
    v_and_b32 v15, 15, v0
    v_lshl_add_u32 v{vST}, v15, 4, v14
    """)
    wsz = DM * H * DH * 2
    chunks = [(mi, kt) for mi in range(nm) for kt in range(9)]
    for mi, (nme, sp, off, kind) in enumerate(mats):
        srd(a, SRD_A + 4 * mi, sp, 0, wsz)
    a(f"""
    s_lshl_b32 s{sT2}, s{sHd}, 8
    s_lshl_b32 s{sT}, s{w}, 17
    s_add_u32 s{sT2}, s{sT2}, s{sT}
    s_lshl_b32 s{sT3}, s{w}, 12
    s_add_u32 s{sT3}, s{sT3}, {G1_STG}
    """)
    def issue(ci):
        mi, kt = chunks[ci]; slot = ci % G1_NSTG
        for nl in range(4):
            a(f"s_add_u32 m0, s{sT3}, {slot*16384 + nl*1024}")
            a(f"s_add_u32 s{sT}, s{sT2}, {kt*524288 + nl*32768}")
            a(f"buffer_load_dwordx4 v{vDQ[nl>>1]}, s[{SRD_A+4*mi}:{SRD_A+4*mi+3}], s{sT} offen lds")
    a("s_barrier")
    npre = G1_NSTG
    for ci in range(min(npre, len(chunks))): issue(ci)
    for ci, (mi, kt) in enumerate(chunks):
        inflight = min(npre - 1 if ci == 0 else npre - 2, len(chunks) - 1 - ci)
        a(f"s_waitcnt vmcnt({4*inflight})")
        a("s_barrier")
        if ci >= 1 and ci + npre - 1 < len(chunks): issue(ci + npre - 1)
        a(f"v_add_u32 v{vA}, {G1_STG + (ci % G1_NSTG)*16384}, v{vTR}")
        for k4 in range(4):
            ks = 4 * kt + k4
            kind, rb = wreg(mi, ks)
            for p in range(2):
                a(f"ds_read_b64_tr_b16 {kind}[{rb+2*p}:{rb+2*p+1}], v{vA} offset:{(16*k4 + 4*p)*256}")
        a("s_waitcnt lgkmcnt(0)")
    a("s_barrier")
    if tag == "KV": wall(a, cfg, 1)
    srd(a, SRD_A, S_WS, WS_XN, XN_SIZE)
    for mi, (nme, sp, off, kind) in enumerate(mats):
        srd(a, SRD_C + 4 * mi, S_WS, off, QKV_SIZE)
    srd(a, SRD_FL, S_WS, WS_FLAGS, FLAGS_SIZE)
    flags = cfg.get('g1_flags', True) and tag == "KV"
    if flags:
        a(f"v_mov_b32 v12, {DBG_CINIT}")
        poll_dword_eq(a, SRD_DBG, 12, 13, 32, WFAIL, "W_CI", sleep=4)
    def xissue(buf, sseg):
        a(f"s_mul_i32 s{sXo}, s{sseg}, {32*1152}")
        a(f"s_mul_i32 s{sT}, s{w}, {8*1152}")
        a(f"s_add_u32 s{sXo}, s{sXo}, s{sT}")
        a(f"s_lshl_b32 s{sT2}, s{w}, 10")
        a(f"s_and_b32 s{sT3}, s{w}, 1")
        a(f"s_cmp_eq_u32 s{sT3}, 0")
        a(f"v_mov_b32 v12, v{vXD[1]}")
        a(f"s_cselect_b64 vcc, -1, 0")
        a(f"v_cndmask_b32 v12, v12, v{vXD[0]}, vcc")
        for cb in range(9):
            a(f"s_add_u32 m0, s{sT2}, {G1_XB[buf] + cb*4096 - cb*128}")
            a(f"buffer_load_dwordx4 v12, s[{SRD_A}:{SRD_A+3}], s{sXo} offen offset:{cb*128} sc1 lds")
    LP = a.label("G1" + tag)
    sNext, sPrev, sPrev2 = 39, 40, 41
    nst = 2 * nm
    if tag == "KV":
        wait_all_ln(a)
    xissue(0, sSeg)
    a(f"s_mov_b32 s{sPrev}, -1")
    a(f"s_mov_b32 s{sPrev2}, -1")
    a(f"{LP}:")
    for buf in range(2):
        a(f"s_cmp_lt_i32 s{sPrev}, 0")
        a(f"s_cbranch_scc1 {LP}_w0{buf}")
        a(f"s_waitcnt vmcnt({nst})")
        a(f"s_branch {LP}_w1{buf}")
        a(f"{LP}_w0{buf}:")
        a("s_waitcnt vmcnt(0)")
        a(f"{LP}_w1{buf}:")
        a("s_barrier")
        a(f"s_add_u32 s{sNext}, s{sSeg}, 7")
        a(f"s_cmp_lt_u32 s{sNext}, 64")
        a(f"s_cbranch_scc0 {LP}_go{buf}")
        xissue(1 - buf, sNext)
        a(f"{LP}_go{buf}:")
        if flags:
            a(f"""
            s_cmp_lt_i32 s{sPrev2}, 0
            s_cbranch_scc1 {LP}_nf{buf}
            s_cmp_eq_u32 s{w}, 0
            s_cbranch_scc0 {LP}_nf{buf}
            s_lshl_b32 s{sT}, s{sHd}, 8
            s_lshl_b32 s{sT2}, s{sPrev2}, 2
            s_add_u32 s{sT}, s{sT}, s{sT2}
            s_mov_b64 exec, 1
            v_mov_b32 v12, 1
            v_mov_b32 v13, 0
            buffer_store_dword v12, v13, s[{SRD_FL}:{SRD_FL+3}], s{sT} offen offset:{FL_KV} sc1
            s_mov_b64 exec, -1
            {LP}_nf{buf}:
            """)
        lg = Cnt(a, "lgkmcnt", 15)
        def xread(ks):
            va = vXR[ks & 3] if buf == 0 else 112 + (ks & 3)
            lg.issue(ks, f"ds_read_b128 v[{XF[ks%4]}:{XF[ks%4]+3}], v{va} offset:{(ks>>2)*4096}")
        for ks in range(3): xread(ks)
        for ks in range(36):
            if ks + 3 < 36: xread(ks + 3)
            lg.wait(ks)
            xf = f"v[{XF[ks%4]}:{XF[ks%4]+3}]"
            for mi, (nme, sp, off, kind) in enumerate(mats):
                k_, rb = wreg(mi, ks)
                wf = f"{k_}[{rb}:{rb+3}]"
                acc = f"v[{ACC[mi][0]}:{ACC[mi][0]+15}]"
                cin = "0" if ks == 0 else acc
                if kind == 'V': a(f"v_mfma_f32_32x32x16_bf16 {acc}, {xf}, {wf}, {cin}")
                else: a(f"v_mfma_f32_32x32x16_bf16 {acc}, {wf}, {xf}, {cin}")
        a(f"s_lshl_b32 s{sT}, s{sSeg}, 18")
        a(f"s_lshl_b32 s{sT2}, s{sHd}, 13")
        a(f"s_add_u32 s{sT}, s{sT}, s{sT2}")
        a(f"s_lshl_b32 s{sT2}, s{w}, 11")
        a(f"s_add_u32 s{sT}, s{sT}, s{sT2}")
        for mi, (nme, sp, off, kind) in enumerate(mats):
            b = ACC[mi][0]
            if nme == 'q':
                a(f"s_mov_b32 s{sT2}, {f32bits(CS):#x}")
                for r in range(16): a(f"v_mul_f32 v{b+r}, s{sT2}, v{b+r}")
            o = 96 + 8 * mi
            a(f"v_cvt_pk_bf16_f32 v{o}, v{b}, v{b+1}")
            a(f"v_cvt_pk_bf16_f32 v{o+1}, v{b+2}, v{b+3}")
            a(f"v_cvt_pk_bf16_f32 v{o+2}, v{b+8}, v{b+9}")
            a(f"v_cvt_pk_bf16_f32 v{o+3}, v{b+10}, v{b+11}")
            a(f"v_cvt_pk_bf16_f32 v{o+4}, v{b+4}, v{b+5}")
            a(f"v_cvt_pk_bf16_f32 v{o+5}, v{b+6}, v{b+7}")
            a(f"v_cvt_pk_bf16_f32 v{o+6}, v{b+12}, v{b+13}")
            a(f"v_cvt_pk_bf16_f32 v{o+7}, v{b+14}, v{b+15}")
            sr = SRD_C + 4 * mi
            a(f"buffer_store_dwordx4 v[{o}:{o+3}], v{vST}, s[{sr}:{sr+3}], s{sT} offen sc1")
            a(f"buffer_store_dwordx4 v[{o+4}:{o+7}], v{vST}, s[{sr}:{sr+3}], s{sT} offen offset:512 sc1")
        a(f"s_mov_b32 s{sPrev2}, s{sPrev}")
        a(f"s_mov_b32 s{sPrev}, s{sSeg}")
        a(f"s_mov_b32 s{sSeg}, s{sNext}")
        a(f"s_cmp_lt_u32 s{sSeg}, 64")
        a(f"s_cbranch_scc0 {LP}_end")
    a(f"s_branch {LP}")
    a(f"{LP}_end:")
    a("s_waitcnt vmcnt(0)")
    a("s_barrier")
    if flags:
        a(f"""
        s_cmp_eq_u32 s{w}, 0
        s_cbranch_scc0 {LP}_nfe
        s_mov_b64 exec, 1
        v_mov_b32 v12, 1
        v_mov_b32 v13, 0
        s_lshl_b32 s{sT}, s{sHd}, 8
        s_lshl_b32 s{sT2}, s{sPrev}, 2
        s_add_u32 s{sT}, s{sT}, s{sT2}
        buffer_store_dword v12, v13, s[{SRD_FL}:{SRD_FL+3}], s{sT} offen offset:{FL_KV} sc1
        s_cmp_lt_i32 s{sPrev2}, 0
        s_cbranch_scc1 {LP}_nf2
        s_lshl_b32 s{sT}, s{sHd}, 8
        s_lshl_b32 s{sT2}, s{sPrev2}, 2
        s_add_u32 s{sT}, s{sT}, s{sT2}
        buffer_store_dword v12, v13, s[{SRD_FL}:{SRD_FL+3}], s{sT} offen offset:{FL_KV} sc1
        {LP}_nf2:
        s_mov_b64 exec, -1
        {LP}_nfe:
        """)

def wait_all_ln(a):
    L = a.label("LNW")
    a(f"""
    v_and_b32 v12, 15, v0
    v_lshlrev_b32 v12, 2, v12
    v_add_u32 v12, {DBG_LN}, v12
    s_mov_b32 s{S_TO}, 0
    {L}:
    buffer_load_dword v13, v12, s[{SRD_DBG}:{SRD_DBG+3}], 0 offen sc1
    s_waitcnt vmcnt(0)
    v_cmp_ne_u32 vcc, 0x01010101, v13
    s_cbranch_vccz {L}_ok
    s_sleep 2
    s_add_u32 s{S_TO}, s{S_TO}, 1
    s_cmp_lt_u32 s{S_TO}, {TIMEOUT}
    s_cbranch_scc1 {L}
    s_branch {WFAIL}
    {L}_ok:
    """)

GS_A, GS_B = 12288, 16384
GS = GS_A + GS_B
GNS = 4

def emit_gemm(a, cfg, which):
    w = S_WAVE
    g4 = which == 4
    ntask = 216 if g4 else 192
    strideB = 9216 if g4 else 4096
    nst = 32 if g4 else 36
    tag = f"G{which}"
    sM0, sN0, sK0, sAo, sBo, sIt = 36, 37, 38, 39, 40, 41
    vDA = [1, 2, 3]; vDB = 4; vRA = 5; vRB = 6; vCA = 7; vCB = 8
    ACC = [16, 32, 48]; FA = [[64, 68, 72], [80, 84, 88]]; FB = [76, 92]
    a(f"s_cmp_lt_u32 s{sWK}, {ntask}")
    a(f"s_cbranch_scc0 {tag}_DONE")
    if g4:
        srd(a, SRD_A, S_WS, WS_HB, XN_SIZE); srd(a, SRD_B, S_W1, 0, 2048 * 4608 * 2)
        srd(a, SRD_C, S_WS, WS_UT, UT_SIZE); srd(a, SRD_D, S_B1, 0, 4608 * 2)
        a(f"""
        s_mul_hi_u32 s{sN0}, s{sWK}, {(1 << 32) // 6 + 1}
        s_mul_i32 s{sT}, s{sN0}, 6
        s_sub_u32 s{sM0}, s{sWK}, s{sT}
        s_mov_b32 s{sK0}, 0
        """)
    else:
        srd(a, SRD_A, S_WS, WS_UT, UT_SIZE); srd(a, SRD_B, S_W2, 0, 4608 * 2048 * 2)
        srd(a, SRD_C, S_WS, WS_P5, P5_SIZE)
        a(f"""
        s_mul_hi_u32 s{sT2}, s{sWK}, {(1 << 32) // 6 + 1}
        s_mul_i32 s{sT}, s{sT2}, 6
        s_sub_u32 s{sM0}, s{sWK}, s{sT}
        s_and_b32 s{sN0}, s{sT2}, 15
        s_lshr_b32 s{sK0}, s{sT2}, 4
        s_mov_b32 s42, s{sK0}
        s_mul_i32 s{sK0}, s{sK0}, 2304
        """)
    a(f"""
    s_mul_i32 s{sM0}, s{sM0}, 96
    s_lshl_b32 s{sN0}, s{sN0}, 7
    ; A DMA offsets: gamma = 64 i + l -> row = gamma / 12, col = gamma % 12
    """)
    for i in range(3):
        a(f"""
        v_add_u32 v10, {64*i}, v0
        v_mul_u32_u24 v11, 43691, v10
        v_lshrrev_b32 v11, 19, v11
        v_mul_u32_u24 v12, 12, v11
        v_sub_u32 v12, v10, v12
        v_mul_u32_u24 v11, 1152, v11
        v_lshl_add_u32 v{vDA[i]}, v12, 4, v11
        """)
    a(f"""
    v_lshrrev_b32 v10, 4, v0                 ; g
    v_and_b32 v11, 15, v0
    v_lshlrev_b32 v12, 2, v10
    v_xor_b32 v12, v12, v11
    v_mul_u32_u24 v13, {strideB}, v10
    v_lshl_add_u32 v{vDB}, v12, 4, v13
    v_lshrrev_b32 v12, 2, v11                ; rho
    v_lshrrev_b32 v13, 1, v10                ; g>>1
    v_lshl_or_b32 v13, v13, 3, v12
    v_and_b32 v14, 1, v10                    ; g&1
    v_and_b32 v15, 3, v0                     ; c'
    v_mul_u32_u24 v16, 192, v13
    v_lshl_add_u32 v16, v14, 5, v16
    v_lshl_add_u32 v{vRA}, v15, 3, v16
    s_lshl_b32 s{sT}, s{w}, 2
    v_lshlrev_b32 v16, 1, v14
    v_or_b32 v16, s{sT}, v16                 ; 4w + 2(g&1)
    v_lshrrev_b32 v17, 1, v15
    v_or_b32 v16, v16, v17                   ; q16
    v_lshlrev_b32 v17, 2, v12
    v_xor_b32 v16, v16, v17
    v_lshlrev_b32 v16, 4, v16
    v_lshl_add_u32 v16, v13, 8, v16
    v_and_b32 v17, 1, v15
    v_lshl_add_u32 v16, v17, 3, v16
    v_add_u32 v{vRB}, {GS_A}, v16
    s_lshl_b32 s{sT}, s{w}, 4
    s_add_u32 s{sT}, s{sT}, s{sK0}
    s_mul_i32 s{sAo}, s{sT}, 1152
    s_lshl_b32 s{sT2}, s{sM0}, 1
    s_add_u32 s{sAo}, s{sAo}, s{sT2}          ; (k0 + 16w)*1152 + m0*2
    s_mul_i32 s{sBo}, s{sT}, {strideB}
    s_lshl_b32 s{sT2}, s{sN0}, 1
    s_add_u32 s{sBo}, s{sBo}, s{sT2}          ; (k0 + 16w)*strideB + n0*2
    s_mul_i32 s43, s{w}, 3072
    s_lshl_b32 s44, s{w}, 12
    s_add_u32 s44, s44, {GS_A}
    """)
    if g4:
        L = a.label("G4W")
        a(f"""
        v_and_b32 v10, 15, v0
        v_lshlrev_b32 v10, 2, v10
        v_add_u32 v10, {DBG_LN}, v10
        s_mov_b32 s{S_TO}, 0
        {L}:
        buffer_load_dword v11, v10, s[{SRD_DBG}:{SRD_DBG+3}], 0 offen sc1
        s_waitcnt vmcnt(0)
        v_cmp_ne_u32 vcc, 0x01010101, v11
        s_cbranch_vccz {L}_ok
        s_sleep 4
        s_add_u32 s{S_TO}, s{S_TO}, 1
        s_cmp_lt_u32 s{S_TO}, {TIMEOUT}
        s_cbranch_scc1 {L}
        s_branch {WFAIL}
        {L}_ok:
        """)
    def issue(slot):
        fl = "sc1"
        for i in range(3):
            a(f"s_add_u32 m0, s43, {slot*GS + i*1024}")
            a(f"buffer_load_dwordx4 v{vDA[i]}, s[{SRD_A}:{SRD_A+3}], s{sAo} offen {fl} lds")
        for i in range(4):
            a(f"s_add_u32 m0, s44, {slot*GS + i*1024}")
            if i: a(f"s_add_u32 s{sT}, s{sBo}, {4*i*strideB}")
            a(f"buffer_load_dwordx4 v{vDB}, s[{SRD_B}:{SRD_B+3}], s{sT if i else sBo} offen lds")
        a(f"s_add_u32 s{sAo}, s{sAo}, {64*1152}")
        a(f"s_add_u32 s{sBo}, s{sBo}, {64*strideB}")
    a("s_barrier")
    for s_ in range(GNS - 1): issue(s_)
    for acc in ACC:
        for r in range(0, 16, 2): a(f"v_mov_b64 v[{acc+r}:{acc+r+1}], 0")
    LP = a.label(tag + "L")
    a(f"s_mov_b32 s{sIt}, 0")
    a(f"{LP}:")
    for slot in range(GNS):
        a(f"s_add_u32 s{sT2}, s{sIt}, {slot + GNS - 1}")
        a(f"s_cmp_lt_u32 s{sT2}, {nst}")
        a(f"s_cbranch_scc0 {LP}_t{slot}")
        a(f"s_waitcnt vmcnt({7*(GNS-2)})")
        a("s_barrier")
        issue((slot + GNS - 1) % GNS)
        a(f"s_branch {LP}_c{slot}")
        a(f"{LP}_t{slot}:")
        a("s_waitcnt vmcnt(0)")
        a("s_barrier")
        a(f"{LP}_c{slot}:")
        a(f"v_add_u32 v{vCA}, {slot*GS}, v{vRA}")
        a(f"v_add_u32 v{vCB}, {slot*GS}, v{vRB}")
        lg = Cnt(a, "lgkmcnt", 15)
        def rd(ks):
            b = ks & 1
            for p in range(2):
                lg.issue(('B', ks), f"ds_read_b64_tr_b16 v[{FB[b]+2*p}:{FB[b]+2*p+1}], v{vCB} offset:{(16*ks + 4*p)*256}")
            for mt in range(3):
                for p in range(2):
                    lg.issue(('A', ks, mt), f"ds_read_b64_tr_b16 v[{FA[b][mt]+2*p}:{FA[b][mt]+2*p+1}], v{vCA} offset:{(16*ks + 4*p)*192 + mt*64}")
        rd(0)
        for ks in range(4):
            b = ks & 1
            for mt in range(3):
                if mt == 0 and ks + 1 < 4:
                    lg.wait(('B', ks), ('A', ks, 0))
                    rd(ks + 1)
                lg.wait(('B', ks), ('A', ks, mt))
                a(f"v_mfma_f32_32x32x16_bf16 v[{ACC[mt]}:{ACC[mt]+15}], v[{FA[b][mt]}:{FA[b][mt]+3}], v[{FB[b]}:{FB[b]+3}], v[{ACC[mt]}:{ACC[mt]+15}]")
    a(f"s_add_u32 s{sIt}, s{sIt}, {GNS}")
    a(f"s_cmp_lt_u32 s{sIt}, {nst}")
    a(f"s_cbranch_scc1 {LP}")
    if g4:
        a(f"""
        v_and_b32 v10, 31, v0
        s_lshl_b32 s{sT}, s{w}, 5
        s_add_u32 s{sT}, s{sT}, s{sN0}
        v_add_u32 v10, s{sT}, v10                 ; f
        v_lshlrev_b32 v11, 1, v10
        buffer_load_ushort v12, v11, s[{SRD_D}:{SRD_D+3}], 0 offen
        v_mul_u32_u24 v13, 1152, v10
        v_lshrrev_b32 v14, 5, v0
        v_lshl_add_u32 v13, v14, 4, v13
        s_lshl_b32 s{sT}, s{sM0}, 1
        s_mov_b32 s{sT2}, {f32bits(0.044715):#x}
        s_mov_b32 s{sT3}, {f32bits(-2.0*0.7978845608028654*1.4426950408889634):#x}
        s_waitcnt vmcnt(0)
        v_lshlrev_b32 v12, 16, v12
        """)
        for mt in range(3):
            b = ACC[mt]
            for r in range(16):
                x = b + r
                a(f"v_add_f32 v{x}, v{x}, v12")
                a(f"v_mul_f32 v64, v{x}, v{x}")
                a(f"v_fma_f32 v64, v64, s{sT2}, 1.0")
                a(f"v_mul_f32 v64, v64, v{x}")
                a(f"v_mul_f32 v64, s{sT3}, v64")
                a(f"v_exp_f32 v64, v64")
                a(f"v_add_f32 v64, 1.0, v64")
                a(f"v_rcp_f32 v64, v64")
                a(f"v_mul_f32 v{x}, v{x}, v64")
            for pr in range(2):
                o = 68 + 4 * pr
                q0, q1 = b + 8 * pr, b + 8 * pr + 4
                a(f"v_cvt_pk_bf16_f32 v{o}, v{q0}, v{q0+1}")
                a(f"v_cvt_pk_bf16_f32 v{o+1}, v{q0+2}, v{q0+3}")
                a(f"v_cvt_pk_bf16_f32 v{o+2}, v{q1}, v{q1+1}")
                a(f"v_cvt_pk_bf16_f32 v{o+3}, v{q1+2}, v{q1+3}")
                a(f"v_permlane32_swap_b32 v{o}, v{o+2}")
                a(f"v_permlane32_swap_b32 v{o+1}, v{o+3}")
                a(f"buffer_store_dwordx4 v[{o}:{o+3}], v13, s[{SRD_C}:{SRD_C+3}], s{sT} offen offset:{mt*64 + pr*32} sc1")
    else:
        a(f"""
        v_and_b32 v10, 31, v0
        s_lshl_b32 s{sT}, s{w}, 5
        s_add_u32 s{sT}, s{sT}, s{sN0}
        v_add_u32 v10, s{sT}, v10                 ; token
        v_mul_u32_u24 v13, 2304, v10
        v_lshrrev_b32 v14, 5, v0
        v_lshl_add_u32 v13, v14, 4, v13
        s_mul_i32 s{sT}, s42, {2048*576*4}
        s_lshl_b32 s{sT2}, s{sM0}, 2
        s_add_u32 s{sT}, s{sT}, s{sT2}
        """)
        for mt in range(3):
            for q in range(4):
                b = ACC[mt] + 4 * q
                a(f"buffer_store_dwordx4 v[{b}:{b+3}], v13, s[{SRD_C}:{SRD_C+3}], s{sT} offen offset:{mt*128 + q*32} sc1")
    a(f"{tag}_DONE:")
    cnt = DBG_UREADY if g4 else DBG_G5DONE
    a(f"""
    s_waitcnt vmcnt(0)
    s_barrier
    s_cmp_eq_u32 s{w}, 0
    s_cbranch_scc0 {tag}_ANN
    s_mov_b64 exec, 1
    v_mov_b32 v10, 1
    v_mov_b32 v11, {cnt}
    buffer_atomic_add v10, v11, s[{SRD_DBG}:{SRD_DBG+3}], 0 offen
    s_mov_b64 exec, -1
    {tag}_ANN:
    """)

def emit_g4(a, cfg): emit_gemm(a, cfg, 4)

def emit_g5(a, cfg):
    a(f"v_mov_b32 v10, {DBG_UREADY}")
    poll_dword_eq(a, SRD_DBG, 10, 11, 224, WFAIL, "G5W", sleep=8)
    emit_gemm(a, cfg, 5)

def emit_g23(a, cfg):
    w = S_WAVE
    sHP, sGR, sSeg, sPrev, sHH, sQT, sKo, sNx = 36, 37, 38, 39, 40, 41, 42, 43
    SM = [44, 46, 48, 50]
    SRD_O, SRD_QKV, SRD_KM2, SRD_P3, SRD_X, SRD_P5, SRD_OUT = 8, 12, 16, 20, 52, 56, 60
    vL16, vT = 1, [2, 3, 4, 5]
    Q, K, V, KM, VM = 16, 32, 64, 96, 112
    SMm, SX0, SX1, PX, PM, O = 128, 132, 136, 140, 144, 148
    ACC, BF = 128, [200, 204, 208, 212]
    L_OI = 0
    STG0 = 16384
    NS = 8
    def wfrag(nti, kap):
        i = nti * 8 + kap
        if i < 64: return ('a', 4 * i)
        return ('v', 224 + 4 * (i - 64))
    srd(a, SRD_O, S_WO, 0, DM * H * DH * 2)
    a(f"""
    s_mul_hi_u32 s{sHP}, s{sWK}, {(1 << 32) // 14 + 1}
    s_mul_i32 s{sGR}, s{sHP}, 14
    s_sub_u32 s{sGR}, s{sWK}, s{sGR}
    s_lshr_b32 s{sHH}, s{w}, 1
    s_and_b32 s{sQT}, s{w}, 1
    v_lshlrev_b32 v{vL16}, 4, v0
    v_lshrrev_b32 v10, 3, v0
    v_mul_u32_u24 v11, 1152, v10
    v_and_b32 v10, 7, v0
    s_lshl_b32 s{sT}, s{w}, 1
    s_and_b32 s{sT}, s{sT}, 3
    s_lshl_b32 s{sT}, s{sT}, 1
    v_xor_b32 v12, s{sT}, v10
    v_lshl_add_u32 v6, v12, 4, v11
    s_lshl_b32 s{sT}, s{w}, 1
    s_add_u32 s{sT}, s{sT}, 1
    s_and_b32 s{sT}, s{sT}, 3
    s_lshl_b32 s{sT}, s{sT}, 1
    v_xor_b32 v12, s{sT}, v10
    v_lshl_add_u32 v7, v12, 4, v11
    v_lshrrev_b32 v10, 4, v0
    v_bfe_u32 v11, v0, 2, 2
    v_lshl_or_b32 v10, v10, 2, v11
    v_lshlrev_b32 v10, 7, v10
    v_and_b32 v11, 3, v0
    v_lshl_add_u32 v10, v11, 3, v10
    """)
    for sw in range(4):
        a(f"s_xor_b32 s{sT}, s{w}, {sw}")
        a(f"s_lshl_b32 s{sT}, s{sT}, 5")
        a(f"v_add_u32 v{vT[sw]}, s{sT}, v10")
    chunks = [(hh, cb) for hh in range(2) for cb in range(9)]
    a(f"""
    s_lshl_b32 s{sT2}, s{sHP}, 8
    s_lshl_b32 s{sT}, s{w}, 5
    s_add_u32 s{sT2}, s{sT2}, s{sT}
    s_mul_i32 s{sT2}, s{sT2}, 1152              ; (256hp + 32w)*1152
    s_lshl_b32 s{sT3}, s{w}, 12
    s_add_u32 s{sT3}, s{sT3}, {STG0}
    """)
    def issue(ci):
        hh, cb = chunks[ci]; slot = ci % NS
        for nl in range(4):
            a(f"s_add_u32 m0, s{sT3}, {slot*16384 + nl*1024}")
            a(f"s_add_u32 s{sT}, s{sT2}, {hh*128*1152 + cb*128 + nl*8*1152}")
            a(f"buffer_load_dwordx4 v{6 + (nl>>1)}, s[{SRD_O}:{SRD_O+3}], s{sT} offen lds")
    a("s_barrier")
    for ci in range(NS): issue(ci)
    for ci, (hh, cb) in enumerate(chunks):
        inflight = min(NS - 1 if ci == 0 else NS - 2, len(chunks) - 1 - ci)
        a(f"s_waitcnt vmcnt({4*inflight})")
        a("s_barrier")
        if ci >= 1 and ci + NS - 1 < len(chunks): issue(ci + NS - 1)
        base = STG0 + (ci % NS) * 16384
        for sw in range(4): a(f"v_add_u32 v{8+sw}, {base}, v{vT[sw]}")
        for wp in range(4):
            kind, rb = wfrag(cb, 4 * hh + wp)
            for p in range(2):
                sw = (2 * wp + p) & 3
                a(f"ds_read_b64_tr_b16 {kind}[{rb+2*p}:{rb+2*p+1}], v{8+sw} offset:{(32*wp + 16*p)*128}")
        a("s_waitcnt lgkmcnt(0)")
    a("s_barrier")
    srd(a, SRD_QKV, S_WS, WS_KX, 3 * QKV_SIZE)
    srd(a, SRD_KM2, S_WS, WS_KM, KM_SIZE)
    srd(a, SRD_P3, S_WS, WS_P3, P3_SIZE)
    srd(a, SRD_FL, S_WS, WS_FLAGS, FLAGS_SIZE)
    srd(a, SRD_X, S_X, 0, XN_SIZE)
    srd(a, SRD_P5, S_WS, WS_P5, P5_SIZE)
    srd(a, SRD_OUT, S_OUT, 0, XN_SIZE)
    srd(a, SRD_O, S_B2, 0, 2048 * 2)
    a(f"""
    v_and_b32 v10, 15, v0
    v_lshrrev_b32 v11, 4, v0
    v_lshlrev_b32 v11, 2, v11
    """)
    for r in range(4):
        a(f"v_add_u32 v12, {r}, v11")
        a(f"v_cmp_le_u32 s[{SM[r]}:{SM[r]+1}], v12, v10")
    a(f"""
    s_lshl_b32 s{sKo}, s{sHP}, 1
    s_add_u32 s{sKo}, s{sKo}, s{sHH}
    s_lshl_b32 s{sKo}, s{sKo}, 13               ; head*8192
    """)
    def qkv_issue(sseg):
        a(f"s_lshl_b32 s{sT}, s{sseg}, 18")
        a(f"s_add_u32 s{sT}, s{sT}, s{sKo}")
        for wp in range(4):
            for t in range(2):
                o = wp * 2048 + t * 1024
                a(f"s_add_u32 s{sT2}, s{sT}, {o}")
                a(f"buffer_load_dwordx4 v[{K+4*(2*wp+t)}:{K+4*(2*wp+t)+3}], v{vL16}, s[{SRD_QKV}:{SRD_QKV+3}], s{sT2} offen sc1")
                a(f"s_add_u32 s{sT2}, s{sT2}, {QKV_SIZE}")
                a(f"buffer_load_dwordx4 v[{V+4*(2*wp+t)}:{V+4*(2*wp+t)+3}], v{vL16}, s[{SRD_QKV}:{SRD_QKV+3}], s{sT2} offen sc1")
        a(f"s_lshl_b32 s{sT3}, s{sQT}, 10")
        a(f"s_add_u32 s{sT}, s{sT}, s{sT3}")
        a(f"s_add_u32 s{sT}, s{sT}, {2*QKV_SIZE}")
        for wp in range(4):
            a(f"s_add_u32 s{sT2}, s{sT}, {wp*2048}")
            a(f"buffer_load_dwordx4 v[{Q+4*wp}:{Q+4*wp+3}], v{vL16}, s[{SRD_QKV}:{SRD_QKV+3}], s{sT2} offen sc1")

    def reduce_final(sseg, name):
        L = a.label(name)
        a(f"s_cmp_lt_u32 s{sHP}, 9")
        a(f"s_cbranch_scc0 {L}_skip")
        a(f"""
        v_and_b32 v10, 15, v0
        v_lshlrev_b32 v10, 2, v10
        s_lshl_b32 s{sT}, s{sseg}, 6
        s_add_u32 s{sT}, s{sT}, {FL_G3}
        s_mov_b32 s{S_TO}, 0
        {L}:
        buffer_load_dword v11, v10, s[{SRD_FL}:{SRD_FL+3}], s{sT} offen sc1
        s_waitcnt vmcnt(0)
        v_cmp_ne_u32 vcc, 1, v11
        s_cbranch_vccz {L}_ok
        s_sleep 1
        s_add_u32 s{S_TO}, s{S_TO}, 1
        s_cmp_lt_u32 s{S_TO}, {TIMEOUT}
        s_cbranch_scc1 {L}
        s_branch {WFAIL}
        {L}_ok:
        s_lshl_b32 s{sT}, s{sHP}, 2
        s_add_u32 s{sT}, s{sT}, s{w}                 ; chunk
        s_mul_i32 s{sT2}, s{sseg}, {16*36864}
        s_lshl_b32 s{sT3}, s{sT}, 10
        s_add_u32 s{sT2}, s{sT2}, s{sT3}
        """)
        R = 128
        for p in range(16):
            a(f"buffer_load_dwordx4 v[{R+4*p}:{R+4*p+3}], v{vL16}, s[{SRD_P3}:{SRD_P3+3}], s{sT2} offen sc1")
            if p < 15: a(f"s_add_u32 s{sT2}, s{sT2}, 36864")
        a(f"""
        s_mul_hi_u32 s{sT2}, s{sT}, {(1 << 32) // 9 + 1}
        s_mul_i32 s{sT3}, s{sT2}, 9
        s_sub_u32 s{sT3}, s{sT}, s{sT3}
        s_lshl_b32 s{sT3}, s{sT3}, 2
        s_add_u32 s{sT3}, s{sT3}, s{sT2}              ; nt
        s_lshl_b32 s{sT3}, s{sT3}, 4                  ; 16 nt
        v_lshrrev_b32 v10, 4, v0
        v_lshlrev_b32 v10, 2, v10
        v_add_u32 v10, s{sT3}, v10                    ; n0
        v_and_b32 v11, 15, v0
        s_lshl_b32 s{sT}, s{sseg}, 5
        v_add_u32 v11, s{sT}, v11
        v_mul_u32_u24 v12, 576, v11
        v_add_u32 v12, v12, v10
        v_lshlrev_b32 v13, 1, v12
        v_lshlrev_b32 v14, 2, v12
        v_lshlrev_b32 v15, 1, v11
        s_mov_b32 s{sT}, {16*576*2}
        s_mov_b32 s{sT2}, {16*576*4}
        s_mov_b32 s{sT3}, {2048*576*4}
        s_add_u32 s{sT4}, s{sT3}, s{sT2}
        buffer_load_dwordx2 v[200:201], v13, s[{SRD_X}:{SRD_X+3}], 0 offen
        buffer_load_dwordx2 v[202:203], v13, s[{SRD_X}:{SRD_X+3}], s{sT} offen
        buffer_load_dwordx4 v[204:207], v14, s[{SRD_P5}:{SRD_P5+3}], 0 offen sc1
        buffer_load_dwordx4 v[208:211], v14, s[{SRD_P5}:{SRD_P5+3}], s{sT2} offen sc1
        buffer_load_dwordx4 v[212:215], v14, s[{SRD_P5}:{SRD_P5+3}], s{sT3} offen sc1
        buffer_load_dwordx4 v[216:219], v14, s[{SRD_P5}:{SRD_P5+3}], s{sT4} offen sc1
        buffer_load_ushort v220, v15, s[{SRD_O}:{SRD_O+3}], 0 offen
        buffer_load_ushort v221, v15, s[{SRD_O}:{SRD_O+3}], 0 offen offset:32
        s_mov_b32 s{sT2}, 0x00003f80
        s_mov_b32 s{sT3}, 0x3f800000
        s_waitcnt vmcnt(0)
        v_lshlrev_b32 v220, 16, v220
        v_lshlrev_b32 v221, 16, v221
        """)
        for t in range(2):
            for r in range(4):
                d = 96 + 4 * t + r
                a(f"v_add_f32 v{d}, v{204+4*t+r}, v{212+4*t+r}")
                a(f"v_add_f32 v{d}, v{d}, v{220+t}")
            for h2 in range(2):
                a(f"v_dot2_f32_bf16 v{96+4*t+2*h2}, v{200+2*t+h2}, s{sT2}, v{96+4*t+2*h2}")
                a(f"v_dot2_f32_bf16 v{96+4*t+2*h2+1}, v{200+2*t+h2}, s{sT3}, v{96+4*t+2*h2+1}")
        for p in range(16):
            for dd in range(4):
                a(f"v_dot2_f32_bf16 v{96+2*dd}, v{R+4*p+dd}, s{sT2}, v{96+2*dd}")
                a(f"v_dot2_f32_bf16 v{96+2*dd+1}, v{R+4*p+dd}, s{sT3}, v{96+2*dd+1}")
        a(f"""
        v_cvt_pk_bf16_f32 v104, v96, v97
        v_cvt_pk_bf16_f32 v105, v98, v99
        v_cvt_pk_bf16_f32 v106, v100, v101
        v_cvt_pk_bf16_f32 v107, v102, v103
        buffer_store_dwordx2 v[104:105], v13, s[{SRD_OUT}:{SRD_OUT+3}], 0 offen
        buffer_store_dwordx2 v[106:107], v13, s[{SRD_OUT}:{SRD_OUT+3}], s{sT} offen
        {L}_skip:
        """)

    a(f"v_mov_b32 v10, {DBG_G5DONE}")
    poll_dword_eq(a, SRD_DBG, 10, 11, 224, WFAIL, "G3W", sleep=8)
    LP = a.label("G23")
    a(f"s_mov_b32 s{sSeg}, s{sGR}")
    a(f"s_mov_b32 s{sPrev}, -1")
    qkv_issue(sSeg)
    a(f"{LP}:")
    a(f"s_cmp_lt_i32 s{sPrev}, 0")
    a(f"s_cbranch_scc1 {LP}_nr")
    reduce_final(sPrev, "G3R")
    a(f"{LP}_nr:")
    a(f"""
    s_lshr_b32 s{sT}, s{sKo}, 5                  ; head*256
    s_lshl_b32 s{sT2}, s{sSeg}, 2
    s_add_u32 s{sT}, s{sT}, s{sT2}
    s_add_u32 s{sT}, s{sT}, {FL_KM}
    v_mov_b32 v10, s{sT}
    """)
    poll_dword_eq(a, SRD_FL, 10, 11, 1, WFAIL, "G2W", sleep=1)
    wall2(a, cfg, 6)
    a(f"s_lshl_b32 s{sT}, s{sSeg}, 18")
    a(f"s_add_u32 s{sT}, s{sT}, s{sKo}")
    for wp in range(4):
        a(f"s_add_u32 s{sT2}, s{sT}, {wp*1024}")
        a(f"buffer_load_dwordx4 v[{KM+4*wp}:{KM+4*wp+3}], v{vL16}, s[{SRD_KM2}:{SRD_KM2+3}], s{sT2} offen sc1")
        a(f"s_add_u32 s{sT2}, s{sT2}, 4096")
        a(f"buffer_load_dwordx4 v[{VM+4*wp}:{VM+4*wp+3}], v{vL16}, s[{SRD_KM2}:{SRD_KM2+3}], s{sT2} offen sc1")
    a("s_waitcnt vmcnt(0)")
    for wp in range(4):
        qf = f"v[{Q+4*wp}:{Q+4*wp+3}]"
        for (D, A) in ((SMm, KM + 4 * wp), (SX0, K + 8 * wp), (SX1, K + 8 * wp + 4)):
            c = "0" if wp == 0 else f"v[{D}:{D+3}]"
            a(f"v_mfma_f32_16x16x32_bf16 v[{D}:{D+3}], v[{A}:{A+3}], {qf}, {c}")
    a(f"v_mov_b32 v10, 0xff800000")
    a(f"s_cmp_eq_u32 s{sQT}, 0")
    a(f"s_cbranch_scc0 {LP}_q1")
    for r in range(4):
        a(f"v_cndmask_b32 v{SX0+r}, v10, v{SX0+r}, s[{SM[r]}:{SM[r]+1}]")
        a(f"v_mov_b32 v{SX1+r}, v10")
    a(f"s_branch {LP}_qd")
    a(f"{LP}_q1:")
    for r in range(4):
        a(f"v_cndmask_b32 v{SX1+r}, v10, v{SX1+r}, s[{SM[r]}:{SM[r]+1}]")
    a(f"{LP}_qd:")
    a(f"""
    v_max3_f32 v11, v{SMm}, v{SMm+1}, v{SX0}
    v_max3_f32 v11, v11, v{SX0+1}, v{SX0+2}
    v_max3_f32 v11, v11, v{SX0+3}, v{SX1}
    v_max3_f32 v11, v11, v{SX1+1}, v{SX1+2}
    v_max_f32 v11, v11, v{SX1+3}
    v_mov_b32 v12, v11
    v_permlane16_swap_b32 v11, v12
    v_max_f32 v11, v11, v12
    v_mov_b32 v12, v11
    v_permlane32_swap_b32 v11, v12
    v_max_f32 v11, v11, v12
    """)
    vals = [SMm, SMm + 1] + [SX0 + r for r in range(4)] + [SX1 + r for r in range(4)]
    for x in vals:
        a(f"v_sub_f32 v{x}, v{x}, v11")
    for x in vals:
        a(f"v_exp_f32 v{x}, v{x}")
    a(f"""
    v_cvt_pk_bf16_f32 v{PX}, v{SX0}, v{SX0+1}
    v_cvt_pk_bf16_f32 v{PX+1}, v{SX0+2}, v{SX0+3}
    v_cvt_pk_bf16_f32 v{PX+2}, v{SX1}, v{SX1+1}
    v_cvt_pk_bf16_f32 v{PX+3}, v{SX1+2}, v{SX1+3}
    v_cvt_pk_bf16_f32 v{PM}, v{SMm}, v{SMm+1}
    v_cvt_pk_bf16_f32 v{PM+1}, v{SMm}, v{SMm+1}
    s_mov_b32 s{sT}, 0x3f803f80
    v_mov_b32 v12, 0
    v_dot2_f32_bf16 v12, v{PX}, s{sT}, v12
    v_dot2_f32_bf16 v12, v{PX+1}, s{sT}, v12
    v_dot2_f32_bf16 v12, v{PX+2}, s{sT}, v12
    v_dot2_f32_bf16 v12, v{PX+3}, s{sT}, v12
    v_dot2_f32_bf16 v12, v{PM}, s{sT}, v12
    """)
    for wp in range(4):
        for t in range(2):
            D = O + 4 * (2 * wp + t)
            a(f"v_mfma_f32_16x16x32_bf16 v[{D}:{D+3}], v[{V+4*(2*wp+t)}:{V+4*(2*wp+t)+3}], v[{PX}:{PX+3}], 0")
    for wp in range(4):
        for t in range(2):
            D = O + 4 * (2 * wp + t)
            a(f"v_mfma_f32_16x16x16_bf16 v[{D}:{D+3}], v[{VM+4*wp+2*t}:{VM+4*wp+2*t+1}], v[{PM}:{PM+1}], v[{D}:{D+3}]")
    a(f"""
    v_mov_b32 v13, v12
    v_permlane16_swap_b32 v12, v13
    v_add_f32 v12, v12, v13
    v_mov_b32 v13, v12
    v_permlane32_swap_b32 v12, v13
    v_add_f32 v12, v12, v13
    v_rcp_f32 v12, v12
    s_lshl_b32 s{sT}, s{sHH}, 13
    s_lshl_b32 s{sT2}, s{sQT}, 10
    s_add_u32 s{sT}, s{sT}, s{sT2}
    v_add_u32 v13, s{sT}, v{vL16}
    """)
    for wp in range(4):
        for t in range(2):
            D = O + 4 * (2 * wp + t)
            for r in range(4): a(f"v_mul_f32 v{D+r}, v{D+r}, v12")
        D0 = O + 8 * wp
        a(f"v_cvt_pk_bf16_f32 v{D0}, v{D0}, v{D0+1}")
        a(f"v_cvt_pk_bf16_f32 v{D0+1}, v{D0+2}, v{D0+3}")
        a(f"v_cvt_pk_bf16_f32 v{D0+2}, v{D0+4}, v{D0+5}")
        a(f"v_cvt_pk_bf16_f32 v{D0+3}, v{D0+6}, v{D0+7}")
        a(f"ds_write_b128 v13, v[{D0}:{D0+3}] offset:{L_OI + wp*2048}")
    a("s_waitcnt lgkmcnt(0)")
    a("s_barrier")
    a(f"s_add_u32 s{sNx}, s{sSeg}, 14")
    a(f"s_cmp_lt_u32 s{sNx}, 64")
    a(f"s_cbranch_scc0 {LP}_np")
    qkv_issue(sNx)
    a(f"{LP}_np:")
    lg = Cnt(a, "lgkmcnt", 15)
    seq = [(kap, qt) for kap in range(8) for qt in range(2)]
    def bread(n):
        kap, qt = seq[n]
        lg.issue(n, f"ds_read_b128 v[{BF[n%4]}:{BF[n%4]+3}], v{vL16} offset:{L_OI + kap*2048 + qt*1024}")
    for n in range(3): bread(n)
    for n, (kap, qt) in enumerate(seq):
        if n + 3 < len(seq): bread(n + 3)
        lg.wait(n)
        for i in range(9):
            kind, rb = wfrag(i, kap)
            D = ACC + 8 * i + 4 * qt
            c = "0" if kap == 0 else f"v[{D}:{D+3}]"
            a(f"v_mfma_f32_16x16x32_bf16 v[{D}:{D+3}], {kind}[{rb}:{rb+3}], v[{BF[n%4]}:{BF[n%4]+3}], {c}")
    a(f"""
    s_lshl_b32 s{sT}, s{sSeg}, 4
    s_add_u32 s{sT}, s{sT}, s{sHP}
    s_mul_i32 s{sT}, s{sT}, 36864
    s_mul_i32 s{sT2}, s{w}, 9216
    s_add_u32 s{sT}, s{sT}, s{sT2}
    """)
    for i in range(9):
        D = ACC + 8 * i
        a(f"v_cvt_pk_bf16_f32 v{D}, v{D}, v{D+1}")
        a(f"v_cvt_pk_bf16_f32 v{D+1}, v{D+2}, v{D+3}")
        a(f"v_cvt_pk_bf16_f32 v{D+2}, v{D+4}, v{D+5}")
        a(f"v_cvt_pk_bf16_f32 v{D+3}, v{D+6}, v{D+7}")
        a(f"buffer_store_dwordx4 v[{D}:{D+3}], v{vL16}, s[{SRD_P3}:{SRD_P3+3}], s{sT} offen sc1")
        if i < 8: a(f"s_add_u32 s{sT}, s{sT}, 1024")
    a("s_waitcnt vmcnt(0)")
    a("s_barrier")
    a(f"""
    s_cmp_eq_u32 s{w}, 0
    s_cbranch_scc0 {LP}_nf
    s_lshl_b32 s{sT}, s{sSeg}, 4
    s_add_u32 s{sT}, s{sT}, s{sHP}
    s_lshl_b32 s{sT}, s{sT}, 2
    s_mov_b64 exec, 1
    v_mov_b32 v10, 1
    v_mov_b32 v11, 0
    buffer_store_dword v10, v11, s[{SRD_FL}:{SRD_FL+3}], s{sT} offen offset:0 sc1
    s_mov_b64 exec, -1
    {LP}_nf:
    """.replace("s{sT} offen offset:0 sc1", "s{sT} offen sc1").replace("{sT}", str(sT)) if False else f"""
    s_cmp_eq_u32 s{w}, 0
    s_cbranch_scc0 {LP}_nf
    s_lshl_b32 s{sT}, s{sSeg}, 4
    s_add_u32 s{sT}, s{sT}, s{sHP}
    s_lshl_b32 s{sT}, s{sT}, 2
    s_add_u32 s{sT}, s{sT}, {FL_G3}
    s_mov_b64 exec, 1
    v_mov_b32 v10, 1
    v_mov_b32 v11, 0
    buffer_store_dword v10, v11, s[{SRD_FL}:{SRD_FL+3}], s{sT} offen sc1
    s_mov_b64 exec, -1
    {LP}_nf:
    """)
    wall2(a, cfg, 7)
    a(f"s_mov_b32 s{sPrev}, s{sSeg}")
    a(f"s_mov_b32 s{sSeg}, s{sNx}")
    a(f"s_cmp_lt_u32 s{sSeg}, 64")
    a(f"s_cbranch_scc1 {LP}")
    reduce_final(sPrev, "G3E")
    a("s_waitcnt vmcnt(0)")


def emit_pretouch(a, cfg):
    wsz = DM * H * DH * 2
    for i, sp in enumerate((S_WK, S_WV, S_WQ, S_WO)):
        srd(a, SRD_A + 4 * i, sp, 0, wsz)
    a(f"""
    s_sub_u32 s{sT}, s{sWK}, 64
    s_lshl_b32 s{sT}, s{sT}, 2
    s_add_u32 s{sT}, s{sT}, s{S_WAVE}
    s_lshl_b32 s{sT}, s{sT}, 13
    s_cmp_lt_u32 s{sT}, {wsz}
    s_cbranch_scc0 W_PRE_DONE
    v_lshlrev_b32 v200, 7, v0
    buffer_load_dword v201, v200, s[{SRD_A}:{SRD_A+3}], s{sT} offen
    buffer_load_dword v202, v200, s[{SRD_B}:{SRD_B+3}], s{sT} offen
    buffer_load_dword v203, v200, s[{SRD_C}:{SRD_C+3}], s{sT} offen
    buffer_load_dword v204, v200, s[{SRD_D}:{SRD_D+3}], s{sT} offen
    W_PRE_DONE:
    """)
```
